```python
import torch

def _softmax(x, axis=-1):
    return torch.softmax(x, dim=axis)
def _gelu(x):
    return torch.nn.functional.gelu(x, approximate="tanh")
def _silu(x):
    return torch.nn.functional.silu(x)
def _sigmoid(x):
    return torch.sigmoid(x)
def _layernorm(x, axis=-1, eps=1e-5):
    m = x.mean(dim=axis, keepdim=True)
    v = x.var(dim=axis, keepdim=True, unbiased=False)
    return (x - m) / torch.sqrt(v + eps)
def _scatter_add(tgt, idx, src, axis=0):
    return tgt.clone().index_add_(axis, idx, src)
def _segment_sum(src, seg, n):
    out = torch.zeros((n,) + src.shape[1:], dtype=src.dtype)
    return out.index_add_(0, seg, src)
def _pad(x, pw):
    flat = tuple(v for pair in reversed(pw) for v in pair)
    return torch.nn.functional.pad(x, flat)

kernel_name = 'standalone__mha_block_cached__near_ridge'

def setup_inputs():

    _w = (lambda a: (lambda t: t.to(torch.bfloat16) if t.is_floating_point() else t)(torch.as_tensor(a)))
    B, Sq, D = 16, 256, 448
    H, Sk, Dh = 16, 1024, 256
    return {
        "x": _w((lambda *s: torch.randn(*s, dtype=torch.bfloat16) * 0.8)(B, Sq, D)),
        "k_cache": _w((lambda *s: torch.randn(*s, dtype=torch.bfloat16) * 0.8)(B, H, Sk, Dh)),
        "v_cache": _w((lambda *s: torch.randn(*s, dtype=torch.bfloat16) * 0.05)(B, H, Sk, Dh)),
        "wq": _w((lambda *s: torch.randn(*s, dtype=torch.bfloat16) * 0.8)(D, H * Dh) * (D ** -0.5)),
        "wo": _w((lambda *s: torch.randn(*s, dtype=torch.bfloat16) * 0.05)(H * Dh, D) * ((H * Dh) ** -0.5)),
    }

def reference(x, k_cache, v_cache, wq, wo):
    B, Sq, D = x.shape
    H, Dh = 16, 256
    q = (lambda x, *d: x.permute(*d))((x @ wq).reshape(B, Sq, H, Dh), 0, 2, 1, 3)
    scores = torch.einsum("bhqd,bhkd->bhqk", q, k_cache) * (Dh ** -0.5)
    p = _softmax(scores, axis=-1)
    o = torch.einsum("bhqk,bhkd->bhqd", p, v_cache)
    return (lambda x, *d: x.permute(*d))(o, 0, 2, 1, 3).reshape(B, Sq, H * Dh) @ wo
```

```python
import re

def regs_of(op):
    op = op.strip()
    if op.startswith('-'): op = op[1:]
    if op.startswith('|') and op.endswith('|'): op = op[1:-1]
    m = re.fullmatch(r'([vas])(\d+)', op)
    if m: return [m.group(1) + m.group(2)]
    m = re.fullmatch(r'([vas])\[(\d+):(\d+)\]', op)
    if m: return [m.group(1) + str(i) for i in range(int(m.group(2)), int(m.group(3)) + 1)]
    if op in ('vcc', 'm0', 'exec', 'scc'): return [op]
    if op in ('vcc_lo', 'vcc_hi'): return ['vcc']
    return []

TRANS = ('v_exp_f32', 'v_log_f32', 'v_rcp_f32', 'v_rsq_f32', 'v_sqrt_f32')

class I:
    __slots__ = ('text', 'kind', 'rd', 'wr', 'tag', 'wl', 'wv', 'cost', 'ops', 'mn', 'note', 'lg', 'vm')
    def __init__(self, text, tag=None, note=None):
        self.text = text; self.tag = tag; self.wl = None; self.wv = None; self.note = note
        self.lg = None; self.vm = None
        t = text.split(';')[0].strip()
        if t.endswith(':'):
            self.kind = 'label'; self.mn = t; self.rd = set(); self.wr = set(); self.cost = 0; self.ops = []; return
        parts = t.split(None, 1)
        mn = parts[0]; self.mn = mn
        rest = parts[1] if len(parts) > 1 else ''
        ops = [o.strip() for o in rest.split(',')] if rest else []
        mods = []
        if ops:
            sp = ops[-1].split()
            ops[-1] = sp[0] if sp else ''
            mods = sp[1:]
        self.ops = ops
        R = [regs_of(o) for o in ops]
        rd = set(); wr = set(); cost = 1
        if mn.startswith('v_mfma'):
            kind = 'mfma'; wr |= set(R[0]); rd |= set(R[1]) | set(R[2]) | set(R[3])
        elif mn.startswith('v_permlane') and 'swap' in mn:
            kind = 'valu'; wr |= set(R[0]) | set(R[1]); rd |= set(R[0]) | set(R[1])
        elif mn.startswith('v_'):
            kind = 'valu'
            if mn == 'v_nop': pass
            else:
                wr |= set(R[0])
                for r in R[1:]: rd |= set(r)
                if mn.startswith(('v_fmac', 'v_mac', 'v_dot2c')): rd |= set(R[0])
                if mn.startswith('v_cndmask') and len(ops) == 3: rd.add('vcc')
            if mn.split('_e')[0] in TRANS or mn in TRANS: cost = 2
        elif mn.startswith('ds_read'):
            kind = 'ds'; wr |= set(R[0]); rd |= set(R[1])
        elif mn.startswith('ds_write'):
            kind = 'ds'
            for r in R: rd |= set(r)
        elif mn.startswith('buffer_load') or mn.startswith('global_load'):
            if 'lds' in mods:
                kind = 'dma'; rd.add('m0'); cost = 2
                for r in R: rd |= set(r)
            else:
                kind = 'vld'; wr |= set(R[0]); cost = 2
                for r in R[1:]: rd |= set(r)
        elif mn.startswith('buffer_store') or mn.startswith('global_store'):
            kind = 'vst'; cost = 2
            for r in R: rd |= set(r)
        elif mn.startswith('buffer_atomic') or mn.startswith('global_atomic'):
            kind = 'vst'; cost = 2
            for r in R: rd |= set(r)
            if 'sc0' in mods: wr |= set(R[0]); kind = 'vld'
        elif mn.startswith(('buffer_wbl2', 'buffer_inv')):
            kind = 'vst'
        elif mn == 's_waitcnt': kind = 'wait'
        elif mn == 's_barrier': kind = 'barrier'
        elif mn == 's_nop': kind = 'nop'
        elif mn.startswith(('s_cbranch', 's_branch', 's_call', 's_setpc', 's_swappc', 's_endpgm')):
            kind = 'branch'
            if mn.startswith('s_cbranch_vcc'): rd.add('vcc')
            if mn.startswith('s_call'): wr |= set(R[0])
            if mn.startswith('s_setpc'): rd |= set(R[0])
        elif mn.startswith(('s_load', 's_memtime', 's_memrealtime', 's_buffer_load')):
            kind = 'smem'; wr |= set(R[0])
            for r in R[1:]: rd |= set(r)
        elif mn.startswith('s_cmp') or mn.startswith(('s_setprio', 's_sleep', 's_bitcmp')):
            kind = 'salu'
            for r in R: rd |= set(r)
        elif mn.startswith('s_'):
            kind = 'salu'; wr |= set(R[0])
            for r in R[1:]: rd |= set(r)
        else:
            raise ValueError('unknown instr: ' + text)
        self.kind = kind; self.rd = rd; self.wr = wr; self.cost = cost
    def __repr__(self): return self.text

def W(lg=None, vm=None):
    i = I('s_waitcnt')
    i.wl = lg; i.wv = vm
    return i

def resolve_waits(stream):
    ds_tags = {}; vm_tags = {}; nds = 0; nvm = 0
    for ins in stream:
        if ins.kind == 'ds':
            nds += 1
            if ins.tag is not None: ds_tags[ins.tag] = nds
        elif ins.kind in ('dma', 'vld', 'vst'):
            nvm += 1
            if ins.tag is not None: vm_tags[ins.tag] = nvm
        elif ins.kind == 'wait' and (ins.wl is not None or ins.wv is not None):
            def cnt(spec, tags, n, mx):
                if spec is None: return None
                if isinstance(spec, int): return spec
                specs = spec if isinstance(spec, (list, tuple)) and not (spec and isinstance(spec[0], str) and spec in tags) else [spec]
                if isinstance(spec, tuple): specs = [spec]
                pos = max(tags[s] for s in specs)
                return min(n - pos, mx)
            ins.lg = cnt(ins.wl, ds_tags, nds, 15)
            ins.vm = cnt(ins.wv, vm_tags, nvm, 63)

def wait_text(ins):
    p = []
    if ins.vm is not None: p.append('vmcnt(%d)' % ins.vm)
    if ins.lg is not None: p.append('lgkmcnt(%d)' % ins.lg)
    return 's_waitcnt ' + ' '.join(p)

def finalize_waits(stream):
    for ins in stream:
        if ins.kind == 'wait' and (ins.wl is not None or ins.wv is not None):
            ins.text = wait_text(ins)

def unify_iters(iters):
    n = len(iters[0])
    for it in iters: assert len(it) == n, 'iteration length mismatch'
    for k in range(n):
        col = [it[k] for it in iters]
        if col[0].kind == 'wait' and (col[0].wl is not None or col[0].wv is not None):
            lg = [c.lg for c in col]; vm = [c.vm for c in col]
            l = None if lg[0] is None else min(lg); v = None if vm[0] is None else min(vm)
            if len(set(lg)) > 1 or len(set(vm)) > 1:
                pass
            for c in col: c.lg = l; c.vm = v
        else:
            for c in col: assert c.text == col[0].text, ('iteration text mismatch', k, c.text, col[0].text)

def parse_wait(ins):
    lg = vm = None
    m = re.search(r'lgkmcnt\((\d+)\)', ins.text); lg = int(m.group(1)) if m else None
    m = re.search(r'vmcnt\((\d+)\)', ins.text); vm = int(m.group(1)) if m else None
    return lg, vm

def check_hazards(stream, name=''):
    errs = []
    pos = 0
    last = {}
    dsq = []; vmq = []
    def need(cls, regs, n, ins, what):
        for r in regs:
            p = last.get((cls, r))
            if p is not None and pos - p - 1 < n:
                errs.append('%s hazard %s on %s: have %d need %d at: %s' % (name, what, r, pos - p - 1, n, ins.text))
    mfma_d_exact = {}
    for ins in stream:
        k = ins.kind
        if k == 'label': continue
        touched = ins.rd | ins.wr
        for q, nm in ((dsq, 'ds'), (vmq, 'vm')):
            for d in q:
                if d & touched:
                    if (d & ins.rd) or k not in ('ds', 'vld'):
                        errs.append('%s pending %s load reg %s touched by: %s' % (name, nm, sorted(d & touched)[:3], ins.text))
        if k == 'wait':
            lg, vm = parse_wait(ins)
            if lg is not None:
                while len(dsq) > lg: dsq.pop(0)
            if vm is not None:
                while len(vmq) > vm: vmq.pop(0)
        if k == 'mfma':
            A = set(regs_of(ins.ops[1])); B = set(regs_of(ins.ops[2])); C = set(regs_of(ins.ops[3])); D = set(regs_of(ins.ops[0]))
            need('valu_w', A | B | C, 2, ins, 'VALU->MFMA')
            need('mfma_d', A | B, 8, ins, 'MFMA D->A/B')
            for r in C:
                p = last.get(('mfma_d', r))
                if p is not None and pos - p - 1 < 6 and mfma_d_exact.get(r) != ins.ops[3]:
                    errs.append('%s hazard MFMA D->C partial at %s' % (name, ins.text))
            need('exec_w', ['exec'], 4, ins, 'exec->mfma')
        if k == 'valu':
            need('mfma_d', touched, 8, ins, 'MFMA D->VALU')
            need('mfma_c', ins.wr, 3, ins, 'MFMA C WAR')
            if not (ins.mn in TRANS): need('trans_w', ins.rd, 1, ins, 'trans->VALU')
            if ins.mn.startswith('v_permlane') or 'dpp' in ins.text or 'row_' in ins.text: need('valu_w', ins.rd, 2, ins, 'VALU->permlane/dpp')
            if ins.mn.startswith(('v_readfirstlane', 'v_readlane')): need('valu_w', ins.rd, 1, ins, 'VALU->readlane')
            need('valu_s', [r for r in ins.rd if r[0] == 's' or r == 'vcc'], 2, ins, 'VALU sgpr->VALU')
            need('st_data', ins.wr, 2, ins, 'store data WAR')
        if k in ('ds', 'dma', 'vld', 'vst'):
            need('mfma_d', touched, 8, ins, 'MFMA D->mem')
        if k in ('ds', 'vld', 'mfma'):
            need('st_data', ins.wr, 1, ins, 'store data WAR')
        if k in ('dma', 'vld', 'vst'):
            need('valu_s', [r for r in ins.rd if r[0] == 's'], 5, ins, 'VALU sgpr->VMEM')
        if k == 'dma': need('salu_m0', ['m0'], 1, ins, 'M0->DMA')
        if k == 'mfma':
            for r in D: last[('mfma_d', r)] = pos; mfma_d_exact[r] = ins.ops[0]
            for r in C: last[('mfma_c', r)] = pos
        if k == 'valu':
            for r in ins.wr:
                if r[0] in 'va' and r != 'vcc': last[('valu_w', r)] = pos
                if r[0] == 's' or r == 'vcc': last[('valu_s', r)] = pos
                if r == 'exec': last[('exec_w', r)] = pos
                if ins.mn in TRANS: last[('trans_w', r)] = pos
                else: last.pop(('trans_w', r), None)
        if k == 'salu' and 'm0' in ins.wr: last[('salu_m0', 'm0')] = pos
        if k == 'vst' and ('x4' in ins.mn or 'x3' in ins.mn):
            for r in regs_of(ins.ops[0]): last[('st_data', r)] = pos
        if k == 'ds': dsq.append(set(ins.wr))
        if k in ('dma', 'vld', 'vst'): vmq.append(set(ins.wr))
        if k == 'smem': dsq.append(set(ins.wr)); dsq.append(set(ins.wr))
        if len(dsq) > 15 and k == 'ds': pass
        if k == 'nop': pos += int(ins.ops[0]) + 1
        else: pos += 1
    return errs

class Gaps:
    def __init__(self, mfmas, cap=2):
        self.m = mfmas; self.n = len(mfmas); self.g = [[] for _ in mfmas]; self.used = [0] * self.n; self.cap = cap
    def put(self, gap, ins, force=False):
        if isinstance(ins, str): ins = I(ins)
        if not force: assert self.used[gap] + ins.cost <= self.cap, ('gap full', gap, ins.text, self.g[gap])
        self.g[gap].append(ins); self.used[gap] += ins.cost
        return gap
    def fits(self, gap, ins):
        if self.used[gap] + ins.cost > self.cap: return False
        if ins.kind == 'ds' and any(x.kind == 'valu' for x in self.g[gap]): return False
        return True
    def place(self, ins, lo=0, hi=None):
        if isinstance(ins, str): ins = I(ins)
        hi = self.n - 1 if hi is None else hi
        for gp in range(lo, hi + 1):
            if self.fits(gp, ins): return self.put(gp, ins)
        raise AssertionError(('no room', ins.text, lo, hi))
    def chain(self, items, lo=0, hi=None, step=0):
        cur = lo
        for it in items:
            cur = self.place(it, cur, hi) + step
        return cur
    def flat(self):
        out = []
        for m, g in zip(self.m, self.g):
            out.append(m if isinstance(m, I) else I(m)); out.extend(g)
        return out
    def free(self): return sum(self.cap - u for u in self.used)
```

```python
import sys, os
sys.path.insert(0, os.path.dirname(os.path.abspath(__file__)))
from asmlib import *

OPT = dict(kvpol='nt', nodma=0, nost=0, wq8=1, stop='', stamps=0, thr=0x47800000, name='standalone__mha_block_cached__near_ridge')
for a in sys.argv[1:]:
    k, v = a.split('=')
    OPT[k] = v if k in ('stop', 'name', 'kvpol') else int(v, 0)

SLOT = 17408
MF = 'v_mfma_f32_16x16x32_bf16'
def vr(b, n=4): return 'v[%d:%d]' % (b, b + n - 1) if n > 1 else 'v%d' % b
def ar(b, n=4): return 'a[%d:%d]' % (b, b + n - 1) if n > 1 else 'a%d' % b
def sr(b, n=4): return 's[%d:%d]' % (b, b + n - 1)

SK, SV, SWQ, SX, SWO, SWS = 8, 12, 16, 20, 24, 28
sWL, sWL8, sT0, sT1 = 32, 33, 34, 35
sKO, sLC, sTHR, sSC, sRET, sR0, sVO = 52, 53, 54, 56, 58, 61, 62
sBH = 63
sST = 64
def Q(ds, qb): return 4 * (ds * 4 + qb)
def S(buf, qb, T=0): return 128 + 32 * buf + 8 * qb + 4 * T
def NEGM(qb): return 192 + 4 * qb
def RING(n): return 208 + 4 * (n % 4)
L0, LT0 = 224, 228
vKA, vVAe, vVAo, vDK, vDV, vDWo, vOA, vST, vTM = 232, 233, 234, 235, 236, 237, 238, 242, 243
vWA0, vWA1, vWA80, vWA81, vXA, vDWq, vDX = 244, 245, 246, 247, 248, 249, 250
def O(db, qb): return 4 * (db * 4 + qb)
def ACC(ds, qb, T):
    if ds < 7: return vr(8 * (ds * 4 + qb) + 4 * T)
    return ar(8 * qb + 4 * T)
def XF(par, qb): return 32 + 16 * par + 4 * qb
def ARING(n): return 64 + 4 * (n % 4)

nstamp = [0]
def stamp(out):
    if not OPT['stamps']: return
    k = nstamp[0]; nstamp[0] += 1
    out.append(I('s_waitcnt lgkmcnt(0)'))
    out.append(I('s_memtime %s' % sr(sST + 2 * k, 2)))
    out.append(I('s_waitcnt lgkmcnt(0)'))

def dma_kv(which, tile, slot, p, soff):
    srd, vo = (SK, vDK) if which == 'K' else (SV, vDV)
    pre = [I('s_add_u32 m0, s%d, %d' % (sWL, slot * SLOT + p * 64))]
    d = I('buffer_load_dwordx4 v%d, %s, s%d offen offset:%d %s lds' % (vo, sr(srd), soff, p * 1024, OPT['kvpol'].replace('+', ' ')), tag=(which, tile, p))
    return pre, d
def dma_wq(tile, p, st):
    slot = 4 + (tile + 1) % 5
    pre = [I('s_add_u32 m0, s%d, %d' % (sWL8, slot * SLOT + p * 1088)), I('s_mov_b32 s%d, %d' % (st, tile * 32 * 8192 + p * 16384))]
    d = I('buffer_load_dwordx4 v%d, %s, s%d offen lds' % (vDWq, sr(SWQ), st), tag=('Wq', tile, p))
    return pre, d
def dma_x(tile, p, st):
    slot = (tile + 2) % 4
    pre = [I('s_add_u32 m0, s%d, %d' % (sWL, slot * SLOT + p * 1088)), I('s_mov_b32 s%d, %d' % (st, p * 14336 + tile * 64))]
    d = I('buffer_load_dwordx4 v%d, %s, s%d offen lds' % (vDX, sr(SX), st), tag=('X', tile, p))
    return pre, d
def dma_wo(chunk, half, p, st):
    slot = 2 * (chunk % 4) + half
    pre = [I('s_add_u32 m0, s%d, %d' % (sWL, slot * SLOT + p * 1088)), I('s_mov_b32 s%d, %d' % (st, half * 128 * 896 + p * 7168 + chunk * 128))]
    d = I('buffer_load_dwordx4 v%d, %s, s%d offen lds' % (vDWo, sr(SWO), st), tag=('Wo', chunk, half, p))
    return pre, d
def dma_kv_imm(which, tile, p, st):
    slot = tile % 4 + (0 if which == 'K' else 4)
    pre, d = dma_kv(which, tile, slot, p, st)
    pre.append(I('s_mov_b32 s%d, %d' % (st, tile * 16384)))
    return pre, d

def rd_wq(tile, n):
    ds, T = n >> 1, n & 1
    slot = 4 + (tile + 1) % 5
    if slot == 8: a = (vWA80, vWA81)[(ds >> 1) & 1]; base = 0
    else: a = (vWA0, vWA1)[(ds >> 1) & 1]; base = (slot - 4) * SLOT
    r = ARING(n)
    return [I('ds_read_b64_tr_b16 %s, v%d offset:%d' % (ar(r + 2 * rho, 2), a, base + rho * 2176 + ds * 64 + T * 8), tag=('fWq', tile, n, rho)) for rho in (0, 1)]
def rd_x(tile, qb):
    slot = (tile + 2) % 4
    return I('ds_read_b128 %s, v%d offset:%d' % (ar(XF(tile & 1, qb)), vXA, slot * SLOT + qb * 1088), tag=('fX', tile, qb))
def rd_k(t, n):
    T, ds = n >> 3, n & 7
    return [I('ds_read_b128 %s, v%d offset:%d' % (vr(RING(n)), vKA, (t % 4) * SLOT + T * 8704 + ds * 64), tag=('fK', t, n, 1))]
def rd_v(t, db):
    a = vVAo if db & 1 else vVAe
    r = RING(db)
    return [I('ds_read_b64_tr_b16 %s, v%d offset:%d' % (vr(r + 2 * rho, 2), a, (t % 4) * SLOT + rho * 8704 + db * 32), tag=('fV', t, db, rho)) for rho in (0, 1)]
def rd_wo(hc, n):
    ds, T = n >> 1, n & 1
    nt = 2 * (hc & 1) + T
    r = RING(n)
    return [I('ds_read_b64_tr_b16 %s, v%d offset:%d' % (vr(r + 2 * rho, 2), vOA + nt, (4 * ds + 2 * rho) * 1088), tag=('fWo', hc, n, rho)) for rho in (0, 1)]

def put_dmas(G, dmas, groups):
    prev = 0
    for (pre, d), g in zip(dmas, groups):
        gp = 4 * g + 1
        G.put(gp, d)
    for (pre, d), g in zip(dmas, groups):
        gp = 4 * g + 1
        for ins in pre:
            for cand in range(gp - 1, prev - 1, -1):
                if G.fits(cand, ins): G.put(cand, ins); break
            else: raise AssertionError(('no room for dma setup', gp))
        prev = gp + 1

def setup():
    o = []
    A = lambda s: o.append(I(s))
    A('s_cmp_ge_u32 s2, 256'); A('s_cbranch_scc1 L_END')
    A('s_load_dwordx16 s[36:51], s[0:1], 0')
    A('v_lshrrev_b32 v1, 6, v0'); A('v_and_b32 v0, 63, v0')
    A('v_readfirstlane_b32 s3, v1')
    A('s_and_b32 s4, s2, 7'); A('s_lshr_b32 s5, s2, 3')
    A('s_and_b32 s6, s4, 3'); A('s_lshl_b32 s6, s6, 2'); A('s_and_b32 s7, s5, 3'); A('s_add_u32 s6, s6, s7')
    A('s_lshr_b32 s4, s4, 2'); A('s_lshl_b32 s4, s4, 3'); A('s_lshr_b32 s5, s5, 2'); A('s_add_u32 s4, s4, s5')
    A('s_lshl_b32 s5, s4, 4'); A('s_add_u32 s%d, s5, s6' % sBH)
    A('s_mul_i32 s%d, s3, 4352' % sWL)
    A('s_and_b32 s7, s3, 1')
    if OPT['wq8']: A('s_lshl_b32 s7, s7, 3'); A('s_add_u32 s%d, s%d, s7' % (sWL8, sWL)); A('s_lshr_b32 s7, s7, 3')
    else: A('s_mov_b32 s%d, s%d' % (sWL8, sWL))
    A('v_and_b32 v1, 15, v0'); A('v_lshrrev_b32 v2, 4, v0'); A('v_bfe_u32 v3, v0, 2, 2'); A('v_and_b32 v4, 3, v0')
    A('v_lshrrev_b32 v5, 5, v0'); A('v_and_b32 v6, 31, v0')
    A('s_lshl_b32 s34, s3, 6'); A('v_lshrrev_b32 v7, 2, v0'); A('v_add_u32 v7, s34, v7'); A('s_movk_i32 s35, 896')
    A('v_mul_lo_u32 v7, v7, s35'); A('v_lshlrev_b32 v8, 1, v5'); A('v_xor_b32 v8, v8, v4'); A('v_lshl_add_u32 v%d, v8, 4, v7' % vDX)
    A('s_lshl_b32 s34, s3, 3'); A('v_add_u32 v7, s34, v5'); A('v_lshlrev_b32 v7, 13, v7'); A('v_lshlrev_b32 v8, 3, v5')
    A('v_xor_b32 v8, v8, v6'); A('v_lshl_add_u32 v%d, v8, 4, v7' % vDWq)
    A('s_waitcnt lgkmcnt(0)')
    def srd(d, p, off, size):
        A('s_add_u32 s%d, s%d, %s' % (d, p, off)); A('s_addc_u32 s%d, s%d, 0' % (d + 1, p + 1))
        A('s_mov_b32 s%d, %s' % (d + 2, size)); A('s_mov_b32 s%d, 0x20000' % (d + 3))
    A('s_mul_i32 s34, s4, 229376'); srd(SX, 36, 's34', '229376')
    A('s_lshl_b32 s34, s6, 9'); A('s_sub_u32 s35, 3670016, s34'); srd(SWQ, 42, 's34', 's35')
    return o

def setup2():
    o = []
    A = lambda s: o.append(I(s))
    def srd(d, p, off, size):
        A('s_add_u32 s%d, s%d, %s' % (d, p, off)); A('s_addc_u32 s%d, s%d, 0' % (d + 1, p + 1))
        A('s_mov_b32 s%d, %s' % (d + 2, size)); A('s_mov_b32 s%d, 0x20000' % (d + 3))
    A('s_lshl_b32 s34, s%d, 19' % sBH); srd(SK, 38, 's34', '524288'); srd(SV, 40, 's34', '524288')
    A('s_mul_i32 s34, s6, 229376'); srd(SWO, 44, 's34', '229376')
    A('s_mul_i32 s34, s%d, 229376' % sBH); srd(SWS, 50, 's34', '229376')
    A('s_mov_b32 s%d, 0x%x' % (sTHR, OPT['thr']))
    A('s_mov_b32 s%d, 0x3db8aa3b' % sSC); A('s_mov_b32 s%d, 0x3db8aa3b' % (sSC + 1))
    A('s_mov_b32 s%d, %d' % (sKO, 4 * 16384)); A('s_mov_b32 s%d, %d' % (sVO, 3 * 16384)); A('s_mov_b32 s%d, 0' % sLC)
    A('s_movk_i32 s35, 1088')
    A('v_lshrrev_b32 v7, 3, v1'); A('v_lshlrev_b32 v8, 1, v7'); A('v_xor_b32 v8, v8, v2'); A('v_lshlrev_b32 v8, 4, v8')
    A('v_lshl_add_u32 v8, v1, 6, v8'); A('v_add_u32 v%d, s%d, v8' % (vXA, sWL))
    A('v_lshrrev_b32 v9, 1, v3'); A('v_and_b32 v10, 1, v3')
    A('v_lshl_add_u32 v8, v2, 2, v9'); A('v_mul_lo_u32 v8, v8, s35'); A('v_lshl_add_u32 v8, v4, 4, v8')
    if OPT['wq8']: A('v_and_b32 v11, 1, v2'); A('v_lshl_add_u32 v8, v11, 3, v8')
    A('v_add_u32 v8, %d, v8' % (4 * SLOT))
    A('v_mul_u32_u24 v11, 640, v10'); A('v_add_u32 v%d, v8, v11' % vWA0)
    A('v_mul_u32_u24 v11, 384, v10'); A('v_add_u32 v%d, v8, v11' % vWA1)
    A('v_add_u32 v%d, %d, v%d' % (vWA80, 4 * SLOT, vWA0)); A('v_add_u32 v%d, %d, v%d' % (vWA81, 4 * SLOT, vWA1))
    A('v_lshrrev_b32 v8, 1, v1'); A('v_mul_lo_u32 v8, v8, s35'); A('v_and_b32 v11, 1, v1'); A('v_lshl_add_u32 v8, v11, 9, v8')
    A('v_lshl_or_b32 v11, v7, 1, v11'); A('v_xor_b32 v11, v11, v2'); A('v_lshl_add_u32 v%d, v11, 4, v8' % vKA)
    A('v_lshl_add_u32 v8, v2, 1, v9'); A('v_mul_lo_u32 v8, v8, s35'); A('v_lshl_add_u32 v8, v4, 3, v8'); A('v_add_u32 v8, %d, v8' % (4 * SLOT))
    A('v_mul_u32_u24 v11, 544, v10'); A('v_add_u32 v%d, v8, v11' % vVAe)
    A('v_mul_u32_u24 v11, 480, v10'); A('v_add_u32 v%d, v8, v11' % vVAo)
    A('s_lshl_b32 s34, s3, 12'); A('v_lshlrev_b32 v8, 9, v5'); A('v_add_u32 v8, s34, v8')
    A('s_lshl_b32 s5, s7, 1'); A('v_or_b32 v11, s5, v5'); A('v_xor_b32 v11, v11, v6'); A('v_lshl_add_u32 v%d, v11, 4, v8' % vDK)
    A('v_lshlrev_b32 v11, 1, v5'); A('v_xor_b32 v11, v11, v6'); A('v_lshl_add_u32 v%d, v11, 4, v8' % vDV)
    A('v_lshlrev_b32 v8, 4, v0'); A('v_add_u32 v%d, s34, v8' % vST)
    A('s_lshl_b32 s34, s3, 5'); A('v_lshrrev_b32 v8, 3, v0'); A('v_add_u32 v8, s34, v8'); A('s_movk_i32 s5, 896'); A('v_mul_lo_u32 v8, v8, s5')
    A('v_and_b32 v11, 7, v0'); A('v_lshlrev_b32 v12, 1, v2'); A('v_xor_b32 v11, v11, v12'); A('v_lshl_add_u32 v%d, v11, 4, v8' % vDWo)
    A('v_lshrrev_b32 v8, 1, v2'); A('v_mul_lo_u32 v8, v8, s35'); A('v_and_b32 v11, 1, v2'); A('v_lshl_add_u32 v11, v11, 2, v3')
    A('v_lshl_add_u32 v8, v11, 7, v8'); A('v_lshl_add_u32 v8, v4, 3, v8'); A('v_lshrrev_b32 v11, 1, v11')
    for nt in range(4):
        A('v_xor_b32 v12, %d, v11' % nt); A('v_lshl_add_u32 v%d, v12, 5, v8' % (vOA + nt))
    for qb in range(4): A('v_mov_b32 v%d, 0' % (L0 + qb))
    return o

def phase1():
    o = []
    k = 0
    for t in range(4):
        for f in (dma_x, dma_wq):
            for p in range(4):
                pre, d = f(t, p, sT0 + (k & 1)); k += 1
                o += pre; o.append(d)
    o += setup2()
    stamp(o)
    o.append(W(vm=('Wq', 0, 3))); o.append(I('s_barrier'))
    for qb in range(4): o.append(rd_x(0, qb))
    for n in range(4): o += rd_wq(0, n)
    o.append(W(lg=('fWq', 0, 0, 1)))
    stamp(o)
    zero = ['v_accvgpr_write_b32 a%d, 0' % i for i in range(80, 256)]
    for i in range(14):
        mf = []
        for n in range(16):
            ds, T = n >> 1, n & 1
            for qb in range(4):
                d = ACC(ds, qb, T)
                mf.append(I('%s %s, %s, %s, %s' % (MF, d, ar(ARING(n)), ar(XF(i & 1, qb)), '0' if i == 0 else d)))
        G = Gaps(mf)
        for g in range(16):
            nx = g + 4
            if nx < 16:
                for r in rd_wq(i, nx): G.put(4 * g + 3, r)
            elif i < 13:
                for r in rd_wq(i + 1, nx - 16): G.put(4 * g + 3, r)
            if g < 15:
                if g == 12 and i < 13:
                    G.put(4 * g + 2, W(lg=('fWq', i, g + 1, 1), vm=[('Wq', i + 1, 3), ('X', i + 1, 3)])); G.put(4 * g + 2, 's_barrier')
                else: G.put(4 * g + 2, W(lg=('fWq', i, g + 1, 1)))
            elif i < 13: G.put(4 * g + 2, W(lg=('fX', i + 1, 3)))
        if i < 13:
            for qb in range(4): G.put(52 + qb // 2, rd_x(i + 1, qb))
        dm = []
        if i <= 9:
            dm = [dma_x(i + 4, p, sT0) for p in range(4)] + [dma_wq(i + 4, p, sT0) for p in range(4)]
        else:
            dm = [dma_kv_imm('K', i - 10, p, sT0) for p in range(4)]
            if i < 13: dm += [dma_kv_imm('V', i - 10, p, sT0) for p in range(4)]
        put_dmas(G, dm, [1, 2, 4, 5, 7, 8, 10, 11][:len(dm)])
        gp = 0
        while zero and gp < 64:
            z = I(zero[0])
            if G.fits(gp, z): G.put(gp, z); zero.pop(0)
            else: gp += 1
        o += G.flat()
    assert not zero
    stamp(o)
    o.append(I('s_nop 3'))
    def conv(src, dst):
        r = []
        for k in range(4): r.append(I('v_pk_mul_f32 %s, %s, %s' % (vr(src + 2 * k, 2), vr(src + 2 * k, 2), sr(sSC, 2))))
        for k in range(4): r.append(I('v_cvt_pk_bf16_f32 v%d, v%d, v%d' % (dst + k, src + 2 * k, src + 2 * k + 1)))
        return r
    for f in range(28): o += conv(8 * f, 4 * f)
    o.append(W(vm=('K', 0, 3))); o.append(I('s_barrier'))
    for n in range(4): o += rd_k(0, n)
    for k in range(32): o.append(I('v_accvgpr_read_b32 v%d, a%d' % (128 + k, k)))
    for qb in range(4): o += conv(128 + 8 * qb, Q(7, qb))
    o.append(W(lg=('fK', 0, 0, 1)))
    return o

def softmax_items(buf, qb):
    b = S(buf, qb); lt = LT0 + qb
    it = []
    for k in range(8):
        it.append(('e', k, I('v_exp_f32 v%d, v%d' % (b + k, b + k))))
        if k == 1: it.append(('v', k, I('v_add_f32 v%d, v%d, v%d' % (lt, b, b + 1))))
        elif k > 1: it.append(('v', k, I('v_add_f32 v%d, v%d, v%d' % (lt, lt, b + k))))
        if k & 1: it.append(('v', k, I('v_cvt_pk_bf16_f32 v%d, v%d, v%d' % (b + k // 2, b + k - 1, b + k))))
    return it

def place_softmax(G, buf, qbs, expgaps):
    eg = list(expgaps); pend = []
    for qb in qbs:
        for kind, k, ins in softmax_items(buf, qb):
            if kind == 'e':
                gp = eg.pop(0); G.put(gp, ins); last = gp
            else: pend.append((ins, last + 1))
    return pend

def place_chain(G, pend):
    cur = 0
    for ins, lo in pend: cur = G.place(ins, max(cur, lo))
    return cur

stubs = []
def check_items(t):
    lab = 'RS_%d' % (t % 4 if t < 28 else t)
    if lab not in [s[0] for s in stubs]: stubs.append((lab, t & 1))
    return [I('v_max_f32 v%d, v%d, v%d' % (vTM, vTM, LT0 + 3)), I('v_cmp_lt_f32 vcc, s%d, v%d' % (sTHR, vTM)),
            I('s_cbranch_vccnz %s' % lab), I('%s_RET:' % lab)]

def qk_mfmas(t1, first):
    mf = []
    for n in range(16):
        T, ds = n >> 3, n & 7
        for qb in range(4):
            d = vr(S(t1 & 1, qb, T))
            c = d if ds else ('0' if first else vr(NEGM(qb)))
            mf.append(I('%s %s, %s, %s, %s' % (MF, d, vr(RING(n)), vr(Q(ds, qb)), c)))
    return mf
def pv_mfmas(t):
    mf = []
    for db in range(16):
        for qb in range(4):
            d = ar(O(db, qb))
            mf.append(I('%s %s, %s, %s, %s' % (MF, d, vr(RING(db)), vr(S(t & 1, qb)), d)))
    return mf

def prologue():
    o = []
    G = Gaps(qk_mfmas(0, True))
    for g in range(16):
        nx = g + 4
        for r in (rd_k(0, nx) if nx < 16 else rd_k(1, nx - 16)): G.put(4 * g + 3, r)
        if g == 12:
            G.put(4 * g + 2, W(lg=('fK', 0, g + 1, 1), vm=[('K', 1, 3), ('V', 0, 3)])); G.put(4 * g + 2, 's_barrier')
        elif g < 15: G.put(4 * g + 2, W(lg=('fK', 0, g + 1, 1)))
        else: G.put(4 * g + 2, W(lg=('fK', 1, 0, 1)))
    G.chain(['v_accvgpr_write_b32 a%d, 0' % i for i in range(80)])
    o += G.flat()
    A = lambda s: o.append(I(s))
    A('s_nop 6')
    tm = [244, 245, 246, 247]; tc = [248, 249, 250, 251]
    for st in range(4):
        for qb in range(4):
            b = S(0, qb)
            if st == 0: A('v_max3_f32 v%d, v%d, v%d, v%d' % (tm[qb], b, b + 1, b + 2))
            elif st < 3: A('v_max3_f32 v%d, v%d, v%d, v%d' % (tm[qb], tm[qb], b + 2 * st + 1, b + 2 * st + 2))
            else: A('v_max_f32 v%d, v%d, v%d' % (tm[qb], tm[qb], b + 7))
    for sw in ('v_permlane32_swap_b32', 'v_permlane16_swap_b32'):
        for qb in range(4): A('v_mov_b32 v%d, v%d' % (tc[qb], tm[qb]))
        for qb in range(4): A('%s v%d, v%d' % (sw, tm[qb], tc[qb]))
        for qb in range(4): A('v_max_f32 v%d, v%d, v%d' % (tm[qb], tm[qb], tc[qb]))
    for qb in range(4):
        for r in range(4): A('v_sub_f32 v%d, 0, v%d' % (NEGM(qb) + r, tm[qb]))
    for qb in range(4):
        for k in range(8): A('v_sub_f32 v%d, v%d, v%d' % (S(0, qb) + k, S(0, qb) + k, tm[qb]))
    i0 = softmax_items(0, 0); i1 = softmax_items(0, 1)
    for x, y in zip(i0, i1): o.append(x[2]); o.append(y[2])
    return o

def step(t):
    o = []
    cur = t & 1
    max3 = I('v_max3_f32 v%d, v%d, v%d, v%d' % (vTM, LT0, LT0 + 1, LT0 + 2))
    ladd = [I('v_add_f32 v%d, v%d, v%d' % (L0 + q, L0 + q, LT0 + q)) for q in range(4)]
    if t < 28: dK = [dma_kv('K', t + 4, t % 4, p, sKO) for p in range(4)]
    else: dK = [dma_wo((t - 28) // 2, (t - 28) % 2, p, sT0) for p in range(4)]
    if t < 29: dV = [dma_kv('V', t + 3, 4 + (t + 3) % 4, p, sVO) for p in range(4)]
    else: dV = [dma_wo(2 + (t - 29) // 2, (t - 29) % 2, p, sT0) for p in range(4)]
    if t < 31:
        G = Gaps(qk_mfmas(t + 1, False))
        for g in range(16):
            nx = g + 4
            for r in (rd_k(t + 1, nx) if nx < 16 else rd_v(t, nx - 16)): G.put(4 * g + 3, r)
            G.put(4 * g + 2, W(lg=('fK', t + 1, g + 1, 1) if g < 15 else ('fV', t, 0, 1)))
        eg = [0, 4, 5, 8, 12, 13] + [4 * g for g in range(4, 14)]
        pend = place_softmax(G, cur, (2, 3), eg)
        put_dmas(G, dK, [5, 7, 9, 11])
        idx = [k for k, (ins, lo) in enumerate(pend) if ins.mn == 'v_add_f32' and ins.ops[0] == 'v%d' % (LT0 + 2)][-1]
        pend.insert(idx + 1, (max3, pend[idx][1]))
        cg = place_chain(G, pend)
        ck = check_items(t)
        cg = G.place(ck[0], cg); cg = G.place(ck[1], cg); cg = G.place(ck[2], cg + 1); G.put(cg, ck[3])
        assert cg >= 36
        G.chain(ladd, cg)
        o += G.flat()
    else:
        for pre, d in dK: o += pre; o.append(I('s_nop 0')); o.append(d)
        i0 = softmax_items(cur, 2); i1 = softmax_items(cur, 3)
        for x, y in zip(i0, i1): o.append(x[2]); o.append(y[2])
        o.append(max3); o += check_items(t); o += ladd
    G = Gaps(pv_mfmas(t))
    if t < 30: nxt_rd = lambda n: rd_k(t + 2, n); nxt_tag = ('fK', t + 2, 0, 1); vmw = [('K', t + 2, 3), ('V', t + 1, 3)]
    elif t == 30: nxt_rd = lambda n: rd_v(31, n); nxt_tag = ('fV', 31, 0, 1); vmw = [('V', 31, 3)]
    else: nxt_rd = lambda n: rd_wo(0, n); nxt_tag = ('fWo', 0, 0, 1); vmw = [('Wo', 0, 1, 3)]
    for g in range(16):
        nx = g + 4
        for r in (rd_v(t, nx) if nx < 16 else nxt_rd(nx - 16)): G.put(4 * g + 3, r)
        if g == 12:
            G.put(4 * g + 2, W(lg=('fV', t, g + 1, 1), vm=vmw)); G.put(4 * g + 2, 's_barrier')
        else: G.put(4 * g + 2, W(lg=('fV', t, g + 1, 1) if g < 15 else nxt_tag))
    pend = []
    if t < 31: pend = place_softmax(G, cur ^ 1, (0, 1), [4 * g for g in range(16)])
    put_dmas(G, dV, [1, 3, 5, 7])
    place_chain(G, pend)
    if t < 31:
        G.place('s_add_u32 s%d, s%d, 16384' % (sKO, sKO), 34); G.place('s_add_u32 s%d, s%d, 16384' % (sVO, sVO), 34)
    if t < 28 and t % 4 == 3:
        gp = G.place('s_add_u32 s%d, s%d, 1' % (sLC, sLC), 40); G.place('s_cmp_lt_u32 s%d, 7' % sLC, gp + 1)
        G.put(63, 's_cbranch_scc1 L_LOOP', force=True)
    if t == 31:
        ch = []
        for sw in ('v_permlane32_swap_b32', 'v_permlane16_swap_b32'):
            ch += ['v_mov_b32 v%d, v%d' % (LT0 + q, L0 + q) for q in range(4)]
            ch += ['%s v%d, v%d' % (sw, L0 + q, LT0 + q) for q in range(4)]
            ch += ['v_add_f32 v%d, v%d, v%d' % (L0 + q, L0 + q, LT0 + q) for q in range(4)]
        ch += ['v_rcp_f32 v%d, v%d' % (L0 + q, L0 + q) for q in range(4)]
        G.chain(ch, 0)
    o += G.flat()
    return o

def oconv():
    o = []
    A = lambda s: o.append(I(s))
    k = 0
    for ds in range(8):
        for qb in range(4):
            tmp = 128 + 8 * (k % 4); k += 1
            for T in range(2):
                for r in range(4): A('v_accvgpr_read_b32 v%d, a%d' % (tmp + 4 * T + r, O(2 * ds + T, qb) + r))
            for j in range(4): A('v_cvt_pk_bf16_f32 v%d, v%d, v%d' % (Q(ds, qb) + j, tmp + 2 * j, tmp + 2 * j + 1))
    return o

def epi_items(hc):
    buf = hc & 1; it = []
    it.append(I('s_mov_b32 s%d, %d' % (sT1, hc * 16384)))
    for qb in range(4):
        b = S(buf, qb)
        for j in range(4):
            it.append(I('v_mul_f32 v%d, v%d, v%d' % (b + 2 * j, b + 2 * j, L0 + qb)))
            it.append(I('v_mul_f32 v%d, v%d, v%d' % (b + 2 * j + 1, b + 2 * j + 1, L0 + qb)))
            it.append(I('v_cvt_pk_bf16_f32 v%d, v%d, v%d' % (b + j, b + 2 * j, b + 2 * j + 1)))
        it.append(I('buffer_store_dwordx4 %s, v%d, %s, s%d offen offset:%d' % (vr(b), vST, sr(SWS), sT1, qb * 1024), tag=('St', hc, qb)))
    return it

def phase3():
    o = []
    for hc in range(14):
        mf = []
        for n in range(16):
            ds, T = n >> 1, n & 1
            for qb in range(4):
                d = vr(S(hc & 1, qb, T))
                mf.append(I('%s %s, %s, %s, %s' % (MF, d, vr(RING(n)), vr(Q(ds, qb)), d if ds else '0')))
        G = Gaps(mf)
        ch = hc >> 1
        for g in range(16):
            nx = g + 4
            if nx < 16 or hc < 13:
                for r in (rd_wo(hc, nx) if nx < 16 else rd_wo(hc + 1, nx - 16)): G.put(4 * g + 3, r)
            if g == 12 and (hc & 1) and hc < 13:
                G.put(4 * g + 2, W(lg=('fWo', hc, g + 1, 1), vm=('Wo', ch + 1, 1, 3))); G.put(4 * g + 2, 's_barrier')
            elif g < 15: G.put(4 * g + 2, W(lg=('fWo', hc, g + 1, 1)))
            elif hc < 13: G.put(4 * g + 2, W(lg=('fWo', hc + 1, 0, 1)))
        if hc < 12:
            delta = 34816 if (ch + 1) % 4 else -3 * 34816
            pair = (0, 1) if hc % 2 == 0 else (2, 3)
            for nt in pair:
                G.place(('v_add_u32 v%d, %d, v%d' % (vOA + nt, delta, vOA + nt)) if delta > 0 else ('v_subrev_u32 v%d, %d, v%d' % (vOA + nt, -delta, vOA + nt)), 48)
        dm = []
        if hc == 0: dm = [dma_wo(3, 1, p, sT0) for p in range(4)]
        elif 2 <= hc <= 7: dm = [dma_wo(3 + hc // 2, hc & 1, p, sT0) for p in range(4)]
        put_dmas(G, dm, [1, 3, 5, 7][:len(dm)])
        if hc > 0:
            cur = 0
            for ins in epi_items(hc - 1):
                if ins.kind == 'vst': G.place(ins, cur + 1)
                else: cur = G.place(ins, cur)
        o += G.flat()
    o.append(I('s_nop 7'))
    o += epi_items(13)
    return o

def rare(par):
    o = []
    A = lambda s: o.append(I(s))
    A('RARE_%d:' % par)
    A('s_nop 7'); A('s_nop 7')
    A('v_mbcnt_lo_u32_b32 v252, -1, 0'); A('v_mbcnt_hi_u32_b32 v252, -1, v252')
    A('v_and_b32 v253, 15, v252'); A('v_lshlrev_b32 v253, 9, v253'); A('v_lshrrev_b32 v252, 4, v252'); A('v_lshl_add_u32 v252, v252, 4, v253')
    A('s_sub_u32 s%d, s%d, %d' % (sR0, sKO, 4 * 16384))
    for T in range(2):
        if T: A('s_add_u32 s%d, s%d, 8192' % (sR0, sR0))
        for ds in range(0, 8, 2):
            A('buffer_load_dwordx4 v[244:247], v252, %s, s%d offen offset:%d' % (sr(SK), sR0, ds * 64))
            A('buffer_load_dwordx4 v[248:251], v252, %s, s%d offen offset:%d' % (sr(SK), sR0, ds * 64 + 64))
            A('s_waitcnt vmcnt(0)')
            for d2 in range(2):
                for qb in range(4):
                    d = vr(S(par, qb, T))
                    A('%s %s, %s, %s, %s' % (MF, d, vr(244 + 4 * d2), vr(Q(ds + d2, qb)), d if ds + d2 else vr(NEGM(qb))))
            A('s_nop 7')
    A('s_nop 7')
    for qb in range(4):
        b = S(par, qb); y = S(par ^ 1, qb)
        A('v_max3_f32 v253, v%d, v%d, v%d' % (b, b + 1, b + 2)); A('v_max3_f32 v253, v253, v%d, v%d' % (b + 3, b + 4))
        A('v_max3_f32 v253, v253, v%d, v%d' % (b + 5, b + 6)); A('v_max_f32 v253, v253, v%d' % (b + 7))
        for sw in ('v_permlane32_swap_b32', 'v_permlane16_swap_b32'):
            A('v_mov_b32 v254, v253'); A('s_nop 1'); A('%s v253, v254' % sw); A('v_max_f32 v253, v253, v254')
        A('v_max_f32 v253, 0, v253')
        A('v_exp_f32 v255, -v253')
        for r in range(4): A('v_sub_f32 v%d, v%d, v253' % (NEGM(qb) + r, NEGM(qb) + r))
        for k in range(8): A('v_sub_f32 v%d, v%d, v253' % (y + k, y + k))
        for k in range(8): A('v_sub_f32 v%d, v%d, v253' % (b + k, b + k))
        for kind, k, ins in softmax_items(par, qb):
            o.append(ins)
            if kind == 'e': A('s_nop 0')
        A('v_mul_f32 v%d, v%d, v255' % (L0 + qb, L0 + qb))
        for db in range(0, 16, 2):
            regs = [O(db + d, qb) + r for d in range(2) for r in range(4)]
            for k, a in enumerate(regs): A('v_accvgpr_read_b32 v%d, a%d' % (244 + k, a))
            for k, a in enumerate(regs): A('v_mul_f32 v%d, v%d, v255' % (244 + k, 244 + k))
            for k, a in enumerate(regs): A('v_accvgpr_write_b32 a%d, v%d' % (a, 244 + k))
    A('s_nop 1')
    A('s_setpc_b64 %s' % sr(sRET, 2))
    return o

def dump_v(first, nfrag):
    o = []
    A = lambda s: o.append(I(s))
    A('s_nop 7'); A('s_nop 7'); A('s_waitcnt vmcnt(0) lgkmcnt(0)')
    A('s_lshl_b32 s34, s%d, 17' % sBH); A('s_add_u32 s28, s50, s34'); A('s_addc_u32 s29, s51, 0'); A('s_mov_b32 s30, 131072')
    for f in range(nfrag):
        A('s_mov_b32 s35, %d' % ((f // 4) * 16384 + (f % 4) * 1024))
        A('buffer_store_dwordx4 %s, v%d, %s, s35 offen' % (vr(first + 4 * f), vST, sr(SWS)))
    A('s_waitcnt vmcnt(0)'); A('s_endpgm')
    return o

def stamps_out():
    o = []
    if not OPT['stamps']: return o
    A = lambda s: o.append(I(s))
    A('s_waitcnt vmcnt(0)')
    A('s_memrealtime s[94:95]'); A('s_waitcnt lgkmcnt(0)')
    A('s_add_u32 s28, s50, 0x4000000'); A('s_addc_u32 s29, s51, 0'); A('s_mov_b32 s30, 0x100000')
    A('s_lshl_b32 s34, s2, 2'); A('s_add_u32 s34, s34, s3'); A('s_lshl_b32 s34, s34, 7')
    A('v_mov_b32 v1, 0')
    for k in range(32):
        A('v_mov_b32 v0, s%d' % (sST + k)); A('buffer_store_dword v0, v1, %s, s34 offen offset:%d' % (sr(SWS), 4 * k)); A('s_nop 1')
    return o

def main_kernel():
    pre = setup()
    if OPT['stamps']: pre = [I('s_memrealtime s[92:93]')] + pre
    stamp(pre)
    p1 = phase1()
    if OPT['stop'] == 'q':
        body = pre + p1 + dump_v(0, 32); loop = None; post = []
        stream = body
    else:
        stamp(p1)
        pro = prologue()
        stamp(pro)
        iters = [sum((step(4 * it + k) for k in range(4)), []) for it in range(7)]
        tail = []
        stamp(tail)
        for t in range(28, 32): tail += step(t)
        stamp(tail)
        tail += [I('s_nop 3')] + oconv()
        if OPT['stop'] == 'o': tail += dump_v(0, 32)
        else:
            stamp(tail)
            tail += phase3()
            stamp(tail)
            tail += stamps_out()
            tail += [I('s_waitcnt vmcnt(0)')]
        stream = pre + p1 + pro + sum(iters, []) + tail
    resolve_waits(stream)
    if OPT['stop'] != 'q': unify_iters(iters)
    finalize_waits(stream)
    errs = check_hazards(stream, 'main')
    out = []
    if OPT['stop'] == 'q': out = stream
    else: out = pre + p1 + pro + [I('L_LOOP:')] + iters[0] + tail
    out += [I('L_END:'), I('s_endpgm')]
    if OPT['stop'] != 'q':
        for lab, par in stubs:
            out += [I('%s:' % lab), I('s_call_b64 %s, RARE_%d' % (sr(sRET, 2), par)), I('s_branch %s_RET' % lab)]
        for par in (0, 1):
            r = rare(par); errs += check_hazards(r, 'rare'); out += r
    for e in errs[:40]: print('; ERROR', e, file=sys.stderr)
    if errs: raise SystemExit('hazard errors: %d' % len(errs))
    return out

def reduce_kernel():
    o = []
    A = lambda s: o.append(I(s))
    A('s_cmp_ge_u32 s2, 56'); A('s_cbranch_scc1 R_END')
    A('s_load_dwordx2 s[4:5], s[0:1], 40'); A('s_load_dwordx2 s[6:7], s[0:1], 56')
    A('s_lshl_b32 s16, s2, 12'); A('v_lshlrev_b32 v1, 4, v0'); A('v_add_u32 v1, s16, v1')
    A('s_mul_i32 s17, s3, 3670016'); A('s_mul_i32 s18, s3, 229376')
    A('s_waitcnt lgkmcnt(0)')
    A('s_add_u32 s8, s6, s17'); A('s_addc_u32 s9, s7, 0'); A('s_mov_b32 s10, 3670016'); A('s_mov_b32 s11, 0x20000')
    A('s_add_u32 s12, s4, s18'); A('s_addc_u32 s13, s5, 0'); A('s_mov_b32 s14, 229376'); A('s_mov_b32 s15, 0x20000')
    A('s_mov_b32 s19, 0')
    for h in range(16):
        A('buffer_load_dwordx4 %s, v1, s[8:11], s19 offen' % vr(16 + 4 * h))
        if h < 15: A('s_add_u32 s19, s19, 229376')
    A('s_and_b32 s16, s2, 3'); A('s_lshl_b32 s16, s16, 6'); A('s_lshr_b32 s17, s2, 2'); A('s_lshl_b32 s17, s17, 6')
    A('v_lshrrev_b32 v2, 6, v0'); A('v_lshlrev_b32 v2, 4, v2'); A('v_and_b32 v3, 15, v0'); A('v_add3_u32 v2, v2, v3, s16')
    A('s_movk_i32 s18, 896'); A('v_mul_lo_u32 v2, v2, s18'); A('v_bfe_u32 v3, v0, 4, 2'); A('v_lshl_add_u32 v2, v3, 3, v2'); A('v_add_u32 v2, s17, v2')
    A('s_mov_b32 s20, 0xffff0000')
    for h in range(16):
        A('s_waitcnt vmcnt(%d)' % (15 - h))
        for j in range(4):
            src = 16 + 4 * h + j
            if h == 0:
                A('v_lshlrev_b32 v%d, 16, v%d' % (4 + 2 * j, src)); A('v_and_b32 v%d, s20, v%d' % (5 + 2 * j, src))
            else:
                A('v_lshlrev_b32 v12, 16, v%d' % src); A('v_and_b32 v13, s20, v%d' % src)
                A('v_add_f32 v%d, v%d, v12' % (4 + 2 * j, 4 + 2 * j)); A('v_add_f32 v%d, v%d, v13' % (5 + 2 * j, 5 + 2 * j))
    for j in range(4): A('v_cvt_pk_bf16_f32 v%d, v%d, v%d' % (12 + j, 4 + 2 * j, 5 + 2 * j))
    A('buffer_store_dwordx2 v[12:13], v2, s[12:15], 0 offen'); A('buffer_store_dwordx2 v[14:15], v2, s[12:15], 0 offen offset:32')
    A('s_waitcnt vmcnt(0)')
    A('R_END:'); A('s_endpgm')
    errs = check_hazards(o, 'reduce')
    assert not errs, errs
    return o

def desc(name, vg, acc, y=False):
    return '''.amdhsa_kernel %s
  .amdhsa_next_free_vgpr %d
  .amdhsa_next_free_sgpr 102
  .amdhsa_accum_offset %d
  .amdhsa_group_segment_fixed_size 0
  .amdhsa_kernarg_size 64
  .amdhsa_user_sgpr_count 2
  .amdhsa_user_sgpr_kernarg_segment_ptr 1
  .amdhsa_system_sgpr_workgroup_id_x 1
%s.end_amdhsa_kernel''' % (name, vg, acc, '  .amdhsa_system_sgpr_workgroup_id_y 1\n' if y else '')

def fmt(ins):
    if ins.kind == 'dma' and ins.tag and OPT['nodma'] & {'X': 1, 'Wq': 2, 'K': 4, 'V': 4, 'Wo': 8}[ins.tag[0]]: return '    s_nop 0'
    if ins.kind == 'vst' and ins.tag and OPT['nost']: return '    s_nop 0'
    return ins.text if ins.kind == 'label' else '    ' + ins.text

if __name__ == '__main__':
    K1 = OPT['name'] + '_kernel'; K2 = 'mha_reduce_kernel'
    hdr = open('standalone__mha_block_cached__near_ridge.s.ref').read().split('; Override launch')[0]
    t = hdr
    t += '; @launch kernel=%s grid=(256,1,1) block=(256,1,1) lds=163840\n' % K1
    t += '; @launch kernel=%s grid=(56,16,1) block=(256,1,1) lds=0\n' % K2
    t += '.amdgcn_target "amdgcn-amd-amdhsa--gfx950"\n.text\n'
    for K, body in ((K1, main_kernel()), (K2, reduce_kernel())):
        t += '.globl %s\n.p2align 8\n.type %s,@function\n%s:\n' % (K, K, K)
        t += '\n'.join(fmt(i) for i in body) + '\n'
    t += '.section .rodata,"a"\n.p2align 6\n' + desc(K1, 512, 256) + '\n.p2align 6\n' + desc(K2, 80, 80, True) + '\n'
    sys.stdout.write(t)
```

```python
import sys, os
sys.path.insert(0, os.path.dirname(os.path.abspath(__file__)))
from asmlib import *

OPT = dict(ppos=12, prel=0, rlpol='sc1', kill=0, fuse=1, lag=3, ptouch=7, forceslow=0, map=1, ring=4, stpol='', wpol='', rot=0, kvpol='nt', nodma=0, nost=0, wq8=1, stop='', stamps=0, thr=0x47800000, name='standalone__mha_block_cached__near_ridge')
for a in sys.argv[1:]:
    k, v = a.split('=')
    OPT[k] = v if k in ('stop', 'name', 'kvpol', 'stpol', 'wpol', 'rlpol') else int(v, 0)

SLOT = 17408
MF = 'v_mfma_f32_16x16x32_bf16'
def vr(b, n=4): return 'v[%d:%d]' % (b, b + n - 1) if n > 1 else 'v%d' % b
def ar(b, n=4): return 'a[%d:%d]' % (b, b + n - 1) if n > 1 else 'a%d' % b
def sr(b, n=4): return 's[%d:%d]' % (b, b + n - 1)

SK, SV, SWQ, SX, SWO, SWS = 8, 12, 16, 20, 24, 28
sWL, sWL8, sT0, sT1 = 32, 33, 34, 35
sKO, sLC, sTHR, sSC, sRET, sR0, sVO = 52, 53, 54, 56, 58, 61, 62
sBH = 63
sST = 64
def Q(ds, qb): return 4 * (ds * 4 + qb)
def S(buf, qb, T=0): return 128 + 32 * buf + 8 * qb + 4 * T
def NEGM(qb): return 192 + 4 * qb
def RING(n): return 208 + 4 * (n % 4)
L0, LT0 = 224, 228
vKA, vVAe, vVAo, vDK, vDV, vDWo, vOA, vST, vTM = 232, 233, 234, 236, 237, 235, 238, 242, 243
vSEL, vRL, vFL, vPL, vOUT, vRD, vCV, vPR, vFV, vCAS = 244, 248, 252, 253, 254, 228, 232, 234, 237, 236
sPO, sCO, sREG, sFULL, sFLO, sPLO, sRLO, sOUO = 55, 60, 5, 7, 98, 99, 100, 101
sFCO, sPCO = 33, 63
vB, vPL2 = 243, 255
SDBG, SOUT = 20, 16
BSTRIDE, FLOFF = 3670528, 3670016
def RING8(n): return 192 + 4 * ((n + 4) % 8)
vWA0, vWA1, vWA80, vWA81, vXA, vDWq, vDX = 244, 245, 246, 247, 248, 249, 250
def O(db, qb): return 4 * (db * 4 + qb)
def ACC(ds, qb, T):
    if ds < 7: return vr(8 * (ds * 4 + qb) + 4 * T)
    return ar(8 * qb + 4 * T)
def XF(par, qb): return 32 + 16 * par + 4 * qb
def ARING(n): return 64 + 4 * (n % 4)

nstamp = [0]
def stamp(out):
    if not OPT['stamps']: return
    k = nstamp[0]; nstamp[0] += 1
    out.append(I('s_waitcnt lgkmcnt(0)'))
    out.append(I('s_memtime %s' % sr(sST + 2 * k, 2)))
    out.append(I('s_waitcnt lgkmcnt(0)'))

def dma_kv(which, tile, slot, p, soff):
    srd, vo = (SK, vDK) if which == 'K' else (SV, vDV)
    pre = [I('s_add_u32 m0, s%d, %d' % (sWL, slot * SLOT + p * 64))]
    d = I('buffer_load_dwordx4 v%d, %s, s%d offen offset:%d %s lds' % (vo, sr(srd), soff, p * 1024, OPT['kvpol'].replace('+', ' ')), tag=(which, tile, p))
    return pre, d
def dma_wq(tile, p, st):
    slot = 4 + (tile + 1) % 5
    pre = [I('s_add_u32 m0, s%d, %d' % (sWL8, slot * SLOT + p * 1088)), I('s_mov_b32 s%d, %d' % (st, tile * 32 * 8192 + p * 16384))]
    d = I('buffer_load_dwordx4 v%d, %s, s%d offen %s lds' % (vDWq, sr(SWQ), st, OPT['wpol']), tag=('Wq', tile, p))
    return pre, d
def dma_x(tile, p, st):
    slot = (tile + 2) % 4
    pre = [I('s_add_u32 m0, s%d, %d' % (sWL, slot * SLOT + p * 1088)), I('s_mov_b32 s%d, %d' % (st, p * 14336 + tile * 64))]
    d = I('buffer_load_dwordx4 v%d, %s, s%d offen lds' % (vDX, sr(SX), st), tag=('X', tile, p))
    return pre, d
def dma_wo(chunk, half, p, st):
    slot = 2 * (chunk % 4) + half
    pre = [I('s_add_u32 m0, s%d, %d' % (sWL, slot * SLOT + p * 1088)), I('s_mov_b32 s%d, %d' % (st, half * 128 * 896 + p * 7168 + chunk * 128))]
    d = I('buffer_load_dwordx4 v%d, %s, s%d offen %s lds' % (vDWo, sr(SWO), st, OPT['wpol']), tag=('Wo', chunk, half, p))
    return pre, d
def dma_kv_imm(which, tile, p, st):
    slot = tile % 4 + (0 if which == 'K' else 4)
    so = sKO if which == 'K' else sVO
    pre, d = dma_kv(which, tile, slot, p, so)
    if p == 0 and tile > 0: pre += adv(so)
    return pre, d
def adv(so):
    return [I('s_add_u32 s%d, s%d, 16384' % (so, so)), I('s_and_b32 s%d, s%d, 0x7ffff' % (so, so))]

def rd_wq(tile, n):
    ds, T = n >> 1, n & 1
    slot = 4 + (tile + 1) % 5
    if slot == 8: a = (vWA80, vWA81)[(ds >> 1) & 1]; base = 0
    else: a = (vWA0, vWA1)[(ds >> 1) & 1]; base = (slot - 4) * SLOT
    r = ARING(n)
    return [I('ds_read_b64_tr_b16 %s, v%d offset:%d' % (ar(r + 2 * rho, 2), a, base + rho * 2176 + ds * 64 + T * 8), tag=('fWq', tile, n, rho)) for rho in (0, 1)]
def rd_x(tile, qb):
    slot = (tile + 2) % 4
    return I('ds_read_b128 %s, v%d offset:%d' % (ar(XF(tile & 1, qb)), vXA, slot * SLOT + qb * 1088), tag=('fX', tile, qb))
def rd_k(t, n):
    T, ds = n >> 3, n & 7
    return [I('ds_read_b128 %s, v%d offset:%d' % (vr(RING(n)), vKA, (t % 4) * SLOT + T * 8704 + ds * 64), tag=('fK', t, n, 1))]
def rd_v(t, db):
    a = vVAo if db & 1 else vVAe
    r = RING(db)
    return [I('ds_read_b64_tr_b16 %s, v%d offset:%d' % (vr(r + 2 * rho, 2), a, (t % 4) * SLOT + rho * 8704 + db * 32), tag=('fV', t, db, rho)) for rho in (0, 1)]
def rd_wo(hc, n):
    ds, T = n >> 1, n & 1
    nt = 2 * (hc & 1) + T
    r = RING(n)
    return [I('ds_read_b64_tr_b16 %s, v%d offset:%d' % (vr(r + 2 * rho, 2), vOA + nt, (4 * ds + 2 * rho) * 1088), tag=('fWo', hc, n, rho)) for rho in (0, 1)]

def put_dmas(G, dmas, groups):
    prev = 0
    for (pre, d), g in zip(dmas, groups):
        gp = 4 * g + 1
        G.put(gp, d)
    for (pre, d), g in zip(dmas, groups):
        gp = 4 * g + 1
        hi = gp - 1; got = []
        for ins in reversed(pre):
            for cand in range(hi, prev - 1, -1):
                if G.used[cand] + ins.cost <= G.cap:
                    G.used[cand] += ins.cost; got.append((cand, ins)); hi = cand; break
            else: raise AssertionError(('no room for dma setup', gp))
        for cand, ins in reversed(got): G.g[cand].append(ins)
        prev = gp + 1

def setup():
    o = []
    A = lambda s: o.append(I(s))
    A('s_cmp_ge_u32 s2, 256'); A('s_cbranch_scc1 L_END')
    A('s_load_dwordx16 s[36:51], s[0:1], 0')
    A('v_lshrrev_b32 v1, 6, v0'); A('v_and_b32 v0, 63, v0')
    A('v_readfirstlane_b32 s3, v1')
    A('s_and_b32 s4, s2, 7'); A('s_lshr_b32 s5, s2, 3')
    if OPT['map'] == 0:
        A('s_and_b32 s6, s4, 3'); A('s_lshl_b32 s6, s6, 2'); A('s_and_b32 s7, s5, 3'); A('s_add_u32 s6, s6, s7')
        A('s_lshr_b32 s4, s4, 2'); A('s_lshl_b32 s4, s4, 3'); A('s_lshr_b32 s5, s5, 2'); A('s_add_u32 s4, s4, s5')
    else:
        A('s_lshr_b32 s6, s5, 1'); A('s_and_b32 s5, s5, 1'); A('s_lshl_b32 s4, s4, 1'); A('s_add_u32 s4, s4, s5')
    A('s_lshl_b32 s5, s4, 4'); A('s_add_u32 s%d, s5, s6' % sBH)
    A('s_mul_i32 s%d, s3, 4352' % sWL)
    A('s_and_b32 s7, s3, 1')
    if OPT['wq8']: A('s_lshl_b32 s7, s7, 3'); A('s_add_u32 s%d, s%d, s7' % (sWL8, sWL)); A('s_lshr_b32 s7, s7, 3')
    else: A('s_mov_b32 s%d, s%d' % (sWL8, sWL))
    A('v_and_b32 v1, 15, v0'); A('v_lshrrev_b32 v2, 4, v0'); A('v_bfe_u32 v3, v0, 2, 2'); A('v_and_b32 v4, 3, v0')
    A('v_lshrrev_b32 v5, 5, v0'); A('v_and_b32 v6, 31, v0')
    A('s_lshl_b32 s34, s3, 6'); A('v_lshrrev_b32 v7, 2, v0'); A('v_add_u32 v7, s34, v7'); A('s_movk_i32 s35, 896')
    A('v_mul_lo_u32 v7, v7, s35'); A('v_lshlrev_b32 v8, 1, v5'); A('v_xor_b32 v8, v8, v4'); A('v_lshl_add_u32 v%d, v8, 4, v7' % vDX)
    A('s_lshl_b32 s34, s3, 3'); A('v_add_u32 v7, s34, v5'); A('v_lshlrev_b32 v7, 13, v7'); A('v_lshlrev_b32 v8, 3, v5')
    A('v_xor_b32 v8, v8, v6'); A('v_lshl_add_u32 v%d, v8, 4, v7' % vDWq)
    A('s_waitcnt lgkmcnt(0)')
    def srd(d, p, off, size):
        A('s_add_u32 s%d, s%d, %s' % (d, p, off)); A('s_addc_u32 s%d, s%d, 0' % (d + 1, p + 1))
        A('s_mov_b32 s%d, %s' % (d + 2, size)); A('s_mov_b32 s%d, 0x20000' % (d + 3))
    A('s_mul_i32 s34, s4, 229376'); srd(SX, 36, 's34', '229376')
    A('s_lshl_b32 s34, s6, 9'); A('s_sub_u32 s35, 3670016, s34'); srd(SWQ, 42, 's34', 's35')
    return o

def setup2():
    o = []
    A = lambda s: o.append(I(s))
    def srd(d, p, off, size):
        A('s_add_u32 s%d, s%d, %s' % (d, p, off)); A('s_addc_u32 s%d, s%d, 0' % (d + 1, p + 1))
        A('s_mov_b32 s%d, %s' % (d + 2, size)); A('s_mov_b32 s%d, 0x20000' % (d + 3))
    A('s_lshl_b32 s34, s%d, 19' % sBH); srd(SK, 38, 's34', '524288'); srd(SV, 40, 's34', '524288')
    A('s_mul_i32 s34, s6, 229376'); srd(SWO, 44, 's34', '229376')
    A('s_mul_i32 s34, s4, %d' % BSTRIDE); srd(SWS, 50, 's34', str(BSTRIDE))
    A('s_mov_b32 s%d, 0x%x' % (sTHR, OPT['thr']))
    A('s_mov_b32 s%d, 0x3db8aa3b' % sSC); A('s_mov_b32 s%d, 0x3db8aa3b' % (sSC + 1))
    if OPT['rot'] == 0: A('s_mov_b32 s%d, 0' % sKO)
    elif OPT['rot'] == 1: A('s_and_b32 s%d, s%d, 31' % (sKO, sBH))
    elif OPT['rot'] == 2: A('s_lshr_b32 s%d, s2, 3' % sKO)
    elif OPT['rot'] == 3: A('s_mul_i32 s%d, s2, 11' % sKO); A('s_lshr_b32 s34, s2, 5'); A('s_add_u32 s%d, s%d, s34' % (sKO, sKO)); A('s_and_b32 s%d, s%d, 31' % (sKO, sKO))
    elif OPT['rot'] == 4: A('s_and_b32 s%d, s2, 7' % sKO); A('s_lshl_b32 s%d, s%d, 2' % (sKO, sKO))
    A('s_lshl_b32 s%d, s%d, 14' % (sKO, sKO)); A('s_mov_b32 s%d, s%d' % (sVO, sKO)); A('s_mov_b32 s%d, 0' % sLC)
    A('s_movk_i32 s35, 1088')
    A('v_lshrrev_b32 v7, 3, v1'); A('v_lshlrev_b32 v8, 1, v7'); A('v_xor_b32 v8, v8, v2'); A('v_lshlrev_b32 v8, 4, v8')
    A('v_lshl_add_u32 v8, v1, 6, v8'); A('v_add_u32 v%d, s%d, v8' % (vXA, sWL))
    A('v_lshrrev_b32 v9, 1, v3'); A('v_and_b32 v10, 1, v3')
    A('v_lshl_add_u32 v8, v2, 2, v9'); A('v_mul_lo_u32 v8, v8, s35'); A('v_lshl_add_u32 v8, v4, 4, v8')
    if OPT['wq8']: A('v_and_b32 v11, 1, v2'); A('v_lshl_add_u32 v8, v11, 3, v8')
    A('v_add_u32 v8, %d, v8' % (4 * SLOT))
    A('v_mul_u32_u24 v11, 640, v10'); A('v_add_u32 v%d, v8, v11' % vWA0)
    A('v_mul_u32_u24 v11, 384, v10'); A('v_add_u32 v%d, v8, v11' % vWA1)
    A('v_add_u32 v%d, %d, v%d' % (vWA80, 4 * SLOT, vWA0)); A('v_add_u32 v%d, %d, v%d' % (vWA81, 4 * SLOT, vWA1))
    A('v_lshrrev_b32 v8, 1, v1'); A('v_mul_lo_u32 v8, v8, s35'); A('v_and_b32 v11, 1, v1'); A('v_lshl_add_u32 v8, v11, 9, v8')
    A('v_lshl_or_b32 v11, v7, 1, v11'); A('v_xor_b32 v11, v11, v2'); A('v_lshl_add_u32 v%d, v11, 4, v8' % vKA)
    A('v_lshl_add_u32 v8, v2, 1, v9'); A('v_mul_lo_u32 v8, v8, s35'); A('v_lshl_add_u32 v8, v4, 3, v8'); A('v_add_u32 v8, %d, v8' % (4 * SLOT))
    A('v_mul_u32_u24 v11, 544, v10'); A('v_add_u32 v%d, v8, v11' % vVAe)
    A('v_mul_u32_u24 v11, 480, v10'); A('v_add_u32 v%d, v8, v11' % vVAo)
    A('s_lshl_b32 s34, s3, 12'); A('v_lshlrev_b32 v8, 9, v5'); A('v_add_u32 v8, s34, v8')
    A('s_lshl_b32 s5, s7, 1'); A('v_or_b32 v11, s5, v5'); A('v_xor_b32 v11, v11, v6'); A('v_lshl_add_u32 v%d, v11, 4, v8' % vDK)
    A('v_lshlrev_b32 v11, 1, v5'); A('v_xor_b32 v11, v11, v6'); A('v_lshl_add_u32 v%d, v11, 4, v8' % vDV)
    A('v_lshlrev_b32 v8, 8, v3'); A('v_lshl_add_u32 v8, v2, 6, v8'); A('v_lshl_add_u32 v8, v4, 4, v8'); A('v_add_u32 v%d, s34, v8' % vST)
    A('s_lshl_b32 s34, s3, 5'); A('v_lshrrev_b32 v8, 3, v0'); A('v_add_u32 v8, s34, v8'); A('s_movk_i32 s5, 896'); A('v_mul_lo_u32 v8, v8, s5')
    A('v_and_b32 v11, 7, v0'); A('v_lshlrev_b32 v12, 1, v2'); A('v_xor_b32 v11, v11, v12'); A('v_lshl_add_u32 v%d, v11, 4, v8' % vDWo)
    A('v_lshrrev_b32 v8, 1, v2'); A('v_mul_lo_u32 v8, v8, s35'); A('v_and_b32 v11, 1, v2'); A('v_lshl_add_u32 v11, v11, 2, v3')
    A('v_lshl_add_u32 v8, v11, 7, v8'); A('v_lshl_add_u32 v8, v4, 3, v8'); A('v_lshrrev_b32 v11, 1, v11')
    for nt in range(4):
        A('v_xor_b32 v12, %d, v11' % nt); A('v_lshl_add_u32 v%d, v12, 5, v8' % (vOA + nt))
    for qb in range(4): A('v_mov_b32 v%d, 0' % (L0 + qb))
    A('s_mul_i32 s%d, s6, 229376' % sPO)
    A('s_lshl_b32 s34, s3, 7'); A('s_lshl_b32 s35, s6, 2'); A('s_add_u32 s34, s34, s35'); A('s_add_u32 s%d, s34, %d' % (sFLO, FLOFF))
    A('s_lshr_b32 s34, s6, 2'); A('s_lshl_b32 s34, s34, 7'); A('s_add_u32 s%d, s34, %d' % (sPLO, FLOFF))
    A('s_lshl_b32 s34, s6, 10'); A('s_lshl_b32 s35, s3, 8'); A('s_add_u32 s%d, s34, s35' % sRLO)
    A('s_mul_i32 s34, s6, 14336'); A('s_mul_i32 s35, s3, 3584'); A('s_add_u32 s%d, s34, s35' % sOUO)
    A('s_lshl_b32 s%d, s4, 4' % sCO)
    A('s_getreg_b32 s34, hwreg(HW_REG_XCC_ID, 0, 4)')
    if OPT['forceslow'] == 1: A('s_and_b32 s34, s6, 1')
    A('s_or_b32 s%d, s34, 0x80' % sREG); A('s_mul_i32 s%d, s%d, 0x01010101' % (sFULL, sREG))
    A('s_and_b32 s34, s6, 3'); A('s_lshl_b32 s34, s34, 2'); A('s_add_u32 s34, s34, s3'); A('s_lshl_b32 s34, s34, 2'); A('s_add_u32 s34, s34, s%d' % sPLO); A('s_add_u32 s34, s34, 64')
    A('v_lshl_add_u32 v8, v0, 9, s%d' % sFLO); A('v_writelane_b32 v8, s34, 1')
    A('v_mul_u32_u24 v9, %d, v0' % (OPT['ring'] - OPT['lag'] + 1))
    o.append(I('buffer_store_dword v9, v8, %s, 0 offen' % sr(SWS), tag=('Fz',)))
    return o

def phase1():
    o = []
    k = 0
    for t in range(4):
        for f in (dma_x, dma_wq):
            for p in range(4):
                pre, d = f(t, p, sT0 + (k & 1)); k += 1
                o += pre; o.append(d)
    o += setup2()
    o.append(W(vm=('Wq', 0, 3))); o.append(I('s_barrier'))
    for qb in range(4): o.append(rd_x(0, qb))
    for n in range(4): o += rd_wq(0, n)
    o.append(W(lg=('fWq', 0, 0, 1)))
    stamp(o)
    zero = ['v_accvgpr_write_b32 a%d, 0' % i for i in range(80, 256)]
    for i in range(14):
        mf = []
        for n in range(16):
            ds, T = n >> 1, n & 1
            for qb in range(4):
                d = ACC(ds, qb, T)
                mf.append(I('%s %s, %s, %s, %s' % (MF, d, ar(ARING(n)), ar(XF(i & 1, qb)), '0' if i == 0 else d)))
        G = Gaps(mf)
        for g in range(16):
            nx = g + 4
            if nx < 16:
                for r in rd_wq(i, nx): G.put(4 * g + 3, r)
            elif i < 13:
                for r in rd_wq(i + 1, nx - 16): G.put(4 * g + 3, r)
            if g < 15:
                if g == 12 and i < 13:
                    G.put(4 * g + 2, W(lg=('fWq', i, g + 1, 1), vm=[('Wq', i + 1, 3), ('X', i + 1, 3)])); G.put(4 * g + 2, 's_barrier')
                else: G.put(4 * g + 2, W(lg=('fWq', i, g + 1, 1)))
            elif i < 13: G.put(4 * g + 2, W(lg=('fX', i + 1, 3)))
        if i < 13:
            for qb in range(4): G.put(52 + qb // 2, rd_x(i + 1, qb))
        dm = []
        if i <= 9:
            dm = [dma_x(i + 4, p, sT0) for p in range(4)] + [dma_wq(i + 4, p, sT0) for p in range(4)]
        else:
            dm = [dma_kv_imm('K', i - 10, p, sT0) for p in range(4)]
            if i < 13: dm += [dma_kv_imm('V', i - 10, p, sT0) for p in range(4)]
        put_dmas(G, dm, [1, 2, 4, 5, 7, 8, 10, 11][:len(dm)])
        if i == 12:
            G.chain(['s_mov_b32 s%d, s48' % SDBG, 's_mov_b32 s%d, s49' % (SDBG + 1), 's_movk_i32 s%d, 256' % (SDBG + 2),
                     's_mul_i32 s%d, s4, 229376' % sT1, 's_add_u32 s%d, s46, s%d' % (SOUT, sT1), 's_addc_u32 s%d, s47, 0' % (SOUT + 1), 's_mov_b32 s%d, 229376' % (SOUT + 2)], 48)
        if i == 13:
            G.chain(['s_and_b32 s%d, s6, 3' % sFCO, 's_lshl_b32 s%d, s%d, 2' % (sFCO, sFCO), 's_add_u32 s%d, s%d, s3' % (sFCO, sFCO), 's_lshl_b32 s%d, s%d, 2' % (sFCO, sFCO),
                     's_add_u32 s%d, s%d, s%d' % (sFCO, sFCO, sPLO), 's_add_u32 s%d, s%d, 64' % (sFCO, sFCO),
                     's_lshl_b32 s%d, s3, 7' % sPCO, 's_add_u32 s%d, s%d, %d' % (sPCO, sPCO, FLOFF + 64), 's_sub_u32 s%d, s%d, s%d' % (sPCO, sPCO, sPLO)], 30)
        gp = 0
        while zero and gp < 64:
            z = I(zero[0])
            if G.fits(gp, z): G.put(gp, z); zero.pop(0)
            else: gp += 1
        o += G.flat()
    assert not zero
    stamp(o)
    o.append(I('s_nop 3'))
    def conv(src, dst):
        r = []
        for k in range(4): r.append(I('v_pk_mul_f32 %s, %s, %s' % (vr(src + 2 * k, 2), vr(src + 2 * k, 2), sr(sSC, 2))))
        for k in range(4): r.append(I('v_cvt_pk_bf16_f32 v%d, v%d, v%d' % (dst + k, src + 2 * k, src + 2 * k + 1)))
        return r
    for f in range(28): o += conv(8 * f, 4 * f)
    o.append(W(vm=('K', 0, 3))); o.append(I('s_barrier'))
    for n in range(4): o += rd_k(0, n)
    for k in range(32): o.append(I('v_accvgpr_read_b32 v%d, a%d' % (128 + k, k)))
    for qb in range(4): o += conv(128 + 8 * qb, Q(7, qb))
    o.append(W(lg=('fK', 0, 0, 1)))
    return o

def softmax_items(buf, qb):
    b = S(buf, qb); lt = LT0 + qb
    it = []
    for k in range(8):
        it.append(('e', k, I('v_exp_f32 v%d, v%d' % (b + k, b + k))))
        if k == 1: it.append(('v', k, I('v_add_f32 v%d, v%d, v%d' % (lt, b, b + 1))))
        elif k > 1: it.append(('v', k, I('v_add_f32 v%d, v%d, v%d' % (lt, lt, b + k))))
        if k & 1: it.append(('v', k, I('v_cvt_pk_bf16_f32 v%d, v%d, v%d' % (b + k // 2, b + k - 1, b + k))))
    return it

def place_softmax(G, buf, qbs, expgaps):
    eg = list(expgaps); pend = []
    for qb in qbs:
        for kind, k, ins in softmax_items(buf, qb):
            if kind == 'e':
                gp = eg.pop(0); G.put(gp, ins); last = gp
            else: pend.append((ins, last + 1))
    return pend

def place_chain(G, pend):
    cur = 0
    for ins, lo in pend: cur = G.place(ins, max(cur, lo))
    return cur

stubs = []
def check_items(t):
    lab = 'RS_%d' % (t % 4 if t < 28 else t)
    if lab not in [s[0] for s in stubs]: stubs.append((lab, t & 1))
    return [I('v_max_f32 v%d, v%d, v%d' % (vTM, vTM, LT0 + 3)), I('v_cmp_lt_f32 vcc, s%d, v%d' % (sTHR, vTM)),
            I('s_cbranch_vccnz %s' % lab), I('%s_RET:' % lab)]

def qk_mfmas(t1, first):
    mf = []
    for n in range(16):
        T, ds = n >> 3, n & 7
        for qb in range(4):
            d = vr(S(t1 & 1, qb, T))
            c = d if ds else ('0' if first else vr(NEGM(qb)))
            mf.append(I('%s %s, %s, %s, %s' % (MF, d, vr(RING(n)), vr(Q(ds, qb)), c)))
    return mf
def pv_mfmas(t):
    mf = []
    for db in range(16):
        for qb in range(4):
            d = ar(O(db, qb))
            mf.append(I('%s %s, %s, %s, %s' % (MF, d, vr(RING(db)), vr(S(t & 1, qb)), d)))
    return mf

def prologue():
    o = []
    G = Gaps(qk_mfmas(0, True))
    for g in range(16):
        nx = g + 4
        for r in (rd_k(0, nx) if nx < 16 else rd_k(1, nx - 16)): G.put(4 * g + 3, r)
        if g == 12:
            G.put(4 * g + 2, W(lg=('fK', 0, g + 1, 1), vm=[('K', 1, 3), ('V', 0, 3)])); G.put(4 * g + 2, 's_barrier')
        elif g < 15: G.put(4 * g + 2, W(lg=('fK', 0, g + 1, 1)))
        else: G.put(4 * g + 2, W(lg=('fK', 1, 0, 1)))
    G.chain(adv(sKO) + adv(sVO))
    G.chain(['v_accvgpr_write_b32 a%d, 0' % i for i in range(80)])
    if OPT['prel']: o.insert(0, I('buffer_load_dword v254, off, %s, s%d sc1' % (sr(SDBG), sCO), tag=('Prel',)))
    o += G.flat()
    A = lambda s: o.append(I(s))
    if OPT['prel'] == 2: o.append(W(vm=('Prel',)))
    A('v_mbcnt_lo_u32_b32 v252, -1, 0'); A('v_mov_b32 v253, s%d' % sREG)
    A('v_or_b32 v252, s3, v252'); A('v_lshl_add_u32 v252, v252, 8, s6')
    if OPT['forceslow'] == 2:
        A('s_and_b32 s%d, s4, 1' % sT0); A('s_lshl_b32 s%d, s%d, 8' % (sT0, sT0)); A('s_cmp_eq_u32 s6, 0'); A('s_cselect_b32 s%d, s%d, 0' % (sT0, sT0)); A('v_add_u32 v252, s%d, v252' % sT0)
    o.append(I('buffer_store_byte v253, v252, %s, s%d offen' % (sr(SDBG), sCO), tag=('Reg',)))
    A('s_nop 1')
    tm = [244, 245, 246, 247]; tc = [248, 249, 250, 251]
    for st in range(4):
        for qb in range(4):
            b = S(0, qb)
            if st == 0: A('v_max3_f32 v%d, v%d, v%d, v%d' % (tm[qb], b, b + 1, b + 2))
            elif st < 3: A('v_max3_f32 v%d, v%d, v%d, v%d' % (tm[qb], tm[qb], b + 2 * st + 1, b + 2 * st + 2))
            else: A('v_max_f32 v%d, v%d, v%d' % (tm[qb], tm[qb], b + 7))
    for sw in ('v_permlane32_swap_b32', 'v_permlane16_swap_b32'):
        for qb in range(4): A('v_mov_b32 v%d, v%d' % (tc[qb], tm[qb]))
        for qb in range(4): A('%s v%d, v%d' % (sw, tm[qb], tc[qb]))
        for qb in range(4): A('v_max_f32 v%d, v%d, v%d' % (tm[qb], tm[qb], tc[qb]))
    for qb in range(4):
        for r in range(4): A('v_sub_f32 v%d, 0, v%d' % (NEGM(qb) + r, tm[qb]))
    for qb in range(4):
        for k in range(8): A('v_sub_f32 v%d, v%d, v%d' % (S(0, qb) + k, S(0, qb) + k, tm[qb]))
    i0 = softmax_items(0, 0); i1 = softmax_items(0, 1)
    for x, y in zip(i0, i1): o.append(x[2]); o.append(y[2])
    return o

def step(t):
    o = []
    cur = t & 1
    max3 = I('v_max3_f32 v%d, v%d, v%d, v%d' % (vTM, LT0, LT0 + 1, LT0 + 2))
    ladd = [I('v_add_f32 v%d, v%d, v%d' % (L0 + q, L0 + q, LT0 + q)) for q in range(4)]
    if t < 28: dK = [dma_kv('K', t + 4, t % 4, p, sKO) for p in range(4)]
    else: dK = [dma_wo((t - 28) // 2, (t - 28) % 2, p, sT0) for p in range(4)]
    if t < 29: dV = [dma_kv('V', t + 3, 4 + (t + 3) % 4, p, sVO) for p in range(4)]
    else: dV = [dma_wo(2 + (t - 29) // 2, (t - 29) % 2, p, sT0) for p in range(4)]
    if t < 31:
        G = Gaps(qk_mfmas(t + 1, False))
        for g in range(16):
            nx = g + 4
            for r in (rd_k(t + 1, nx) if nx < 16 else rd_v(t, nx - 16)): G.put(4 * g + 3, r)
            G.put(4 * g + 2, W(lg=('fK', t + 1, g + 1, 1) if g < 15 else ('fV', t, 0, 1)))
        eg = [0, 4, 5, 8, 12, 13] + [4 * g for g in range(4, 14)]
        pend = place_softmax(G, cur, (2, 3), eg)
        put_dmas(G, dK, [5, 7, 9, 11])
        if t == 28:
            cz = G.chain(['v_mbcnt_lo_u32_b32 v%d, -1, 0' % vTM, 'v_and_b32 v%d, 3, v%d' % (vTM, vTM), 'v_lshlrev_b32 v%d, 2, v%d' % (vTM, vTM)], 1, 20)
            softplace(G, I('buffer_load_dword v%d, v%d, %s, s%d offen sc1' % (vCAS, vTM, sr(SDBG), sCO), tag=('Chk',)), cz + 1, 20)
        idx = [k for k, (ins, lo) in enumerate(pend) if ins.mn == 'v_add_f32' and ins.ops[0] == 'v%d' % (LT0 + 2)][-1]
        pend.insert(idx + 1, (max3, pend[idx][1]))
        cg = place_chain(G, pend)
        ck = check_items(t)
        cg = G.place(ck[0], cg); cg = G.place(ck[1], cg); cg = G.place(ck[2], cg + 1); G.put(cg, ck[3])
        assert cg >= 36
        G.chain(ladd, cg)
        o += G.flat()
    else:
        for pre, d in dK: o += pre; o.append(I('s_nop 0')); o.append(d)
        i0 = softmax_items(cur, 2); i1 = softmax_items(cur, 3)
        for x, y in zip(i0, i1): o.append(x[2]); o.append(y[2])
        o.append(max3); o += check_items(t); o += ladd
    G = Gaps(pv_mfmas(t))
    if t < 30: nxt_rd = lambda n: rd_k(t + 2, n); nxt_tag = ('fK', t + 2, 0, 1); vmw = [('K', t + 2, 3), ('V', t + 1, 3)] + ([('Chk',)] if t == 29 else [])
    elif t == 30: nxt_rd = lambda n: rd_v(31, n); nxt_tag = ('fV', 31, 0, 1); vmw = [('V', 31, 3)]
    else: nxt_rd = lambda n: rd_wo(0, n); nxt_tag = ('fWo', 0, 0, 1); vmw = [('Wo', 0, 1, 3)]
    for g in range(16):
        nx = g + 4
        for r in (rd_v(t, nx) if nx < 16 else nxt_rd(nx - 16)): G.put(4 * g + 3, r)
        if g == 12:
            G.put(4 * g + 2, W(lg=('fV', t, g + 1, 1), vm=vmw)); G.put(4 * g + 2, 's_barrier')
        else: G.put(4 * g + 2, W(lg=('fV', t, g + 1, 1) if g < 15 else nxt_tag))
    pend = []
    if t < 31: pend = place_softmax(G, cur ^ 1, (0, 1), [4 * g for g in range(16)])
    put_dmas(G, dV, [1, 3, 5, 7])
    place_chain(G, pend)
    if t < 31:
        G.chain(adv(sKO), 34)
        if t < 28: G.chain(adv(sVO), 34)
    if t == 30 and OPT['ptouch']:
        sh = OPT['ptouch']; R = OPT['ring']
        cz = 32
        for c in ['v_mbcnt_lo_u32_b32 v%d, -1, 0' % vTM, 's_mul_i32 s%d, s3, %d' % (sVO, R * 4096), 'v_mbcnt_hi_u32_b32 v%d, -1, v%d' % (vTM, vTM),
                  's_add_u32 s%d, s%d, s%d' % (sVO, sVO, sPO), 'v_lshlrev_b32 v%d, %d, v%d' % (vTM, sh, vTM)]: cz = softplace(G, c, cz, cz + 3)
        n = -(-R * 4096 // (64 << sh))
        for k in range(n):
            cz = softplace(G, I('buffer_load_dword v%d, v%d, %s, s%d offen' % (vFV, vTM, sr(SWS), sVO), tag=('PT', k)), cz + 1, min(63, cz + 4))
            if k < n - 1: cz = softplace(G, 's_add_u32 s%d, s%d, %d' % (sVO, sVO, 64 << sh), cz + 1, cz + 4) + 4
    if t == 29:
        ch = ['v_cmp_ne_u32 vcc, s%d, v%d' % (sFULL, vCAS), 'v_mbcnt_lo_u32_b32 v%d, -1, 0' % vTM, 's_or_b32 s%d, s6, s3' % sVO, 'v_or_b32 v%d, s%d, v%d' % (vTM, sVO, vTM),
              's_cmp_eq_u64 vcc, 0', 's_cselect_b32 s%d, 32, 64' % sVO, 'v_lshlrev_b32 v%d, 8, v%d' % (vTM, vTM), 's_or_b32 s%d, s%d, s%d' % (sVO, sVO, sREG), 'v_mov_b32 v%d, s%d' % (vCAS, sVO),
              I('buffer_store_byte v%d, v%d, %s, s%d offen' % (vCAS, vTM, sr(SDBG), sCO), tag=('Dec',))]
        cz = 52
        for k, c in enumerate(ch): cz = softplace(G, c, min(63, cz + (k in (4, 9))), min(63, cz + 2))
    if t < 28 and t % 4 == 3:
        gp = G.place('s_add_u32 s%d, s%d, 1' % (sLC, sLC), 44); G.place('s_cmp_lt_u32 s%d, 7' % sLC, max(gp + 1, 52))
        G.put(63, 's_cbranch_scc1 L_LOOP', force=True)
    if t == 31:
        ch = []
        for sw in ('v_permlane32_swap_b32', 'v_permlane16_swap_b32'):
            ch += ['v_mov_b32 v%d, v%d' % (LT0 + q, L0 + q) for q in range(4)]
            ch += ['%s v%d, v%d' % (sw, L0 + q, LT0 + q) for q in range(4)]
            ch += ['v_add_f32 v%d, v%d, v%d' % (L0 + q, L0 + q, LT0 + q) for q in range(4)]
        ch += ['v_rcp_f32 v%d, v%d' % (L0 + q, L0 + q) for q in range(4)]
        G.chain(ch, 0)
        ch = ['v_mbcnt_lo_u32_b32 v255, -1, 0', 'v_mbcnt_hi_u32_b32 v255, -1, v255', 's_mov_b32 s%d, 229376' % sVO,
              'v_and_b32 v243, 15, v255', 'v_lshrrev_b32 v254, 4, v255',
              'v_lshl_add_u32 v%d, v255, 9, s%d' % (vFL, sFLO), 'v_lshl_add_u32 v%d, v243, 4, s%d' % (vRL, sRLO),
              'v_writelane_b32 v%d, s%d, 1' % (vFL, sFCO), 'v_mad_u32_u24 v%d, v254, s%d, v%d' % (vRL, sVO, vRL)]
        ch += ['v_add_u32 v%d, %d, v%d' % (vRL + j, j * 917504, vRL) for j in (1, 2, 3)]
        ch += ['v_and_b32 v255, 1, v254', 'v_mul_lo_u32 v255, v255, s%d' % sPCO, 'v_lshl_add_u32 v%d, v243, 2, s%d' % (vPL, sPLO), 'v_add_u32 v%d, v255, v%d' % (vPL, vPL)]
        ch += ['v_lshrrev_b32 v255, 1, v254', 'v_lshlrev_b32 v254, 5, v254', 'v_lshl_add_u32 v254, v255, 20, v254', 'v_add_u32 v254, s%d, v254' % sOUO,
               'v_lshrrev_b32 v255, 2, v243', 'v_lshl_add_u32 v254, v255, 3, v254', 'v_and_b32 v255, 3, v243', 'v_mul_u32_u24 v255, 896, v255', 'v_add_u32 v%d, v255, v254' % vOUT]
        ch += ['v_and_b32 v255, 1, v243', 'v_lshlrev_b32 v255, 4, v255', 'v_lshlrev_b32 v255, v255, v%d' % vSEL, 'v_lshrrev_b32 v%d, 1, v243' % (vSEL + 3), 'v_lshlrev_b32 v%d, v%d, 1' % (vSEL + 3, vSEL + 3)]
        ch.insert(0, 'v_mov_b32 v%d, 0x3f80' % vSEL)
        for r in range(4): ch += ['v_bfe_i32 v%d, v%d, %d, 1' % (vSEL + r, vSEL + 3, r), 'v_and_b32 v%d, v255, v%d' % (vSEL + r, vSEL + r)]
        ch += ['v_lshl_add_u32 v%d, v243, 2, s%d' % (vPL2, sPLO), 'v_mul_i32_i24 v%d, %d, v243' % (vB, OPT['ring'] - 2 * OPT['lag'] + 2)]
        G.cap = 3
        G.chain(ch, 0)
    o += G.flat()
    return o

def oconv():
    o = []
    A = lambda s: o.append(I(s))
    k = 0
    for ds in range(8):
        for qb in range(4):
            tmp = 128 + 8 * (k % 4); k += 1
            for T in range(2):
                for r in range(4): A('v_accvgpr_read_b32 v%d, a%d' % (tmp + 4 * T + r, O(2 * ds + T, qb) + r))
            for j in range(4): A('v_cvt_pk_bf16_f32 v%d, v%d, v%d' % (Q(ds, qb) + j, tmp + 2 * j, tmp + 2 * j + 1))
    return o

def ringadv(reg, hc, R):
    return 's_add_u32 s%d, s%d, 16384' % (reg, reg) if (hc + 1) % R else 's_sub_u32 s%d, s%d, %d' % (reg, reg, (R - 1) * 16384)
def epi_items(hc, pol, R=14):
    buf = hc & 1; it = []
    for qb in range(4):
        b = S(buf, qb)
        for j in range(4):
            it.append(I('v_mul_f32 v%d, v%d, v%d' % (b + 2 * j, b + 2 * j, L0 + qb)))
            it.append(I('v_mul_f32 v%d, v%d, v%d' % (b + 2 * j + 1, b + 2 * j + 1, L0 + qb)))
            it.append(I('v_cvt_pk_bf16_f32 v%d, v%d, v%d' % (b + j, b + 2 * j, b + 2 * j + 1)))
        it.append(I('buffer_store_dwordx4 %s, v%d, %s, s%d offen offset:%d %s' % (vr(b), vST, sr(SWS), sPO, qb * 1024, pol), tag=('St', hc, qb)))
    it.append(I(ringadv(sPO, hc, R)))
    return it

def rd_wo8(hc, n):
    ds, T = n >> 1, n & 1
    nt = 2 * (hc & 1) + T
    r = RING8(n)
    return [I('ds_read_b64_tr_b16 %s, v%d offset:%d' % (vr(r + 2 * rho, 2), vOA + nt, (4 * ds + 2 * rho) * 1088), tag=('fWo', hc, n, rho)) for rho in (0, 1)]
def red_loads(hc, rb): return [I('buffer_load_dwordx4 %s, v%d, %s, s%d offen %s' % (ar(rb + 4 * j), vRL + j, sr(SWS), sCO, 'sc1' if hc == 99 else OPT['rlpol'].replace('+', ' ').replace('none', '')), tag=('RL', hc, j)) for j in range(4)]
def red_mfmas(rb, d=vRD): return [I('%s %s, %s, %s, %s' % (MF, vr(d), vr(vSEL), ar(rb + 4 * j), vr(d) if j else '0')) for j in range(4)]
def red_out(hc, d=vRD, cv=vCV):
    return [I('v_cvt_pk_bf16_f32 v%d, v%d, v%d' % (cv, d, d + 1)), I('v_cvt_pk_bf16_f32 v%d, v%d, v%d' % (cv + 1, d + 2, d + 3)),
            I('buffer_store_dwordx2 %s, v%d, %s, 0 offen offset:%d' % (vr(cv, 2), vOUT, sr(SOUT), hc * 64), tag=('Out', hc))]
def poll(tag, a=vPL): return I('buffer_load_dword v%d, v%d, %s, 0 offen sc1' % (vPR, a, sr(SWS)), tag=tag)
def flag(val):
    R, LAG = OPT['ring'], OPT['lag']
    if val + 1 - LAG >= 0: r = [I('v_add_u32 v%d, %d, v%d' % (vFV, val, vB))]
    else: r = [I('v_mov_b32 v%d, %d' % (vFV, R - LAG + 1)), I('v_writelane_b32 v%d, %d, 0' % (vFV, val))]
    return r + [I('buffer_store_dword v%d, v%d, %s, 0 offen' % (vFV, vFL, sr(SWS)), tag=('Fl', val))]
spins = []
def spin_stub(lab, thr, a):
    o = []
    A = lambda s: o.append(I(s))
    A('%s:' % lab); A('s_movk_i32 s%d, 0x7fff' % sT1)
    A('%s_L:' % lab); o.append(poll(None, a)); A('s_waitcnt vmcnt(0)'); A('v_cmp_gt_u32 vcc, %d, v%d' % (thr, vPR))
    A('s_sub_u32 s%d, s%d, 1' % (sT1, sT1)); A('s_cbranch_scc1 %s_RET' % lab); A('s_cbranch_vccnz %s_L' % lab); A('s_branch %s_RET' % lab)
    return o

def softplace(G, ins, lo, hi=None):
    if isinstance(ins, str): ins = I(ins)
    hi = G.n - 1 if hi is None else hi
    for gp in range(lo, hi + 1):
        if G.fits(gp, ins): return G.put(gp, ins)
    for extra in (1, 2, 3, 4):
        for gp in range(lo, hi + 1):
            if G.used[gp] + ins.cost <= G.cap + extra and not (ins.kind == 'ds' and any(x.kind == 'valu' for x in G.g[gp])):
                return G.put(gp, ins, force=True)
    raise AssertionError(('no room', ins.text))

def phase3(fast):
    o = []
    LAG = OPT['lag']
    pol = OPT['stpol'].replace('+', ' ') if fast else 'sc1'
    R = OPT['ring'] if fast else 14
    for hc in range(14):
        p = hc
        mf = []
        consume = fast and p - LAG - 1 >= 0
        red = red_mfmas(0) if consume else []
        rpos = {40: 0, 42: 1, 44: 2, 46: 3}
        gi = {}
        for n in range(16):
            ds, T = n >> 1, n & 1
            for qb in range(4):
                d = vr(S(hc & 1, qb, T))
                k = 4 * n + qb
                if red and k in rpos: mf.append(red[rpos[k]])
                gi[k] = len(mf)
                mf.append(I('%s %s, %s, %s, %s' % (MF, d, vr(RING8(n)), vr(Q(ds, qb)), d if ds else '0')))
        G = Gaps(mf)
        ch = hc >> 1
        dopoll = fast and p >= LAG
        if consume:
            rl = red_loads(p - LAG - 1, 0)
            G.put(0, rl[2]); G.put(5, rl[3]); G.put(6, ringadv(sCO, p - LAG - 1, R))
        if dopoll: G.put(OPT['ppos'], poll(('Poll', p)))
        for g in range(16):
            nx = g + 7
            if nx < 16 or hc < 13:
                for r in (rd_wo8(hc, nx) if nx < 16 else rd_wo8(hc + 1, nx - 16)): G.put(gi[4 * g + 3], r)
            if g & 1:
                if g < 15: lg = ('fWo', hc, g + 2 if g < 14 else 15, 1)
                else: lg = ('fWo', hc + 1, 1, 1) if hc < 13 else None
                vm = []
                if g == 9:
                    if (hc & 1) and hc < 13: vm.append(('Wo', ch + 1, 1, 3))
                    if dopoll: vm.append(('Poll', p))
                    elif fast and p >= 2: vm.append(('St', p - 2, 3))
                if lg or vm: G.put(gi[4 * g + 2], W(lg=lg, vm=vm or None))
                if g == 9 and (hc & 1) and hc < 13: G.put(gi[4 * g + 2], 's_barrier')
        dm = []
        if hc == 0: dm = [dma_wo(3, 1, q, sT0) for q in range(4)]
        elif 2 <= hc <= 7: dm = [dma_wo(3 + hc // 2, hc & 1, q, sT0) for q in range(4)]
        put_dmas(G, dm, ([4, 5, 7, 8] if fast else [1, 2, 3, 4])[:len(dm)])
        after = gi[38] + 1
        stlo = 0
        if fast and p >= 2:
            f = flag(p - 1)
            cg = G.chain(f[:-1], 30); softplace(G, f[-1], max(after, cg + 1))
        if dopoll:
            lab = 'SP_%d' % p
            spins.append((lab, p - LAG + 1, vPL))
            cg = G.place('v_cmp_gt_u32 vcc, %d, v%d' % (p - LAG + 1, vPR), after)
            cg = G.place('s_cbranch_vccnz %s' % lab, cg + 1); G.put(cg, I('%s_RET:' % lab))
            stlo = cg + 1
            rl = red_loads(p - LAG, 0)
            softplace(G, rl[0], gi[53]); softplace(G, rl[1], gi[61])
        og = 0
        if fast and p - LAG - 2 >= 0: og = softplace(G, red_out(p - LAG - 2)[2], gi[44])
        if consume:
            ro = red_out(p - LAG - 1)
            cg = softplace(G, ro[0], max(gi[46] + 6, og + 1)); cg = softplace(G, ro[1], cg)
        if hc < 12:
            delta = 34816 if (ch + 1) % 4 else -3 * 34816
            pair = (0, 1) if hc % 2 == 0 else (2, 3)
            for nt in pair:
                softplace(G, ('v_add_u32 v%d, %d, v%d' % (vOA + nt, delta, vOA + nt)) if delta > 0 else ('v_subrev_u32 v%d, %d, v%d' % (vOA + nt, -delta, vOA + nt)), gi[36])
        if hc > 0:
            cur = 0; last = stlo
            ep = epi_items(hc - 1, pol, R)
            if stlo:
                pre = {}
                for ins, tg in zip([x for x in ep if x.kind == 'vst'][:3], (stlo, gi[46], gi[50])): last = pre[ins.tag] = softplace(G, ins, tg)
            for ins in ep:
                if ins.kind == 'vst':
                    if stlo and ins.tag in pre: assert cur < pre[ins.tag], (hc, ins.tag, cur, pre)
                    else: last = softplace(G, ins, max(cur + 1, last))
                elif ins.kind == 'salu': softplace(G, ins, last)
                else: cur = softplace(G, ins, cur)
        o += G.flat()
    if not fast:
        o.append(I('s_nop 7'))
        o += epi_items(13, pol, R)
    return o

def fast_tail():
    o = []
    A = lambda s: o.append(I(s))
    LAG = OPT['lag']; R = OPT['ring']
    h0 = 13 - LAG
    ep = epi_items(13, OPT['stpol'].replace('+', ' '), R)
    rl = red_loads(h0, 0)
    o += rl[2:]; A(ringadv(sCO, h0, R))
    o.append(poll(('Poll', 14)))
    f = flag(13); o += f[:-1]
    A('s_nop 2')
    o += ep[:12]
    o.append(W(vm=('Poll', 14))); o.append(f[-1])
    spins.append(('SP_14', 15 - LAG, vPL))
    A('v_cmp_gt_u32 vcc, %d, v%d' % (15 - LAG, vPR)); o += ep[13:15]; A('s_cbranch_vccnz SP_14'); A('SP_14_RET:')
    o.append(ep[12]); o += ep[15:-1]
    o += red_loads(h0 + 1, 16); A(ringadv(sCO, h0 + 1, R))
    o.append(red_out(h0 - 1)[2])
    o += red_mfmas(0)
    A('v_mov_b32 v%d, 14' % vFV)
    o.append(W(vm=('St', 13, 3)))
    o.append(I('buffer_store_dword v%d, v%d, %s, 0 offen' % (vFV, vFL, sr(SWS)), tag=('Fl', 14)))
    o.append(poll(('Poll', 15), vPL2))
    o.append(W(vm=('RL', h0 + 1, 3)))
    o += red_mfmas(16, 128)
    ro0 = red_out(h0); o += ro0[:2]
    o.append(W(vm=('Poll', 15)))
    spins.append(('SP_15', 14, vPL2))
    A('v_cmp_gt_u32 vcc, 14, v%d' % vPR); A('s_nop 0'); A('s_cbranch_vccnz SP_15'); A('SP_15_RET:')
    rest = list(range(h0 + 2, 14))
    for k, hc in enumerate(rest):
        o += red_loads(hc, 16 * k + 32); A(ringadv(sCO, hc, R))
    o.append(ro0[2])
    o += red_out(h0 + 1, 128, 132)
    mm = [red_mfmas(16 * k + 32, 136 + 8 * k) for k in range(len(rest))]
    o.append(W(vm=('RL', 13, 3)))
    for j in range(4):
        for m in mm: o.append(m[j])
    A('s_nop 7')
    for k, hc in enumerate(rest): o += red_out(hc, 136 + 8 * k, 140 + 8 * k)
    return o

def dec_load(tag=None): return I('buffer_load_dword v%d, off, %s, s%d sc1' % (vCAS, sr(SDBG), sCO), tag=tag)
def decide():
    o = []
    A = lambda s: o.append(I(s))
    o.append(W(vm=('DecL',)))
    A('v_readfirstlane_b32 s%d, v%d' % (sT0, vCAS))
    A('s_bitcmp1_b32 s%d, 5' % sT0); A('s_cbranch_scc0 L_DECIDE'); A('L_FAST:'); A('s_mov_b32 s%d, 0' % sCO)
    return o

def slow_path(pro):
    o = []
    A = lambda s: o.append(I(s))
    A('L_DECIDE:')
    A('v_mbcnt_lo_u32_b32 v237, -1, 0'); A('v_lshl_add_u32 v237, v237, 8, s6')
    A('s_mov_b32 s%d, 0x40000' % sLC)
    A('L_DEC_A:')
    o.append(dec_load()); A('s_waitcnt vmcnt(0)'); A('v_readfirstlane_b32 s%d, v%d' % (sT0, vCAS))
    A('s_bitcmp1_b32 s%d, 5' % sT0); A('s_cbranch_scc1 L_FAST')
    A('s_bitcmp1_b32 s%d, 6' % sT0); A('s_cbranch_scc1 L_SLOW')
    A('s_bitcmp1_b32 s%d, 7' % sT0); A('s_cbranch_scc0 L_DEC_V')
    A('s_xor_b32 s%d, s%d, s%d' % (sT0, sT0, sREG)); A('s_and_b32 s%d, s%d, 15' % (sT0, sT0)); A('s_cbranch_scc1 L_SLOW')
    A('s_sub_u32 s%d, s%d, 1' % (sLC, sLC)); A('s_cbranch_scc0 L_DEC_A'); A('s_branch L_SLOW')
    A('L_DEC_V:')
    A('s_or_b32 s%d, s%d, 64' % (sT0, sREG)); A('v_mov_b32 v%d, s%d' % (vCAS, sT0))
    A('buffer_store_byte v%d, v237, %s, s%d offen' % (vCAS, sr(SDBG), sCO)); A('s_waitcnt vmcnt(0)')
    o.append(dec_load()); A('s_waitcnt vmcnt(0)'); A('v_readfirstlane_b32 s%d, v%d' % (sT0, vCAS))
    A('s_bitcmp1_b32 s%d, 7' % sT0); A('s_cbranch_scc1 L_DEC_A')
    A('L_SLOW:')
    o += phase3(False)
    A('s_waitcnt vmcnt(0)'); A('buffer_wbl2 sc1'); A('s_waitcnt vmcnt(0)')
    A('s_barrier'); A('s_cmp_eq_u32 s3, 0'); A('s_cbranch_scc0 L_END')
    A('s_and_b32 s%d, s6, 3' % sT0); A('s_lshl_b32 s%d, s%d, 3' % (sT0, sT0)); A('s_lshl_b32 s%d, 16, s%d' % (sT0, sT0)); A('v_mov_b32 v%d, s%d' % (vCAS, sT0))
    A('v_and_b32 v255, -4, v237')
    A('buffer_atomic_or v%d, v255, %s, s%d offen sc0 sc1' % (vCAS, sr(SDBG), sCO)); A('s_waitcnt vmcnt(0)')
    A('v_mbcnt_lo_u32_b32 v255, -1, 0'); A('v_lshrrev_b32 v%d, 2, v255' % vCAS); A('v_lshlrev_b32 v255, 2, v255'); A('v_lshl_add_u32 v255, v%d, 8, v255' % vCAS)
    A('v_mov_b32 v%d, 0' % vCAS)
    A('buffer_atomic_or v%d, v255, %s, s%d offen sc0 sc1' % (vCAS, sr(SDBG), sCO)); A('s_waitcnt vmcnt(0)')
    A('s_mov_b32 s%d, 0x10101010' % sT0); A('v_and_b32 v%d, s%d, v%d' % (vCAS, sT0, vCAS)); A('v_cmp_eq_u32 vcc, s%d, v%d' % (sT0, vCAS))
    A('s_nop 1'); A('s_and_b32 s%d, vcc_lo, 15' % sT0); A('s_cmp_eq_u32 s%d, 15' % sT0); A('s_cbranch_scc0 L_END')
    A('buffer_inv sc1'); A('s_waitcnt vmcnt(0)')
    for j in range(4): A('v_subrev_u32 v%d, s%d, v%d' % (vRL + j, sRLO, vRL + j))
    A('v_subrev_u32 v%d, s%d, v%d' % (vOUT, sOUO, vOUT))
    A('s_mov_b32 s%d, 0' % sLC)
    A('L_SLOOP:')
    A('s_lshl_b32 s%d, s%d, 8' % (sCO, sLC))
    o += red_loads(99, 0)
    A('s_bfe_u32 s%d, s%d, 0x40002' % (sT0, sLC)); A('s_mul_i32 s%d, s%d, 14336' % (sT0, sT0))
    A('s_and_b32 s%d, s%d, 3' % (sT1, sLC)); A('s_mul_i32 s%d, s%d, 3584' % (sT1, sT1)); A('s_add_u32 s%d, s%d, s%d' % (sT0, sT0, sT1))
    A('s_andn2_b32 s%d, s%d, 63' % (sT1, sLC)); A('s_add_u32 s%d, s%d, s%d' % (sT0, sT0, sT1))
    A('s_waitcnt vmcnt(0)')
    o += red_mfmas(0); A('s_nop 7')
    ro = red_out(0); o += ro[:2]
    A('buffer_store_dwordx2 %s, v%d, %s, s%d offen' % (vr(vCV, 2), vOUT, sr(SOUT), sT0))
    A('s_add_u32 s%d, s%d, 1' % (sLC, sLC)); A('s_cmp_lt_u32 s%d, 896' % sLC); A('s_cbranch_scc1 L_SLOOP')
    A('s_waitcnt vmcnt(0)'); A('s_endpgm')
    return o

def rare(par):
    o = []
    A = lambda s: o.append(I(s))
    A('RARE_%d:' % par)
    A('s_nop 7'); A('s_nop 7')
    A('v_mbcnt_lo_u32_b32 v252, -1, 0'); A('v_mbcnt_hi_u32_b32 v252, -1, v252')
    A('v_and_b32 v253, 15, v252'); A('v_lshlrev_b32 v253, 9, v253'); A('v_lshrrev_b32 v252, 4, v252'); A('v_lshl_add_u32 v252, v252, 4, v253')
    A('s_sub_u32 s%d, s%d, %d' % (sR0, sKO, 4 * 16384)); A('s_and_b32 s%d, s%d, 0x7ffff' % (sR0, sR0))
    for T in range(2):
        if T: A('s_add_u32 s%d, s%d, 8192' % (sR0, sR0))
        for ds in range(0, 8, 2):
            A('buffer_load_dwordx4 v[244:247], v252, %s, s%d offen offset:%d' % (sr(SK), sR0, ds * 64))
            A('buffer_load_dwordx4 v[248:251], v252, %s, s%d offen offset:%d' % (sr(SK), sR0, ds * 64 + 64))
            A('s_waitcnt vmcnt(0)')
            for d2 in range(2):
                for qb in range(4):
                    d = vr(S(par, qb, T))
                    A('%s %s, %s, %s, %s' % (MF, d, vr(244 + 4 * d2), vr(Q(ds + d2, qb)), d if ds + d2 else vr(NEGM(qb))))
            A('s_nop 7')
    A('s_nop 7')
    for qb in range(4):
        b = S(par, qb); y = S(par ^ 1, qb)
        A('v_max3_f32 v253, v%d, v%d, v%d' % (b, b + 1, b + 2)); A('v_max3_f32 v253, v253, v%d, v%d' % (b + 3, b + 4))
        A('v_max3_f32 v253, v253, v%d, v%d' % (b + 5, b + 6)); A('v_max_f32 v253, v253, v%d' % (b + 7))
        for sw in ('v_permlane32_swap_b32', 'v_permlane16_swap_b32'):
            A('v_mov_b32 v254, v253'); A('s_nop 1'); A('%s v253, v254' % sw); A('v_max_f32 v253, v253, v254')
        A('v_max_f32 v253, 0, v253')
        A('v_exp_f32 v255, -v253')
        for r in range(4): A('v_sub_f32 v%d, v%d, v253' % (NEGM(qb) + r, NEGM(qb) + r))
        for k in range(8): A('v_sub_f32 v%d, v%d, v253' % (y + k, y + k))
        for k in range(8): A('v_sub_f32 v%d, v%d, v253' % (b + k, b + k))
        for kind, k, ins in softmax_items(par, qb):
            o.append(ins)
            if kind == 'e': A('s_nop 0')
        A('v_mul_f32 v%d, v%d, v255' % (L0 + qb, L0 + qb))
        for db in range(0, 16, 2):
            regs = [O(db + d, qb) + r for d in range(2) for r in range(4)]
            for k, a in enumerate(regs): A('v_accvgpr_read_b32 v%d, a%d' % (244 + k, a))
            for k, a in enumerate(regs): A('v_mul_f32 v%d, v%d, v255' % (244 + k, 244 + k))
            for k, a in enumerate(regs): A('v_accvgpr_write_b32 a%d, v%d' % (a, 244 + k))
    A('s_nop 1')
    A('s_setpc_b64 %s' % sr(sRET, 2))
    return o

def dump_v(first, nfrag):
    o = []
    A = lambda s: o.append(I(s))
    A('s_nop 7'); A('s_nop 7'); A('s_waitcnt vmcnt(0) lgkmcnt(0)')
    A('s_lshl_b32 s34, s%d, 17' % sBH); A('s_add_u32 s28, s50, s34'); A('s_addc_u32 s29, s51, 0'); A('s_mov_b32 s30, 131072')
    for f in range(nfrag):
        A('s_mov_b32 s35, %d' % ((f // 4) * 16384 + (f % 4) * 1024))
        A('buffer_store_dwordx4 %s, v%d, %s, s35 offen' % (vr(first + 4 * f), vST, sr(SWS)))
    A('s_waitcnt vmcnt(0)'); A('s_endpgm')
    return o

def stamps_out():
    o = []
    if not OPT['stamps']: return o
    A = lambda s: o.append(I(s))
    A('s_waitcnt vmcnt(0)')
    A('s_memrealtime s[94:95]'); A('s_waitcnt lgkmcnt(0)')
    A('s_add_u32 s28, s50, 0x4000000'); A('s_addc_u32 s29, s51, 0'); A('s_mov_b32 s30, 0x100000')
    A('s_lshl_b32 s34, s2, 2'); A('s_add_u32 s34, s34, s3'); A('s_lshl_b32 s34, s34, 7')
    A('v_mov_b32 v1, 0')
    for k in range(32):
        A('v_mov_b32 v0, s%d' % (sST + k)); A('buffer_store_dword v0, v1, %s, s34 offen offset:%d' % (sr(SWS), 4 * k)); A('s_nop 1')
    return o

def main_kernel():
    pre = setup()
    if OPT['stamps']: pre = [I('s_memrealtime s[92:93]')] + pre
    stamp(pre)
    p1 = phase1()
    if OPT['stop'] == 'q':
        body = pre + p1 + dump_v(0, 32); loop = None; post = []; slow = []
        stream = body
    else:
        stamp(p1)
        pro = prologue()
        stamp(pro)
        iters = [sum((step(4 * it + k) for k in range(4)), []) for it in range(7)]
        if OPT['stamps'] == 2:
            for it in iters:
                it[0:0] = [I('s_waitcnt lgkmcnt(0)'), I('s_memrealtime s[96:97]'), I('s_waitcnt lgkmcnt(0)'), ] + [I('s_mov_b32 s%d, s%d' % (84 + k, 85 + k)) for k in range(6)] + [I('s_mov_b32 s90, s96')]
        tail = []
        stamp(tail)
        for t in range(28, 32): tail += step(t)
        stamp(tail)
        for n in (4, 5, 6): tail += rd_wo8(0, n)
        tail.append(dec_load(('DecL',)))
        tail += oconv()
        slow = []
        if OPT['stop'] == 'o': tail += dump_v(0, 32)
        else:
            stamp(tail)
            tail += [W(lg=('fWo', 0, 1, 1))] + decide()
            common = pre + p1 + pro + sum(iters, []) + tail
            slow = slow_path(common)
            resolve_waits(common + slow); finalize_waits(slow)
            tail += phase3(True)
            stamp(tail)
            tail += fast_tail()
            stamp(tail)
            tail += stamps_out()
            tail += [I('s_waitcnt vmcnt(0)')]
        stream = pre + p1 + pro + sum(iters, []) + tail
    resolve_waits(stream)
    if OPT['stop'] != 'q': unify_iters(iters)
    finalize_waits(stream)
    errs = check_hazards(stream, 'main')
    if slow: errs += check_hazards(common + slow, 'slow')
    out = []
    if OPT['stop'] == 'q': out = stream
    else: out = pre + p1 + pro + [I('L_LOOP:')] + iters[0] + tail
    out += [I('L_END:'), I('s_endpgm')]
    if OPT['stop'] != 'q':
        for lab, par in stubs:
            out += [I('%s:' % lab), I('s_call_b64 %s, RARE_%d' % (sr(sRET, 2), par)), I('s_branch %s_RET' % lab)]
        for lab, thr, a in spins: out += spin_stub(lab, thr, a)
        for par in (0, 1):
            r = rare(par); errs += check_hazards(r, 'rare'); out += r
        out += slow
    for e in errs[:40]: print('; ERROR', e, file=sys.stderr)
    if errs: raise SystemExit('hazard errors: %d' % len(errs))
    return out

def desc(name, vg, acc, y=False):
    return '''.amdhsa_kernel %s
  .amdhsa_next_free_vgpr %d
  .amdhsa_next_free_sgpr 102
  .amdhsa_accum_offset %d
  .amdhsa_group_segment_fixed_size 0
  .amdhsa_kernarg_size 64
  .amdhsa_user_sgpr_count 2
  .amdhsa_user_sgpr_kernarg_segment_ptr 1
  .amdhsa_system_sgpr_workgroup_id_x 1
%s.end_amdhsa_kernel''' % (name, vg, acc, '  .amdhsa_system_sgpr_workgroup_id_y 1\n' if y else '')

def fmt(ins):
    if ins.kind == 'dma' and ins.tag and OPT['nodma'] & {'X': 1, 'Wq': 2, 'K': 4, 'V': 4, 'Wo': 8}[ins.tag[0]]: return '    s_nop 0'
    if ins.kind == 'vst' and ins.tag and ins.tag[0] == 'St' and OPT['nost']: return '    s_nop 0'
    k = OPT['kill']
    if ins.tag and ins.kind in ('vst', 'vld') and k & {'RL': 1, 'Out': 2, 'Poll': 4, 'Fl': 8, 'Reg': 32, 'Fz': 64, 'Dec': 128, 'Chk': 128}.get(ins.tag[0], 0): return '    s_nop 0'
    if k & 16 and ins.text.startswith('s_cbranch_vccnz SP_'): return '    s_nop 0'
    if k & 32 and ins.text.startswith('s_cbranch_scc0 L_DECIDE'): return '    s_nop 0'
    return ins.text if ins.kind == 'label' else '    ' + ins.text

if __name__ == '__main__':
    K1 = OPT['name'] + '_kernel'; K2 = 'mha_reduce_kernel'
    hdr = open('standalone__mha_block_cached__near_ridge.s.ref').read().split('; Override launch')[0]
    t = hdr
    t += '; @launch grid=(256,1,1) block=(256,1,1) lds=163840\n'
    t += '.amdgcn_target "amdgcn-amd-amdhsa--gfx950"\n.text\n'
    for K, body in ((K1, main_kernel()),):
        t += '.globl %s\n.p2align 8\n.type %s,@function\n%s:\n' % (K, K, K)
        t += '\n'.join(fmt(i) for i in body) + '\n'
    t += '.section .rodata,"a"\n.p2align 6\n' + desc(K1, 512, 256) + '\n'
    sys.stdout.write(t)
```

```python
import sys, os
sys.path.insert(0, os.path.dirname(os.path.abspath(__file__)))
from asmlib import *

OPT = dict(cpf=0, stlast=0, stpol2='sc1', outpol='', l2two='', tlbw=0, tlbs=16, warm=0, woat=6, warmpol='none', l2pf='', l2at='', l2pol='none', xpol='', wopol='', mix=0, pol2='', drop='', padp='', pad1='', padit=0, padfrom=0, pad=0, noexp=0, pf='', pfq='', pfl=0, pfpol='nt', ppos=12, prel=0, rlpol='sc1', kill=0, fuse=1, lag=3, ptouch=7, forceslow=0, map=1, ring=4, stpol='', wpol='', rot=0, kvpol='nt', nodma=0, nost=0, wq8=1, stop='', stamps=0, thr=0x47800000, name='standalone__mha_block_cached__near_ridge')
for a in sys.argv[1:]:
    k, v = a.split('=')
    OPT[k] = v if k in ('stop', 'name', 'kvpol', 'stpol', 'wpol', 'rlpol', 'pf', 'pfq', 'pfpol', 'padp', 'pad1', 'drop', 'pol2', 'l2pf', 'l2at', 'l2pol', 'xpol', 'wopol', 'warmpol', 'l2two', 'stpol2', 'outpol') else int(v, 0)

SLOT = 17408
MF = 'v_mfma_f32_16x16x32_bf16'
def vr(b, n=4): return 'v[%d:%d]' % (b, b + n - 1) if n > 1 else 'v%d' % b
def ar(b, n=4): return 'a[%d:%d]' % (b, b + n - 1) if n > 1 else 'a%d' % b
def sr(b, n=4): return 's[%d:%d]' % (b, b + n - 1)

SK, SV, SWQ, SX, SWO, SWS = 8, 12, 16, 20, 24, 28
sWL, sWL8, sT0, sT1 = 32, 33, 34, 35
sKO, sLC, sTHR, sSC, sRET, sR0, sVO = 52, 53, 54, 56, 58, 61, 62
sBH = 63
sST = 64
def Q(ds, qb): return 4 * (ds * 4 + qb)
def S(buf, qb, T=0): return 128 + 32 * buf + 8 * qb + 4 * T
def NEGM(qb): return 192 + 4 * qb
def RING(n): return 208 + 4 * (n % 4)
L0, LT0 = 224, 228
vKA, vVAe, vVAo, vDK, vDV, vDWo, vOA, vST, vTM = 232, 233, 234, 236, 237, 235, 238, 242, 243
vSEL, vRL, vFL, vPL, vOUT, vRD, vCV, vPR, vFV, vCAS = 244, 248, 252, 253, 254, 228, 232, 234, 237, 236
sPO, sCO, sREG, sFULL, sFLO, sPLO, sRLO, sOUO = 55, 60, 5, 7, 98, 99, 100, 101
sFCO, sPCO = 33, 63
vB, vPL2 = 243, 255
SDBG, SOUT = 20, 16
BSTRIDE, FLOFF = 3670528, 3670016
def RING8(n): return 192 + 4 * ((n + 4) % 8)
vWA0, vWA1, vWA80, vWA81, vXA, vDWq, vDX = 244, 245, 246, 247, 248, 249, 250
def O(db, qb): return 4 * (db * 4 + qb)
def ACC(ds, qb, T):
    if ds < 7: return vr(8 * (ds * 4 + qb) + 4 * T)
    return ar(8 * qb + 4 * T)
def XF(par, qb): return 32 + 16 * par + 4 * qb
def ARING(n): return 64 + 4 * (n % 4)

nstamp = [0]
def stamp(out):
    if not OPT['stamps']: return
    k = nstamp[0]; nstamp[0] += 1
    out.append(I('s_waitcnt lgkmcnt(0)'))
    out.append(I('s_memtime %s' % sr(sST + 2 * k, 2)))
    out.append(I('s_waitcnt lgkmcnt(0)'))

def dma_kv(which, tile, slot, p, soff):
    srd, vo = (SK, vDK) if which == 'K' else (SV, vDV)
    pre = [I('s_add_u32 m0, s%d, %d' % (sWL, slot * SLOT + p * 64))]
    pol = OPT['pol2'] if (which, p) in [('K', 3), ('V', 3), ('K', 1), ('V', 1), ('K', 2), ('V', 2)][:OPT['mix']] else OPT['kvpol']
    d = I('buffer_load_dwordx4 v%d, %s, s%d offen offset:%d %s lds' % (vo, sr(srd), soff, p * 1024, pol.replace('+', ' ')), tag=(which, tile, p))
    return pre, d
def dma_wq(tile, p, st):
    slot = 4 + (tile + 1) % 5
    pre = [I('s_add_u32 m0, s%d, %d' % (sWL8, slot * SLOT + p * 1088)), I('s_mov_b32 s%d, %d' % (st, tile * 32 * 8192 + p * 16384))]
    d = I('buffer_load_dwordx4 v%d, %s, s%d offen %s lds' % (vDWq, sr(SWQ), st, OPT['wpol'].replace('+', ' ')), tag=('Wq', tile, p))
    return pre, d
def dma_x(tile, p, st):
    slot = (tile + 2) % 4
    pre = [I('s_add_u32 m0, s%d, %d' % (sWL, slot * SLOT + p * 1088)), I('s_mov_b32 s%d, %d' % (st, p * 14336 + tile * 64))]
    d = I('buffer_load_dwordx4 v%d, %s, s%d offen %s lds' % (vDX, sr(SX), st, OPT['xpol'].replace('+', ' ')), tag=('X', tile, p))
    return pre, d
def dma_wo(chunk, half, p, st):
    slot = 2 * (chunk % 4) + half
    pre = [I('s_add_u32 m0, s%d, %d' % (sWL, slot * SLOT + p * 1088)), I('s_mov_b32 s%d, %d' % (st, half * 128 * 896 + p * 7168 + chunk * 128))]
    d = I('buffer_load_dwordx4 v%d, %s, s%d offen %s lds' % (vDWo, sr(SWO), st, OPT['wopol'].replace('+', ' ')), tag=('Wo', chunk, half, p))
    return pre, d
def dma_kv_imm(which, tile, p, st):
    slot = tile % 4 + (0 if which == 'K' else 4)
    so = sKO if which == 'K' else sVO
    pre, d = dma_kv(which, tile, slot, p, so)
    if p == 0 and tile > 0: pre += adv(so)
    return pre, d
def adv(so):
    return [I('s_add_u32 s%d, s%d, 16384' % (so, so)), I('s_and_b32 s%d, s%d, 0x7ffff' % (so, so))]

def rd_wq(tile, n):
    ds, T = n >> 1, n & 1
    slot = 4 + (tile + 1) % 5
    if slot == 8: a = (vWA80, vWA81)[(ds >> 1) & 1]; base = 0
    else: a = (vWA0, vWA1)[(ds >> 1) & 1]; base = (slot - 4) * SLOT
    r = ARING(n)
    return [I('ds_read_b64_tr_b16 %s, v%d offset:%d' % (ar(r + 2 * rho, 2), a, base + rho * 2176 + ds * 64 + T * 8), tag=('fWq', tile, n, rho)) for rho in (0, 1)]
def rd_x(tile, qb):
    slot = (tile + 2) % 4
    return I('ds_read_b128 %s, v%d offset:%d' % (ar(XF(tile & 1, qb)), vXA, slot * SLOT + qb * 1088), tag=('fX', tile, qb))
def rd_k(t, n):
    T, ds = n >> 3, n & 7
    return [I('ds_read_b128 %s, v%d offset:%d' % (vr(RING(n)), vKA, (t % 4) * SLOT + T * 8704 + ds * 64), tag=('fK', t, n, 1))]
def rd_v(t, db):
    a = vVAo if db & 1 else vVAe
    r = RING(db)
    return [I('ds_read_b64_tr_b16 %s, v%d offset:%d' % (vr(r + 2 * rho, 2), a, (t % 4) * SLOT + rho * 8704 + db * 32), tag=('fV', t, db, rho)) for rho in (0, 1)]
def rd_wo(hc, n):
    ds, T = n >> 1, n & 1
    nt = 2 * (hc & 1) + T
    r = RING(n)
    return [I('ds_read_b64_tr_b16 %s, v%d offset:%d' % (vr(r + 2 * rho, 2), vOA + nt, (4 * ds + 2 * rho) * 1088), tag=('fWo', hc, n, rho)) for rho in (0, 1)]

def put_dmas(G, dmas, groups):
    prev = 0
    for (pre, d), g in zip(dmas, groups):
        gp = 4 * g + 1
        G.put(gp, d)
    for (pre, d), g in zip(dmas, groups):
        gp = 4 * g + 1
        hi = gp - 1; got = []
        for ins in reversed(pre):
            for cand in range(hi, prev - 1, -1):
                if G.used[cand] + ins.cost <= G.cap:
                    G.used[cand] += ins.cost; got.append((cand, ins)); hi = cand; break
            else: G.used[hi] += ins.cost; got.append((hi, ins))
        for cand, ins in reversed(got): G.g[cand].append(ins)
        prev = gp + 1

def setup():
    o = []
    A = lambda s: o.append(I(s))
    A('s_cmp_ge_u32 s2, 256'); A('s_cbranch_scc1 L_END')
    A('s_load_dwordx16 s[36:51], s[0:1], 0')
    A('v_lshrrev_b32 v1, 6, v0'); A('v_and_b32 v0, 63, v0')
    A('v_readfirstlane_b32 s3, v1')
    A('s_and_b32 s4, s2, 7'); A('s_lshr_b32 s5, s2, 3')
    if OPT['cpf']:
        A('s_getpc_b64 s[8:9]'); A('s_lshl_b32 s6, s5, 2'); A('s_add_u32 s6, s6, s3'); A('s_lshl_b32 s6, s6, 9')
        A('s_mov_b32 s10, 0x10000'); A('s_mov_b32 s11, 0x20000')
        A('v_min_u32 v201, 3, v0'); A('v_lshlrev_b32 v201, 7, v201')
        o.append(I('buffer_load_dword v200, v201, s[8:11], s6 offen', tag=('CPF',)))
    if OPT['map'] == 0:
        A('s_and_b32 s6, s4, 3'); A('s_lshl_b32 s6, s6, 2'); A('s_and_b32 s7, s5, 3'); A('s_add_u32 s6, s6, s7')
        A('s_lshr_b32 s4, s4, 2'); A('s_lshl_b32 s4, s4, 3'); A('s_lshr_b32 s5, s5, 2'); A('s_add_u32 s4, s4, s5')
    else:
        A('s_lshr_b32 s6, s5, 1'); A('s_and_b32 s5, s5, 1'); A('s_lshl_b32 s4, s4, 1'); A('s_add_u32 s4, s4, s5')
    A('s_lshl_b32 s5, s4, 4'); A('s_add_u32 s%d, s5, s6' % sBH)
    A('s_mul_i32 s%d, s3, 4352' % sWL)
    A('s_and_b32 s7, s3, 1')
    if OPT['wq8']: A('s_lshl_b32 s7, s7, 3'); A('s_add_u32 s%d, s%d, s7' % (sWL8, sWL)); A('s_lshr_b32 s7, s7, 3')
    else: A('s_mov_b32 s%d, s%d' % (sWL8, sWL))
    A('v_and_b32 v1, 15, v0'); A('v_lshrrev_b32 v2, 4, v0'); A('v_bfe_u32 v3, v0, 2, 2'); A('v_and_b32 v4, 3, v0')
    A('v_lshrrev_b32 v5, 5, v0'); A('v_and_b32 v6, 31, v0')
    A('s_lshl_b32 s34, s3, 6'); A('v_lshrrev_b32 v7, 2, v0'); A('v_add_u32 v7, s34, v7'); A('s_movk_i32 s35, 896')
    A('v_mul_lo_u32 v7, v7, s35'); A('v_lshlrev_b32 v8, 1, v5'); A('v_xor_b32 v8, v8, v4'); A('v_lshl_add_u32 v%d, v8, 4, v7' % vDX)
    A('s_lshl_b32 s34, s3, 3'); A('v_add_u32 v7, s34, v5'); A('v_lshlrev_b32 v7, 13, v7'); A('v_lshlrev_b32 v8, 3, v5')
    A('v_xor_b32 v8, v8, v6'); A('v_lshl_add_u32 v%d, v8, 4, v7' % vDWq)
    A('s_waitcnt lgkmcnt(0)')
    def srd(d, p, off, size):
        A('s_add_u32 s%d, s%d, %s' % (d, p, off)); A('s_addc_u32 s%d, s%d, 0' % (d + 1, p + 1))
        A('s_mov_b32 s%d, %s' % (d + 2, size)); A('s_mov_b32 s%d, 0x20000' % (d + 3))
    A('s_mul_i32 s34, s4, 229376'); srd(SX, 36, 's34', '229376')
    A('s_lshl_b32 s34, s6, 9'); A('s_sub_u32 s35, 3670016, s34'); srd(SWQ, 42, 's34', 's35')
    return o

def setup2():
    o = []
    A = lambda s: o.append(I(s))
    def srd(d, p, off, size):
        A('s_add_u32 s%d, s%d, %s' % (d, p, off)); A('s_addc_u32 s%d, s%d, 0' % (d + 1, p + 1))
        A('s_mov_b32 s%d, %s' % (d + 2, size)); A('s_mov_b32 s%d, 0x20000' % (d + 3))
    A('s_lshl_b32 s34, s%d, 19' % sBH); srd(SK, 38, 's34', '524288'); srd(SV, 40, 's34', '524288')
    A('s_mul_i32 s34, s6, 229376'); srd(SWO, 44, 's34', '229376')
    A('s_mul_i32 s34, s4, %d' % BSTRIDE); srd(SWS, 50, 's34', str(BSTRIDE))
    tw = OPT['tlbw']
    if tw:
        A('s_mov_b32 m0, %d' % (9 * SLOT)); A('v_lshlrev_b32 v255, %d, v0' % OPT['tlbs'])
        if tw & 8: A('s_mul_i32 s34, s4, 229376'); srd(40, 46, 's34', '229376')
        for bit, r in ((1, SK), (1, SV), (16, SWQ), (16, SX), (2, SWO), (4, SWS), (8, 40)):
            if tw & bit: o.append(I('buffer_load_dword v255, %s, 0 offen nt lds' % sr(r), tag=('PF',)))
    A('s_mov_b32 s%d, 0x%x' % (sTHR, OPT['thr']))
    A('s_mov_b32 s%d, 0x3db8aa3b' % sSC); A('s_mov_b32 s%d, 0x3db8aa3b' % (sSC + 1))
    if OPT['rot'] == 0: A('s_mov_b32 s%d, 0' % sKO)
    elif OPT['rot'] == 1: A('s_and_b32 s%d, s%d, 31' % (sKO, sBH))
    elif OPT['rot'] == 2: A('s_lshr_b32 s%d, s2, 3' % sKO)
    elif OPT['rot'] == 3: A('s_mul_i32 s%d, s2, 11' % sKO); A('s_lshr_b32 s34, s2, 5'); A('s_add_u32 s%d, s%d, s34' % (sKO, sKO)); A('s_and_b32 s%d, s%d, 31' % (sKO, sKO))
    elif OPT['rot'] == 4: A('s_and_b32 s%d, s2, 7' % sKO); A('s_lshl_b32 s%d, s%d, 2' % (sKO, sKO))
    A('s_lshl_b32 s%d, s%d, 14' % (sKO, sKO)); A('s_mov_b32 s%d, s%d' % (sVO, sKO)); A('s_mov_b32 s%d, 0' % sLC)
    A('s_movk_i32 s35, 1088')
    A('v_lshrrev_b32 v7, 3, v1'); A('v_lshlrev_b32 v8, 1, v7'); A('v_xor_b32 v8, v8, v2'); A('v_lshlrev_b32 v8, 4, v8')
    A('v_lshl_add_u32 v8, v1, 6, v8'); A('v_add_u32 v%d, s%d, v8' % (vXA, sWL))
    A('v_lshrrev_b32 v9, 1, v3'); A('v_and_b32 v10, 1, v3')
    A('v_lshl_add_u32 v8, v2, 2, v9'); A('v_mul_lo_u32 v8, v8, s35'); A('v_lshl_add_u32 v8, v4, 4, v8')
    if OPT['wq8']: A('v_and_b32 v11, 1, v2'); A('v_lshl_add_u32 v8, v11, 3, v8')
    A('v_add_u32 v8, %d, v8' % (4 * SLOT))
    A('v_mul_u32_u24 v11, 640, v10'); A('v_add_u32 v%d, v8, v11' % vWA0)
    A('v_mul_u32_u24 v11, 384, v10'); A('v_add_u32 v%d, v8, v11' % vWA1)
    A('v_add_u32 v%d, %d, v%d' % (vWA80, 4 * SLOT, vWA0)); A('v_add_u32 v%d, %d, v%d' % (vWA81, 4 * SLOT, vWA1))
    A('v_lshrrev_b32 v8, 1, v1'); A('v_mul_lo_u32 v8, v8, s35'); A('v_and_b32 v11, 1, v1'); A('v_lshl_add_u32 v8, v11, 9, v8')
    A('v_lshl_or_b32 v11, v7, 1, v11'); A('v_xor_b32 v11, v11, v2'); A('v_lshl_add_u32 v%d, v11, 4, v8' % vKA)
    A('v_lshl_add_u32 v8, v2, 1, v9'); A('v_mul_lo_u32 v8, v8, s35'); A('v_lshl_add_u32 v8, v4, 3, v8'); A('v_add_u32 v8, %d, v8' % (4 * SLOT))
    A('v_mul_u32_u24 v11, 544, v10'); A('v_add_u32 v%d, v8, v11' % vVAe)
    A('v_mul_u32_u24 v11, 480, v10'); A('v_add_u32 v%d, v8, v11' % vVAo)
    A('s_lshl_b32 s34, s3, 12'); A('v_lshlrev_b32 v8, 9, v5'); A('v_add_u32 v8, s34, v8')
    A('s_lshl_b32 s5, s7, 1'); A('v_or_b32 v11, s5, v5'); A('v_xor_b32 v11, v11, v6'); A('v_lshl_add_u32 v%d, v11, 4, v8' % vDK)
    A('v_lshlrev_b32 v11, 1, v5'); A('v_xor_b32 v11, v11, v6'); A('v_lshl_add_u32 v%d, v11, 4, v8' % vDV)
    A('v_lshlrev_b32 v8, 8, v3'); A('v_lshl_add_u32 v8, v2, 6, v8'); A('v_lshl_add_u32 v8, v4, 4, v8'); A('v_add_u32 v%d, s34, v8' % vST)
    A('s_lshl_b32 s34, s3, 5'); A('v_lshrrev_b32 v8, 3, v0'); A('v_add_u32 v8, s34, v8'); A('s_movk_i32 s5, 896'); A('v_mul_lo_u32 v8, v8, s5')
    A('v_and_b32 v11, 7, v0'); A('v_lshlrev_b32 v12, 1, v2'); A('v_xor_b32 v11, v11, v12'); A('v_lshl_add_u32 v%d, v11, 4, v8' % vDWo)
    A('v_lshrrev_b32 v8, 1, v2'); A('v_mul_lo_u32 v8, v8, s35'); A('v_and_b32 v11, 1, v2'); A('v_lshl_add_u32 v11, v11, 2, v3')
    A('v_lshl_add_u32 v8, v11, 7, v8'); A('v_lshl_add_u32 v8, v4, 3, v8'); A('v_lshrrev_b32 v11, 1, v11')
    for nt in range(4):
        A('v_xor_b32 v12, %d, v11' % nt); A('v_lshl_add_u32 v%d, v12, 5, v8' % (vOA + nt))
    for qb in range(4): A('v_mov_b32 v%d, 0' % (L0 + qb))
    A('s_mul_i32 s%d, s6, 229376' % sPO)
    A('s_lshl_b32 s34, s3, 7'); A('s_lshl_b32 s35, s6, 2'); A('s_add_u32 s34, s34, s35'); A('s_add_u32 s%d, s34, %d' % (sFLO, FLOFF))
    A('s_lshr_b32 s34, s6, 2'); A('s_lshl_b32 s34, s34, 7'); A('s_add_u32 s%d, s34, %d' % (sPLO, FLOFF))
    A('s_lshl_b32 s34, s6, 10'); A('s_lshl_b32 s35, s3, 8'); A('s_add_u32 s%d, s34, s35' % sRLO)
    A('s_mul_i32 s34, s6, 14336'); A('s_mul_i32 s35, s3, 3584'); A('s_add_u32 s%d, s34, s35' % sOUO)
    A('s_lshl_b32 s%d, s4, 4' % sCO)
    A('s_getreg_b32 s34, hwreg(HW_REG_XCC_ID, 0, 4)')
    if OPT['forceslow'] == 1: A('s_and_b32 s34, s6, 1')
    A('s_or_b32 s%d, s34, 0x80' % sREG); A('s_mul_i32 s%d, s%d, 0x01010101' % (sFULL, sREG))
    A('s_and_b32 s34, s6, 3'); A('s_lshl_b32 s34, s34, 2'); A('s_add_u32 s34, s34, s3'); A('s_lshl_b32 s34, s34, 2'); A('s_add_u32 s34, s34, s%d' % sPLO); A('s_add_u32 s34, s34, 64')
    A('v_lshl_add_u32 v8, v0, 9, s%d' % sFLO); A('v_writelane_b32 v8, s34, 1')
    A('v_mul_u32_u24 v9, %d, v0' % (OPT['ring'] - OPT['lag'] + 1))
    o.append(I('buffer_store_dword v9, v8, %s, 0 offen' % sr(SWS), tag=('Fz',)))
    return o

sPF, sPFt, vPA, vPL128, vPD = 36, 37, 254, 255, 231
pfstate = dict(n=None)
def pf_items(n):
    pre = []
    if pfstate['n'] != n:
        pre += ['v_min_u32 v%d, %d, v%d' % (vPA, (n - 1) * 128, vPL128)]
        pfstate['n'] = n
    pre += ['s_mul_i32 s%d, s3, %d' % (sPFt, n * 128), 's_add_u32 s%d, s%d, s%d' % (sPFt, sPFt, sPF), 's_add_u32 s%d, s%d, %d' % (sPF, sPF, n * 512)]
    pol = OPT['pfpol'].replace('+', ' ').replace('none', '')
    lds = [I('buffer_load_dword v%d, %s, s%d offen %s lds' % (vPA, sr(r), sPFt, pol), tag=('PF',)) for r in (SK, SV)]
    return [([I(p) for p in pre] + [I('s_mov_b32 m0, %d' % (9 * SLOT))], lds[0]), ([], lds[1])]
l2state = dict(n=None)
def l2_items(k):
    it, st = k // 2, k & 1
    n = 4 * int(OPT['l2pf'][it], 36)
    pre = []
    if l2state['n'] != n:
        pre += ['v_min_u32 v254, %d, v251' % ((n - 1) * 128), 'v_add_u32 v254, v254, v255']; l2state['n'] = n
    pre += ['s_mov_b32 s%d, %d' % (sPFt, (4 * it + (3 if st else 4)) * 16384), 's_mov_b32 m0, %d' % (9 * SLOT)]
    pol = OPT['l2pol'].replace('+', ' ').replace('none', '')
    return ([I(p) for p in pre], I('buffer_load_dword v254, %s, s%d offen %s lds' % (sr(SV if st else SK), sPFt, pol), tag=('PF',)))
def pflist(x): return [int(c, 36) for c in x]

def phase1():
    o = []
    k = 0
    for t in range(4):
        for f in (dma_x, dma_wq):
            for p in range(4):
                pre, d = f(t, p, sT0 + (k & 1)); k += 1
                o += pre; o.append(d)
    o += setup2()
    if OPT['pf']: o += [I('v_lshlrev_b32 v%d, 7, v0' % vPL128), I('s_mov_b32 s%d, s%d' % (sPF, sKO))]
    wp = OPT['warmpol'].replace('+', ' ').replace('none', '')
    if OPT['warm']: o.append(I('s_mov_b32 m0, %d' % (9 * SLOT)))
    if OPT['warm'] & 2:
        o += [I(c) for c in ['v_bfe_u32 v251, v0, 3, 2', 'v_and_b32 v252, 7, v0', 'v_min_u32 v252, 4, v252', 'v_mul_u32_u24 v251, 896, v251', 'v_lshl_add_u32 v251, v252, 7, v251',
              's_lshl_b32 s36, s6, 2', 's_add_u32 s36, s36, s3', 's_mul_i32 s36, s36, 3584', 's_add_u32 s36, s36, 256']]
        o.append(I('buffer_load_dword v251, %s, s36 offen %s lds' % (sr(SX), wp), tag=('PF',)))
    if OPT['warm'] & 1:
        o += [I(c) for c in ['v_min_u32 v252, 19, v0', 'v_lshrrev_b32 v252, 2, v252', 'v_lshlrev_b32 v252, 13, v252', 'v_lshl_add_u32 v252, v4, 7, v252',
              's_lshl_b32 s37, s4, 2', 's_add_u32 s37, s37, s3', 's_mul_i32 s37, s37, 40960', 's_add_u32 s37, s37, %d' % (128 * 8192)]]
        o.append(I('buffer_load_dword v252, %s, s37 offen %s lds' % (sr(SWQ), wp), tag=('PF',)))
    if OPT['warm'] & 4:
        o += [I(c) for c in ['v_bfe_u32 v253, v0, 3, 2', 'v_and_b32 v254, 7, v0', 'v_min_u32 v254, 6, v254', 'v_mul_u32_u24 v253, 896, v253', 'v_lshl_add_u32 v253, v254, 7, v253']]
    if OPT['l2pf']:
        o += [I('v_and_b32 v251, 15, v0'), I('v_lshlrev_b32 v251, 7, v251'), I('v_lshrrev_b32 v255, 4, v0'), I('v_lshlrev_b32 v255, 14, v255'),
              I('s_lshl_b32 s%d, s3, 12' % sPFt), I('v_add_u32 v255, s%d, v255' % sPFt)]
    o.append(W(vm=('Wq', 0, 3))); o.append(I('s_barrier'))
    for qb in range(4): o.append(rd_x(0, qb))
    for n in range(4): o += rd_wq(0, n)
    o.append(W(lg=('fWq', 0, 0, 1)))
    stamp(o)
    zero = ['v_accvgpr_write_b32 a%d, 0' % i for i in range(80, 256)]
    for i in range(14):
        mf = []
        for n in range(16):
            ds, T = n >> 1, n & 1
            for qb in range(4):
                d = ACC(ds, qb, T)
                mf.append(I('%s %s, %s, %s, %s' % (MF, d, ar(ARING(n)), ar(XF(i & 1, qb)), '0' if i == 0 else d)))
        G = Gaps(mf)
        for g in range(16):
            nx = g + 4
            if nx < 16:
                for r in rd_wq(i, nx): G.put(4 * g + 3, r)
            elif i < 13:
                for r in rd_wq(i + 1, nx - 16): G.put(4 * g + 3, r)
            if g < 15:
                if g == 12 and i < 13:
                    G.put(4 * g + 2, W(lg=('fWq', i, g + 1, 1), vm=[('Wq', i + 1, 3), ('X', i + 1, 3)])); G.put(4 * g + 2, 's_barrier')
                else: G.put(4 * g + 2, W(lg=('fWq', i, g + 1, 1)))
            elif i < 13: G.put(4 * g + 2, W(lg=('fX', i + 1, 3)))
        if i < 13:
            for qb in range(4): G.put(52 + qb // 2, rd_x(i + 1, qb))
        dm = []
        if i <= 9:
            dm = [dma_x(i + 4, p, sT0) for p in range(4)] + [dma_wq(i + 4, p, sT0) for p in range(4)]
        else:
            dm = [dma_kv_imm('K', i - 10, p, sT0) for p in range(4)]
            if i < 13: dm += [dma_kv_imm('V', i - 10, p, sT0) for p in range(4)]
        grp = [1, 2, 4, 5, 7, 8, 10, 11][:len(dm)]
        if OPT['pf'] and pflist(OPT['pf'])[i]: dm += pf_items(pflist(OPT['pf'])[i]); grp += [14, 15]
        if OPT['l2pf']:
            ks = [k for k, c in enumerate(OPT['l2at']) if int(c, 36) == i]
            for k, g in zip(ks, (14, 15)): dm.append(l2_items(k)); grp = grp + [g]
            if OPT['l2two'] and ks:
                assert len(ks) == 1
                d = dm[-1][1]
                dm.append(([], I(d.text.split(' offen')[0] + ' offen %s lds' % OPT['l2two'].replace('+', ' ').replace('none', ''), tag=('PF',)))); grp = grp + [15]
            assert len(ks) <= 2
        if OPT['warm'] & 4 and i == OPT['woat']:
            assert len(grp) == len([g for g in grp if g < 14])
            dm.append(([I(c) for c in ['s_lshl_b32 s37, s4, 2', 's_add_u32 s37, s37, s3', 's_mul_i32 s37, s37, 3584', 's_mov_b32 m0, %d' % (9 * SLOT)]],
                       I('buffer_load_dword v253, %s, s37 offen %s lds' % (sr(SWO), wp), tag=('PF',)))); grp = grp + [15]
        put_dmas(G, dm, grp)
        if i == 12:
            G.chain(['s_mov_b32 s%d, s48' % SDBG, 's_mov_b32 s%d, s49' % (SDBG + 1), 's_movk_i32 s%d, 256' % (SDBG + 2),
                     's_mul_i32 s%d, s4, 229376' % sT1, 's_add_u32 s%d, s46, s%d' % (SOUT, sT1), 's_addc_u32 s%d, s47, 0' % (SOUT + 1), 's_mov_b32 s%d, 229376' % (SOUT + 2)], 8)
        if i == 13:
            G.chain(['s_and_b32 s%d, s6, 3' % sFCO, 's_lshl_b32 s%d, s%d, 2' % (sFCO, sFCO), 's_add_u32 s%d, s%d, s3' % (sFCO, sFCO), 's_lshl_b32 s%d, s%d, 2' % (sFCO, sFCO),
                     's_add_u32 s%d, s%d, s%d' % (sFCO, sFCO, sPLO), 's_add_u32 s%d, s%d, 64' % (sFCO, sFCO),
                     's_lshl_b32 s%d, s3, 7' % sPCO, 's_add_u32 s%d, s%d, %d' % (sPCO, sPCO, FLOFF + 64), 's_sub_u32 s%d, s%d, s%d' % (sPCO, sPCO, sPLO)], 30)
        if OPT['pad1']:
            for k in range(int(OPT['pad1'][i], 36)): G.put(6 + 8 * k, 's_nop 15', force=True)
        gp = 0
        while zero and gp < 64:
            z = I(zero[0])
            if G.fits(gp, z): G.put(gp, z); zero.pop(0)
            else: gp += 1
        o += G.flat()
    assert not zero
    stamp(o)
    o.append(I('s_nop 3'))
    def conv(src, dst):
        r = []
        for k in range(4): r.append(I('v_pk_mul_f32 %s, %s, %s' % (vr(src + 2 * k, 2), vr(src + 2 * k, 2), sr(sSC, 2))))
        for k in range(4): r.append(I('v_cvt_pk_bf16_f32 v%d, v%d, v%d' % (dst + k, src + 2 * k, src + 2 * k + 1)))
        return r
    pq = pflist(OPT['pfq'])
    for f in range(28):
        o += conv(8 * f, 4 * f)
        if f in (6, 20) and pq:
            n = pq.pop(0)
            if n:
                for pre, d in pf_items(n): o += pre + [I('s_nop 0'), d]
    o.append(W(vm=('K', 0, 3))); o.append(I('s_barrier'))
    for n in range(4): o += rd_k(0, n)
    for k in range(32): o.append(I('v_accvgpr_read_b32 v%d, a%d' % (128 + k, k)))
    for qb in range(4): o += conv(128 + 8 * qb, Q(7, qb))
    o.append(W(lg=('fK', 0, 0, 1)))
    return o

def softmax_items(buf, qb):
    b = S(buf, qb); lt = LT0 + qb
    it = []
    for k in range(8):
        it.append(('e', k, I('v_exp_f32 v%d, v%d' % (b + k, b + k))))
        if k == 1: it.append(('v', k, I('v_add_f32 v%d, v%d, v%d' % (lt, b, b + 1))))
        elif k > 1: it.append(('v', k, I('v_add_f32 v%d, v%d, v%d' % (lt, lt, b + k))))
        if k & 1: it.append(('v', k, I('v_cvt_pk_bf16_f32 v%d, v%d, v%d' % (b + k // 2, b + k - 1, b + k))))
    return it

def place_softmax(G, buf, qbs, expgaps):
    eg = list(expgaps); pend = []
    for qb in qbs:
        for kind, k, ins in softmax_items(buf, qb):
            if kind == 'e':
                gp = eg.pop(0); G.put(gp, ins); last = gp
            else: pend.append((ins, last + 1))
    return pend

def place_chain(G, pend):
    cur = 0
    for ins, lo in pend: cur = G.place(ins, max(cur, lo))
    return cur

stubs = []
def check_items(t):
    lab = 'RS_%d' % (t % 4 if t < 28 else t)
    if lab not in [s[0] for s in stubs]: stubs.append((lab, t & 1))
    return [I('v_max_f32 v%d, v%d, v%d' % (vTM, vTM, LT0 + 3)), I('v_cmp_lt_f32 vcc, s%d, v%d' % (sTHR, vTM)),
            I('s_cbranch_vccnz %s' % lab), I('%s_RET:' % lab)]

def qk_mfmas(t1, first):
    mf = []
    for n in range(16):
        T, ds = n >> 3, n & 7
        for qb in range(4):
            d = vr(S(t1 & 1, qb, T))
            c = d if ds else ('0' if first else vr(NEGM(qb)))
            mf.append(I('%s %s, %s, %s, %s' % (MF, d, vr(RING(n)), vr(Q(ds, qb)), c)))
    return mf
def pv_mfmas(t):
    mf = []
    for db in range(16):
        for qb in range(4):
            d = ar(O(db, qb))
            mf.append(I('%s %s, %s, %s, %s' % (MF, d, vr(RING(db)), vr(S(t & 1, qb)), d)))
    return mf

def prologue():
    o = []
    G = Gaps(qk_mfmas(0, True))
    for g in range(16):
        nx = g + 4
        for r in (rd_k(0, nx) if nx < 16 else rd_k(1, nx - 16)): G.put(4 * g + 3, r)
        if g == 12:
            G.put(4 * g + 2, W(lg=('fK', 0, g + 1, 1), vm=[('K', 1, 3), ('V', 0, 3)])); G.put(4 * g + 2, 's_barrier')
        elif g < 15: G.put(4 * g + 2, W(lg=('fK', 0, g + 1, 1)))
        else: G.put(4 * g + 2, W(lg=('fK', 1, 0, 1)))
    G.chain(adv(sKO) + adv(sVO))
    pq = pflist(OPT['pfq'])[2:]
    dm = []; grp = []
    for k, n in enumerate(pq[:2]):
        if n: dm += pf_items(n); grp += [8 * k + 3, 8 * k + 5]
    put_dmas(G, dm, grp)
    if dm: G.cap = 3
    G.chain(['v_accvgpr_write_b32 a%d, 0' % i for i in range(80)])
    if OPT['prel']: o.insert(0, I('buffer_load_dword v254, off, %s, s%d sc1' % (sr(SDBG), sCO), tag=('Prel',)))
    o += G.flat()
    A = lambda s: o.append(I(s))
    if OPT['prel'] == 2: o.append(W(vm=('Prel',)))
    A('v_mbcnt_lo_u32_b32 v252, -1, 0'); A('v_mov_b32 v253, s%d' % sREG)
    A('v_or_b32 v252, s3, v252'); A('v_lshl_add_u32 v252, v252, 8, s6')
    if OPT['forceslow'] == 2:
        A('s_and_b32 s%d, s4, 1' % sT0); A('s_lshl_b32 s%d, s%d, 8' % (sT0, sT0)); A('s_cmp_eq_u32 s6, 0'); A('s_cselect_b32 s%d, s%d, 0' % (sT0, sT0)); A('v_add_u32 v252, s%d, v252' % sT0)
    o.append(I('buffer_store_byte v253, v252, %s, s%d offen' % (sr(SDBG), sCO), tag=('Reg',)))
    A('s_nop 1')
    tm = [244, 245, 246, 247]; tc = [248, 249, 250, 251]
    for st in range(4):
        for qb in range(4):
            b = S(0, qb)
            if st == 0: A('v_max3_f32 v%d, v%d, v%d, v%d' % (tm[qb], b, b + 1, b + 2))
            elif st < 3: A('v_max3_f32 v%d, v%d, v%d, v%d' % (tm[qb], tm[qb], b + 2 * st + 1, b + 2 * st + 2))
            else: A('v_max_f32 v%d, v%d, v%d' % (tm[qb], tm[qb], b + 7))
    for sw in ('v_permlane32_swap_b32', 'v_permlane16_swap_b32'):
        for qb in range(4): A('v_mov_b32 v%d, v%d' % (tc[qb], tm[qb]))
        for qb in range(4): A('%s v%d, v%d' % (sw, tm[qb], tc[qb]))
        for qb in range(4): A('v_max_f32 v%d, v%d, v%d' % (tm[qb], tm[qb], tc[qb]))
    for qb in range(4):
        for r in range(4): A('v_sub_f32 v%d, 0, v%d' % (NEGM(qb) + r, tm[qb]))
    for qb in range(4):
        for k in range(8): A('v_sub_f32 v%d, v%d, v%d' % (S(0, qb) + k, S(0, qb) + k, tm[qb]))
    i0 = softmax_items(0, 0); i1 = softmax_items(0, 1)
    for x, y in zip(i0, i1): o.append(x[2]); o.append(y[2])
    return o

def padput(G, n, t, half):
    if OPT['padp']:
        prof = [int(c, 36) for c in OPT['padp']]
        mx = max(prof)
        for k in range(half, mx, 2):
            gp = 6 + 10 * (k // 2)
            if t >= 28:
                if prof[7] > k: G.put(gp, 's_nop 15', force=True)
                continue
            N = sum(1 for p in prof[:7] if p > k)
            if N == 0: continue
            lab = 'PAD_%d_%d' % (t % 4, k)
            if N < 7:
                G.put(gp, 's_cmp_lt_u32 s%d, %d' % (sLC, N), force=True); G.put(gp, 's_cbranch_scc0 %s' % lab, force=True)
            G.put(gp, 's_nop 15', force=True)
            if N < 7: G.put(gp, I(lab + ':'), force=True)
        return
    cond = OPT['padit'] or OPT['padfrom']
    if cond and t >= 28:
        if OPT['padit']: return
        cond = False
    for k in range(n):
        gp = 10 + 12 * k
        if cond:
            lab = 'PAD_%d_%d_%d' % (t % 4, half, k)
            G.put(gp, ('s_cmp_lt_u32 s%d, %d' % (sLC, OPT['padit'])) if OPT['padit'] else ('s_cmp_ge_u32 s%d, %d' % (sLC, OPT['padfrom'])), force=True)
            G.put(gp, 's_cbranch_scc0 %s' % lab, force=True)
        G.put(gp, 's_nop 15', force=True)
        if cond: G.put(gp, I(lab + ':'), force=True)

def step(t):
    o = []
    cur = t & 1
    max3 = I('v_max3_f32 v%d, v%d, v%d, v%d' % (vTM, LT0, LT0 + 1, LT0 + 2))
    ladd = [I('v_add_f32 v%d, v%d, v%d' % (L0 + q, L0 + q, LT0 + q)) for q in range(4)]
    if t < 28: dK = [dma_kv('K', t + 4, t % 4, p, sKO) for p in range(4)]
    else: dK = [dma_wo((t - 28) // 2, (t - 28) % 2, p, sT0) for p in range(4)]
    if t < 29: dV = [dma_kv('V', t + 3, 4 + (t + 3) % 4, p, sVO) for p in range(4)]
    else: dV = [dma_wo(2 + (t - 29) // 2, (t - 29) % 2, p, sT0) for p in range(4)]
    if OPT['drop'] and t < 28:
        prof = [int(c) for c in OPT['drop']]
        order = [('K', 3), ('V', 3), ('K', 1), ('V', 1), ('K', 2), ('V', 2)]
        for k, (w, p) in enumerate(order):
            N = sum(1 for q in prof if q > k)
            if not N: continue
            lst, so = (dK, sKO) if w == 'K' else (dV, sVO)
            pre, d = lst[p]
            pre2 = [I('s_cmp_lt_u32 s%d, %d' % (sLC, N)), I('s_cselect_b32 s37, 0, s%d' % so)] + pre
            lst[p] = (pre2, I(d.text.replace(', s%d offen' % so, ', s37 offen').replace(OPT['kvpol'].replace('+', ' '), ''), tag=d.tag))
    if t < 31:
        G = Gaps(qk_mfmas(t + 1, False))
        for g in range(16):
            nx = g + 4
            for r in (rd_k(t + 1, nx) if nx < 16 else rd_v(t, nx - 16)): G.put(4 * g + 3, r)
            G.put(4 * g + 2, W(lg=('fK', t + 1, g + 1, 1) if g < 15 else ('fV', t, 0, 1)))
        eg = [0, 4, 5, 8, 12, 13] + [4 * g for g in range(4, 14)]
        pend = place_softmax(G, cur, (2, 3), eg)
        put_dmas(G, dK, [5, 7, 9, 11])
        if t == 28:
            cz = G.chain(['v_mbcnt_lo_u32_b32 v%d, -1, 0' % vTM, 'v_and_b32 v%d, 3, v%d' % (vTM, vTM), 'v_lshlrev_b32 v%d, 2, v%d' % (vTM, vTM)], 1, 20)
            softplace(G, I('buffer_load_dword v%d, v%d, %s, s%d offen sc1' % (vCAS, vTM, sr(SDBG), sCO), tag=('Chk',)), cz + 1, 20)
        idx = [k for k, (ins, lo) in enumerate(pend) if ins.mn == 'v_add_f32' and ins.ops[0] == 'v%d' % (LT0 + 2)][-1]
        pend.insert(idx + 1, (max3, pend[idx][1]))
        cg = place_chain(G, pend)
        ck = check_items(t)
        cg = G.place(ck[0], cg); cg = G.place(ck[1], cg); cg = G.place(ck[2], cg + 1); G.put(cg, ck[3])
        assert cg >= 36
        G.chain(ladd, cg)
        padput(G, (OPT['pad'] + 1) // 2, t, 0)
        o += G.flat()
    else:
        for pre, d in dK: o += pre; o.append(I('s_nop 0')); o.append(d)
        i0 = softmax_items(cur, 2); i1 = softmax_items(cur, 3)
        for x, y in zip(i0, i1): o.append(x[2]); o.append(y[2])
        o.append(max3); o += check_items(t); o += ladd
    G = Gaps(pv_mfmas(t))
    if t < 30: nxt_rd = lambda n: rd_k(t + 2, n); nxt_tag = ('fK', t + 2, 0, 1); vmw = [('K', t + 2, 3), ('V', t + 1, 3)] + ([('Chk',)] if t == 29 else [])
    elif t == 30: nxt_rd = lambda n: rd_v(31, n); nxt_tag = ('fV', 31, 0, 1); vmw = [('V', 31, 3)]
    else: nxt_rd = lambda n: rd_wo(0, n); nxt_tag = ('fWo', 0, 0, 1); vmw = [('Wo', 0, 1, 3)]
    for g in range(16):
        nx = g + 4
        for r in (rd_v(t, nx) if nx < 16 else nxt_rd(nx - 16)): G.put(4 * g + 3, r)
        if g == 12:
            G.put(4 * g + 2, W(lg=('fV', t, g + 1, 1), vm=vmw)); G.put(4 * g + 2, 's_barrier')
        else: G.put(4 * g + 2, W(lg=('fV', t, g + 1, 1) if g < 15 else nxt_tag))
    pend = []
    if t < 31: pend = place_softmax(G, cur ^ 1, (0, 1), [4 * g for g in range(16)])
    grp = [1, 3, 5, 7]
    if OPT['pfl'] and t < 28:
        if t == 0 and pfstate['n'] != OPT['pfl']: raise SystemExit('last pfq must equal pfl')
        dV = dV + pf_items(OPT['pfl']); grp = grp + [10, 11]
    put_dmas(G, dV, grp)
    place_chain(G, pend)
    if t < 31:
        G.chain(adv(sKO), 34)
        if t < 28: G.chain(adv(sVO), 34)
    padput(G, OPT['pad'] // 2, t, 1)
    if t == 30 and OPT['ptouch']:
        sh = OPT['ptouch']; R = OPT['ring']
        cz = 32
        for c in ['v_mbcnt_lo_u32_b32 v%d, -1, 0' % vTM, 's_mul_i32 s%d, s3, %d' % (sVO, R * 4096), 'v_mbcnt_hi_u32_b32 v%d, -1, v%d' % (vTM, vTM),
                  's_add_u32 s%d, s%d, s%d' % (sVO, sVO, sPO), 'v_lshlrev_b32 v%d, %d, v%d' % (vTM, sh, vTM)]: cz = softplace(G, c, cz, cz + 3)
        n = -(-R * 4096 // (64 << sh))
        for k in range(n):
            cz = softplace(G, I('buffer_load_dword v%d, v%d, %s, s%d offen' % (vFV, vTM, sr(SWS), sVO), tag=('PT', k)), cz + 1, min(63, cz + 4))
            if k < n - 1: cz = softplace(G, 's_add_u32 s%d, s%d, %d' % (sVO, sVO, 64 << sh), cz + 1, cz + 4) + 4
    if t == 29:
        ch = ['v_cmp_ne_u32 vcc, s%d, v%d' % (sFULL, vCAS), 'v_mbcnt_lo_u32_b32 v%d, -1, 0' % vTM, 's_or_b32 s%d, s6, s3' % sVO, 'v_or_b32 v%d, s%d, v%d' % (vTM, sVO, vTM),
              's_cmp_eq_u64 vcc, 0', 's_cselect_b32 s%d, 32, 64' % sVO, 'v_lshlrev_b32 v%d, 8, v%d' % (vTM, vTM), 's_or_b32 s%d, s%d, s%d' % (sVO, sVO, sREG), 'v_mov_b32 v%d, s%d' % (vCAS, sVO),
              I('buffer_store_byte v%d, v%d, %s, s%d offen' % (vCAS, vTM, sr(SDBG), sCO), tag=('Dec',))]
        cz = 52
        for k, c in enumerate(ch): cz = softplace(G, c, min(63, cz + (k in (4, 9))), min(63, cz + 2))
    if t < 28 and t % 4 == 3:
        gp = G.place('s_add_u32 s%d, s%d, 1' % (sLC, sLC), 44); G.place('s_cmp_lt_u32 s%d, 7' % sLC, max(gp + 1, 52))
        G.put(63, 's_cbranch_scc1 L_LOOP', force=True)
    if t == 31:
        ch = []
        for sw in ('v_permlane32_swap_b32', 'v_permlane16_swap_b32'):
            ch += ['v_mov_b32 v%d, v%d' % (LT0 + q, L0 + q) for q in range(4)]
            ch += ['%s v%d, v%d' % (sw, L0 + q, LT0 + q) for q in range(4)]
            ch += ['v_add_f32 v%d, v%d, v%d' % (L0 + q, L0 + q, LT0 + q) for q in range(4)]
        ch += ['v_rcp_f32 v%d, v%d' % (L0 + q, L0 + q) for q in range(4)]
        G.chain(ch, 0)
        ch = ['v_mbcnt_lo_u32_b32 v255, -1, 0', 'v_mbcnt_hi_u32_b32 v255, -1, v255', 's_mov_b32 s%d, 229376' % sVO,
              'v_and_b32 v243, 15, v255', 'v_lshrrev_b32 v254, 4, v255',
              'v_lshl_add_u32 v%d, v255, 9, s%d' % (vFL, sFLO), 'v_lshl_add_u32 v%d, v243, 4, s%d' % (vRL, sRLO),
              'v_writelane_b32 v%d, s%d, 1' % (vFL, sFCO), 'v_mad_u32_u24 v%d, v254, s%d, v%d' % (vRL, sVO, vRL)]
        ch += ['v_add_u32 v%d, %d, v%d' % (vRL + j, j * 917504, vRL) for j in (1, 2, 3)]
        ch += ['v_and_b32 v255, 1, v254', 'v_mul_lo_u32 v255, v255, s%d' % sPCO, 'v_lshl_add_u32 v%d, v243, 2, s%d' % (vPL, sPLO), 'v_add_u32 v%d, v255, v%d' % (vPL, vPL)]
        ch += ['v_lshrrev_b32 v255, 1, v254', 'v_lshlrev_b32 v254, 5, v254', 'v_lshl_add_u32 v254, v255, 20, v254', 'v_add_u32 v254, s%d, v254' % sOUO,
               'v_lshrrev_b32 v255, 2, v243', 'v_lshl_add_u32 v254, v255, 3, v254', 'v_and_b32 v255, 3, v243', 'v_mul_u32_u24 v255, 896, v255', 'v_add_u32 v%d, v255, v254' % vOUT]
        ch += ['v_and_b32 v255, 1, v243', 'v_lshlrev_b32 v255, 4, v255', 'v_lshlrev_b32 v255, v255, v%d' % vSEL, 'v_lshrrev_b32 v%d, 1, v243' % (vSEL + 3), 'v_lshlrev_b32 v%d, v%d, 1' % (vSEL + 3, vSEL + 3)]
        ch.insert(0, 'v_mov_b32 v%d, 0x3f80' % vSEL)
        for r in range(4): ch += ['v_bfe_i32 v%d, v%d, %d, 1' % (vSEL + r, vSEL + 3, r), 'v_and_b32 v%d, v255, v%d' % (vSEL + r, vSEL + r)]
        ch += ['v_lshl_add_u32 v%d, v243, 2, s%d' % (vPL2, sPLO), 'v_mul_i32_i24 v%d, %d, v243' % (vB, OPT['ring'] - 2 * OPT['lag'] + 2)]
        G.cap = 3
        G.chain(ch, 0)
    o += G.flat()
    return o

def oconv():
    o = []
    A = lambda s: o.append(I(s))
    k = 0
    for ds in range(8):
        for qb in range(4):
            tmp = 128 + 8 * (k % 4); k += 1
            for T in range(2):
                for r in range(4): A('v_accvgpr_read_b32 v%d, a%d' % (tmp + 4 * T + r, O(2 * ds + T, qb) + r))
            for j in range(4): A('v_cvt_pk_bf16_f32 v%d, v%d, v%d' % (Q(ds, qb) + j, tmp + 2 * j, tmp + 2 * j + 1))
    return o

def ringadv(reg, hc, R):
    return 's_add_u32 s%d, s%d, 16384' % (reg, reg) if (hc + 1) % R else 's_sub_u32 s%d, s%d, %d' % (reg, reg, (R - 1) * 16384)
def epi_items(hc, pol, R=14):
    buf = hc & 1; it = []
    if R != 14 and hc >= 14 - OPT['stlast']: pol = OPT['stpol2'].replace('+', ' ')
    for qb in range(4):
        b = S(buf, qb)
        for j in range(4):
            it.append(I('v_mul_f32 v%d, v%d, v%d' % (b + 2 * j, b + 2 * j, L0 + qb)))
            it.append(I('v_mul_f32 v%d, v%d, v%d' % (b + 2 * j + 1, b + 2 * j + 1, L0 + qb)))
            it.append(I('v_cvt_pk_bf16_f32 v%d, v%d, v%d' % (b + j, b + 2 * j, b + 2 * j + 1)))
        it.append(I('buffer_store_dwordx4 %s, v%d, %s, s%d offen offset:%d %s' % (vr(b), vST, sr(SWS), sPO, qb * 1024, pol), tag=('St', hc, qb)))
    it.append(I(ringadv(sPO, hc, R)))
    return it

def rd_wo8(hc, n):
    ds, T = n >> 1, n & 1
    nt = 2 * (hc & 1) + T
    r = RING8(n)
    return [I('ds_read_b64_tr_b16 %s, v%d offset:%d' % (vr(r + 2 * rho, 2), vOA + nt, (4 * ds + 2 * rho) * 1088), tag=('fWo', hc, n, rho)) for rho in (0, 1)]
def red_loads(hc, rb): return [I('buffer_load_dwordx4 %s, v%d, %s, s%d offen %s' % (ar(rb + 4 * j), vRL + j, sr(SWS), sCO, 'sc1' if hc == 99 else OPT['rlpol'].replace('+', ' ').replace('none', '')), tag=('RL', hc, j)) for j in range(4)]
def red_mfmas(rb, d=vRD): return [I('%s %s, %s, %s, %s' % (MF, vr(d), vr(vSEL), ar(rb + 4 * j), vr(d) if j else '0')) for j in range(4)]
def red_out(hc, d=vRD, cv=vCV):
    return [I('v_cvt_pk_bf16_f32 v%d, v%d, v%d' % (cv, d, d + 1)), I('v_cvt_pk_bf16_f32 v%d, v%d, v%d' % (cv + 1, d + 2, d + 3)),
            I('buffer_store_dwordx2 %s, v%d, %s, 0 offen offset:%d %s' % (vr(cv, 2), vOUT, sr(SOUT), hc * 64, OPT['outpol'].replace('+', ' ')), tag=('Out', hc))]
def poll(tag, a=vPL): return I('buffer_load_dword v%d, v%d, %s, 0 offen sc1' % (vPR, a, sr(SWS)), tag=tag)
def flag(val):
    R, LAG = OPT['ring'], OPT['lag']
    if val + 1 - LAG >= 0: r = [I('v_add_u32 v%d, %d, v%d' % (vFV, val, vB))]
    else: r = [I('v_mov_b32 v%d, %d' % (vFV, R - LAG + 1)), I('v_writelane_b32 v%d, %d, 0' % (vFV, val))]
    return r + [I('buffer_store_dword v%d, v%d, %s, 0 offen' % (vFV, vFL, sr(SWS)), tag=('Fl', val))]
spins = []
def spin_stub(lab, thr, a):
    o = []
    A = lambda s: o.append(I(s))
    A('%s:' % lab); A('s_movk_i32 s%d, 0x7fff' % sT1)
    A('%s_L:' % lab); o.append(poll(None, a)); A('s_waitcnt vmcnt(0)'); A('v_cmp_gt_u32 vcc, %d, v%d' % (thr, vPR))
    A('s_sub_u32 s%d, s%d, 1' % (sT1, sT1)); A('s_cbranch_scc1 %s_RET' % lab); A('s_cbranch_vccnz %s_L' % lab); A('s_branch %s_RET' % lab)
    return o

def softplace(G, ins, lo, hi=None):
    if isinstance(ins, str): ins = I(ins)
    hi = G.n - 1 if hi is None else hi
    for gp in range(lo, hi + 1):
        if G.fits(gp, ins): return G.put(gp, ins)
    for extra in (1, 2, 3, 4):
        for gp in range(lo, hi + 1):
            if G.used[gp] + ins.cost <= G.cap + extra and not (ins.kind == 'ds' and any(x.kind == 'valu' for x in G.g[gp])):
                return G.put(gp, ins, force=True)
    raise AssertionError(('no room', ins.text))

def phase3(fast):
    o = []
    LAG = OPT['lag']
    pol = OPT['stpol'].replace('+', ' ') if fast else 'sc1'
    R = OPT['ring'] if fast else 14
    for hc in range(14):
        p = hc
        mf = []
        consume = fast and p - LAG - 1 >= 0
        red = red_mfmas(0) if consume else []
        rpos = {40: 0, 42: 1, 44: 2, 46: 3}
        gi = {}
        for n in range(16):
            ds, T = n >> 1, n & 1
            for qb in range(4):
                d = vr(S(hc & 1, qb, T))
                k = 4 * n + qb
                if red and k in rpos: mf.append(red[rpos[k]])
                gi[k] = len(mf)
                mf.append(I('%s %s, %s, %s, %s' % (MF, d, vr(RING8(n)), vr(Q(ds, qb)), d if ds else '0')))
        G = Gaps(mf)
        ch = hc >> 1
        dopoll = fast and p >= LAG
        if consume:
            rl = red_loads(p - LAG - 1, 0)
            G.put(0, rl[2]); G.put(5, rl[3]); G.put(6, ringadv(sCO, p - LAG - 1, R))
        if dopoll: G.put(OPT['ppos'], poll(('Poll', p)))
        for g in range(16):
            nx = g + 7
            if nx < 16 or hc < 13:
                for r in (rd_wo8(hc, nx) if nx < 16 else rd_wo8(hc + 1, nx - 16)): G.put(gi[4 * g + 3], r)
            if g & 1:
                if g < 15: lg = ('fWo', hc, g + 2 if g < 14 else 15, 1)
                else: lg = ('fWo', hc + 1, 1, 1) if hc < 13 else None
                vm = []
                if g == 9:
                    if (hc & 1) and hc < 13: vm.append(('Wo', ch + 1, 1, 3))
                    if dopoll: vm.append(('Poll', p))
                    elif fast and p >= 2: vm.append(('St', p - 2, 3))
                if lg or vm: G.put(gi[4 * g + 2], W(lg=lg, vm=vm or None))
                if g == 9 and (hc & 1) and hc < 13: G.put(gi[4 * g + 2], 's_barrier')
        dm = []
        if hc == 0: dm = [dma_wo(3, 1, q, sT0) for q in range(4)]
        elif 2 <= hc <= 7: dm = [dma_wo(3 + hc // 2, hc & 1, q, sT0) for q in range(4)]
        put_dmas(G, dm, ([4, 5, 7, 8] if fast else [1, 2, 3, 4])[:len(dm)])
        after = gi[38] + 1
        stlo = 0
        if fast and p >= 2:
            f = flag(p - 1)
            cg = G.chain(f[:-1], 30); softplace(G, f[-1], max(after, cg + 1))
        if dopoll:
            lab = 'SP_%d' % p
            spins.append((lab, p - LAG + 1, vPL))
            cg = G.place('v_cmp_gt_u32 vcc, %d, v%d' % (p - LAG + 1, vPR), after)
            cg = G.place('s_cbranch_vccnz %s' % lab, cg + 1); G.put(cg, I('%s_RET:' % lab))
            stlo = cg + 1
            rl = red_loads(p - LAG, 0)
            softplace(G, rl[0], gi[53]); softplace(G, rl[1], gi[61])
        og = 0
        if fast and p - LAG - 2 >= 0: og = softplace(G, red_out(p - LAG - 2)[2], gi[44])
        if consume:
            ro = red_out(p - LAG - 1)
            cg = softplace(G, ro[0], max(gi[46] + 6, og + 1)); cg = softplace(G, ro[1], cg)
        if hc < 12:
            delta = 34816 if (ch + 1) % 4 else -3 * 34816
            pair = (0, 1) if hc % 2 == 0 else (2, 3)
            for nt in pair:
                softplace(G, ('v_add_u32 v%d, %d, v%d' % (vOA + nt, delta, vOA + nt)) if delta > 0 else ('v_subrev_u32 v%d, %d, v%d' % (vOA + nt, -delta, vOA + nt)), gi[36])
        if hc > 0:
            cur = 0; last = stlo
            ep = epi_items(hc - 1, pol, R)
            if stlo:
                pre = {}
                for ins, tg in zip([x for x in ep if x.kind == 'vst'][:3], (stlo, gi[46], gi[50])): last = pre[ins.tag] = softplace(G, ins, tg)
            for ins in ep:
                if ins.kind == 'vst':
                    if stlo and ins.tag in pre: assert cur < pre[ins.tag], (hc, ins.tag, cur, pre)
                    else: last = softplace(G, ins, max(cur + 1, last))
                elif ins.kind == 'salu': softplace(G, ins, last)
                else: cur = softplace(G, ins, cur)
        o += G.flat()
    if not fast:
        o.append(I('s_nop 7'))
        o += epi_items(13, pol, R)
    return o

def fast_tail():
    o = []
    A = lambda s: o.append(I(s))
    LAG = OPT['lag']; R = OPT['ring']
    h0 = 13 - LAG
    ep = epi_items(13, OPT['stpol'].replace('+', ' '), R)
    rl = red_loads(h0, 0)
    o += rl[2:]; A(ringadv(sCO, h0, R))
    o.append(poll(('Poll', 14)))
    f = flag(13); o += f[:-1]
    A('s_nop 2')
    o += ep[:12]
    o.append(W(vm=('Poll', 14))); o.append(f[-1])
    spins.append(('SP_14', 15 - LAG, vPL))
    A('v_cmp_gt_u32 vcc, %d, v%d' % (15 - LAG, vPR)); o += ep[13:15]; A('s_cbranch_vccnz SP_14'); A('SP_14_RET:')
    o.append(ep[12]); o += ep[15:-1]
    o += red_loads(h0 + 1, 16); A(ringadv(sCO, h0 + 1, R))
    o.append(red_out(h0 - 1)[2])
    o += red_mfmas(0)
    A('v_mov_b32 v%d, 14' % vFV)
    o.append(W(vm=('St', 13, 3)))
    o.append(I('buffer_store_dword v%d, v%d, %s, 0 offen' % (vFV, vFL, sr(SWS)), tag=('Fl', 14)))
    o.append(poll(('Poll', 15), vPL2))
    o.append(W(vm=('RL', h0 + 1, 3)))
    o += red_mfmas(16, 128)
    ro0 = red_out(h0); o += ro0[:2]
    o.append(W(vm=('Poll', 15)))
    spins.append(('SP_15', 14, vPL2))
    A('v_cmp_gt_u32 vcc, 14, v%d' % vPR); A('s_nop 0'); A('s_cbranch_vccnz SP_15'); A('SP_15_RET:')
    rest = list(range(h0 + 2, 14))
    for k, hc in enumerate(rest):
        o += red_loads(hc, 16 * k + 32); A(ringadv(sCO, hc, R))
    o.append(ro0[2])
    o += red_out(h0 + 1, 128, 132)
    mm = [red_mfmas(16 * k + 32, 136 + 8 * k) for k in range(len(rest))]
    o.append(W(vm=('RL', 13, 3)))
    for j in range(4):
        for m in mm: o.append(m[j])
    A('s_nop 7')
    for k, hc in enumerate(rest): o += red_out(hc, 136 + 8 * k, 140 + 8 * k)
    return o

def dec_load(tag=None): return I('buffer_load_dword v%d, off, %s, s%d sc1' % (vCAS, sr(SDBG), sCO), tag=tag)
def decide():
    o = []
    A = lambda s: o.append(I(s))
    o.append(W(vm=('DecL',)))
    A('v_readfirstlane_b32 s%d, v%d' % (sT0, vCAS))
    A('s_bitcmp1_b32 s%d, 5' % sT0); A('s_cbranch_scc0 L_DECIDE'); A('L_FAST:'); A('s_mov_b32 s%d, 0' % sCO)
    return o

def slow_path(pro):
    o = []
    A = lambda s: o.append(I(s))
    A('L_DECIDE:')
    A('v_mbcnt_lo_u32_b32 v237, -1, 0'); A('v_lshl_add_u32 v237, v237, 8, s6')
    A('s_mov_b32 s%d, 0x40000' % sLC)
    A('L_DEC_A:')
    o.append(dec_load()); A('s_waitcnt vmcnt(0)'); A('v_readfirstlane_b32 s%d, v%d' % (sT0, vCAS))
    A('s_bitcmp1_b32 s%d, 5' % sT0); A('s_cbranch_scc1 L_FAST')
    A('s_bitcmp1_b32 s%d, 6' % sT0); A('s_cbranch_scc1 L_SLOW')
    A('s_bitcmp1_b32 s%d, 7' % sT0); A('s_cbranch_scc0 L_DEC_V')
    A('s_xor_b32 s%d, s%d, s%d' % (sT0, sT0, sREG)); A('s_and_b32 s%d, s%d, 15' % (sT0, sT0)); A('s_cbranch_scc1 L_SLOW')
    A('s_sub_u32 s%d, s%d, 1' % (sLC, sLC)); A('s_cbranch_scc0 L_DEC_A'); A('s_branch L_SLOW')
    A('L_DEC_V:')
    A('s_or_b32 s%d, s%d, 64' % (sT0, sREG)); A('v_mov_b32 v%d, s%d' % (vCAS, sT0))
    A('buffer_store_byte v%d, v237, %s, s%d offen' % (vCAS, sr(SDBG), sCO)); A('s_waitcnt vmcnt(0)')
    o.append(dec_load()); A('s_waitcnt vmcnt(0)'); A('v_readfirstlane_b32 s%d, v%d' % (sT0, vCAS))
    A('s_bitcmp1_b32 s%d, 7' % sT0); A('s_cbranch_scc1 L_DEC_A')
    A('L_SLOW:')
    o += phase3(False)
    A('s_waitcnt vmcnt(0)'); A('buffer_wbl2 sc1'); A('s_waitcnt vmcnt(0)')
    A('s_barrier'); A('s_cmp_eq_u32 s3, 0'); A('s_cbranch_scc0 L_END')
    A('s_and_b32 s%d, s6, 3' % sT0); A('s_lshl_b32 s%d, s%d, 3' % (sT0, sT0)); A('s_lshl_b32 s%d, 16, s%d' % (sT0, sT0)); A('v_mov_b32 v%d, s%d' % (vCAS, sT0))
    A('v_and_b32 v255, -4, v237')
    A('buffer_atomic_or v%d, v255, %s, s%d offen sc0 sc1' % (vCAS, sr(SDBG), sCO)); A('s_waitcnt vmcnt(0)')
    A('v_mbcnt_lo_u32_b32 v255, -1, 0'); A('v_lshrrev_b32 v%d, 2, v255' % vCAS); A('v_lshlrev_b32 v255, 2, v255'); A('v_lshl_add_u32 v255, v%d, 8, v255' % vCAS)
    A('v_mov_b32 v%d, 0' % vCAS)
    A('buffer_atomic_or v%d, v255, %s, s%d offen sc0 sc1' % (vCAS, sr(SDBG), sCO)); A('s_waitcnt vmcnt(0)')
    A('s_mov_b32 s%d, 0x10101010' % sT0); A('v_and_b32 v%d, s%d, v%d' % (vCAS, sT0, vCAS)); A('v_cmp_eq_u32 vcc, s%d, v%d' % (sT0, vCAS))
    A('s_nop 1'); A('s_and_b32 s%d, vcc_lo, 15' % sT0); A('s_cmp_eq_u32 s%d, 15' % sT0); A('s_cbranch_scc0 L_END')
    A('buffer_inv sc1'); A('s_waitcnt vmcnt(0)')
    for j in range(4): A('v_subrev_u32 v%d, s%d, v%d' % (vRL + j, sRLO, vRL + j))
    A('v_subrev_u32 v%d, s%d, v%d' % (vOUT, sOUO, vOUT))
    A('s_mov_b32 s%d, 0' % sLC)
    A('L_SLOOP:')
    A('s_lshl_b32 s%d, s%d, 8' % (sCO, sLC))
    o += red_loads(99, 0)
    A('s_bfe_u32 s%d, s%d, 0x40002' % (sT0, sLC)); A('s_mul_i32 s%d, s%d, 14336' % (sT0, sT0))
    A('s_and_b32 s%d, s%d, 3' % (sT1, sLC)); A('s_mul_i32 s%d, s%d, 3584' % (sT1, sT1)); A('s_add_u32 s%d, s%d, s%d' % (sT0, sT0, sT1))
    A('s_andn2_b32 s%d, s%d, 63' % (sT1, sLC)); A('s_add_u32 s%d, s%d, s%d' % (sT0, sT0, sT1))
    A('s_waitcnt vmcnt(0)')
    o += red_mfmas(0); A('s_nop 7')
    ro = red_out(0); o += ro[:2]
    A('buffer_store_dwordx2 %s, v%d, %s, s%d offen' % (vr(vCV, 2), vOUT, sr(SOUT), sT0))
    A('s_add_u32 s%d, s%d, 1' % (sLC, sLC)); A('s_cmp_lt_u32 s%d, 896' % sLC); A('s_cbranch_scc1 L_SLOOP')
    A('s_waitcnt vmcnt(0)'); A('s_endpgm')
    return o

def rare(par):
    o = []
    A = lambda s: o.append(I(s))
    A('RARE_%d:' % par)
    A('s_nop 7'); A('s_nop 7')
    A('v_mbcnt_lo_u32_b32 v252, -1, 0'); A('v_mbcnt_hi_u32_b32 v252, -1, v252')
    A('v_and_b32 v253, 15, v252'); A('v_lshlrev_b32 v253, 9, v253'); A('v_lshrrev_b32 v252, 4, v252'); A('v_lshl_add_u32 v252, v252, 4, v253')
    A('s_sub_u32 s%d, s%d, %d' % (sR0, sKO, 4 * 16384)); A('s_and_b32 s%d, s%d, 0x7ffff' % (sR0, sR0))
    for T in range(2):
        if T: A('s_add_u32 s%d, s%d, 8192' % (sR0, sR0))
        for ds in range(0, 8, 2):
            A('buffer_load_dwordx4 v[244:247], v252, %s, s%d offen offset:%d' % (sr(SK), sR0, ds * 64))
            A('buffer_load_dwordx4 v[248:251], v252, %s, s%d offen offset:%d' % (sr(SK), sR0, ds * 64 + 64))
            A('s_waitcnt vmcnt(0)')
            for d2 in range(2):
                for qb in range(4):
                    d = vr(S(par, qb, T))
                    A('%s %s, %s, %s, %s' % (MF, d, vr(244 + 4 * d2), vr(Q(ds + d2, qb)), d if ds + d2 else vr(NEGM(qb))))
            A('s_nop 7')
    A('s_nop 7')
    for qb in range(4):
        b = S(par, qb); y = S(par ^ 1, qb)
        A('v_max3_f32 v253, v%d, v%d, v%d' % (b, b + 1, b + 2)); A('v_max3_f32 v253, v253, v%d, v%d' % (b + 3, b + 4))
        A('v_max3_f32 v253, v253, v%d, v%d' % (b + 5, b + 6)); A('v_max_f32 v253, v253, v%d' % (b + 7))
        for sw in ('v_permlane32_swap_b32', 'v_permlane16_swap_b32'):
            A('v_mov_b32 v254, v253'); A('s_nop 1'); A('%s v253, v254' % sw); A('v_max_f32 v253, v253, v254')
        A('v_max_f32 v253, 0, v253')
        A('v_exp_f32 v255, -v253')
        for r in range(4): A('v_sub_f32 v%d, v%d, v253' % (NEGM(qb) + r, NEGM(qb) + r))
        for k in range(8): A('v_sub_f32 v%d, v%d, v253' % (y + k, y + k))
        for k in range(8): A('v_sub_f32 v%d, v%d, v253' % (b + k, b + k))
        for kind, k, ins in softmax_items(par, qb):
            o.append(ins)
            if kind == 'e': A('s_nop 0')
        A('v_mul_f32 v%d, v%d, v255' % (L0 + qb, L0 + qb))
        for db in range(0, 16, 2):
            regs = [O(db + d, qb) + r for d in range(2) for r in range(4)]
            for k, a in enumerate(regs): A('v_accvgpr_read_b32 v%d, a%d' % (244 + k, a))
            for k, a in enumerate(regs): A('v_mul_f32 v%d, v%d, v255' % (244 + k, 244 + k))
            for k, a in enumerate(regs): A('v_accvgpr_write_b32 a%d, v%d' % (a, 244 + k))
    A('s_nop 1')
    A('s_setpc_b64 %s' % sr(sRET, 2))
    return o

def dump_v(first, nfrag):
    o = []
    A = lambda s: o.append(I(s))
    A('s_nop 7'); A('s_nop 7'); A('s_waitcnt vmcnt(0) lgkmcnt(0)')
    A('s_lshl_b32 s34, s%d, 17' % sBH); A('s_add_u32 s28, s50, s34'); A('s_addc_u32 s29, s51, 0'); A('s_mov_b32 s30, 131072')
    for f in range(nfrag):
        A('s_mov_b32 s35, %d' % ((f // 4) * 16384 + (f % 4) * 1024))
        A('buffer_store_dwordx4 %s, v%d, %s, s35 offen' % (vr(first + 4 * f), vST, sr(SWS)))
    A('s_waitcnt vmcnt(0)'); A('s_endpgm')
    return o

def stamps_out():
    o = []
    if not OPT['stamps']: return o
    A = lambda s: o.append(I(s))
    A('s_waitcnt vmcnt(0)')
    A('s_memrealtime s[94:95]'); A('s_waitcnt lgkmcnt(0)')
    A('s_add_u32 s28, s50, 0x4000000'); A('s_addc_u32 s29, s51, 0'); A('s_mov_b32 s30, 0x100000')
    A('s_lshl_b32 s34, s2, 2'); A('s_add_u32 s34, s34, s3'); A('s_lshl_b32 s34, s34, 7')
    A('v_mov_b32 v1, 0')
    for k in range(32):
        A('v_mov_b32 v0, s%d' % (sST + k)); A('buffer_store_dword v0, v1, %s, s34 offen offset:%d' % (sr(SWS), 4 * k)); A('s_nop 1')
    return o

def main_kernel():
    pre = setup()
    if OPT['stamps']: pre = [I('s_memrealtime s[92:93]')] + pre
    stamp(pre)
    p1 = phase1()
    if OPT['stop'] == 'q':
        body = pre + p1 + dump_v(0, 32); loop = None; post = []; slow = []
        stream = body
    else:
        stamp(p1)
        pro = prologue()
        stamp(pro)
        iters = [sum((step(4 * it + k) for k in range(4)), []) for it in range(7)]
        if OPT['stamps'] == 2:
            for it in iters:
                it[0:0] = [I('s_waitcnt lgkmcnt(0)'), I('s_memrealtime s[96:97]'), I('s_waitcnt lgkmcnt(0)'), ] + [I('s_mov_b32 s%d, s%d' % (84 + k, 85 + k)) for k in range(6)] + [I('s_mov_b32 s90, s96')]
        tail = []
        stamp(tail)
        for t in range(28, 32): tail += step(t)
        stamp(tail)
        for n in (4, 5, 6): tail += rd_wo8(0, n)
        tail.append(dec_load(('DecL',)))
        tail += oconv()
        slow = []
        if OPT['stop'] == 'o': tail += dump_v(0, 32)
        else:
            stamp(tail)
            tail += [W(lg=('fWo', 0, 1, 1))] + decide()
            common = pre + p1 + pro + sum(iters, []) + tail
            slow = slow_path(common)
            resolve_waits(common + slow); finalize_waits(slow)
            tail += phase3(True)
            stamp(tail)
            tail += fast_tail()
            stamp(tail)
            tail += stamps_out()
            tail += [I('s_waitcnt vmcnt(0)')]
        stream = pre + p1 + pro + sum(iters, []) + tail
    resolve_waits(stream)
    if OPT['stop'] != 'q': unify_iters(iters)
    finalize_waits(stream)
    errs = check_hazards(stream, 'main')
    if slow: errs += check_hazards(common + slow, 'slow')
    out = []
    if OPT['stop'] == 'q': out = stream
    else: out = pre + p1 + pro + [I('L_LOOP:')] + iters[0] + tail
    out += [I('L_END:'), I('s_endpgm')]
    if OPT['stop'] != 'q':
        for lab, par in stubs:
            out += [I('%s:' % lab), I('s_call_b64 %s, RARE_%d' % (sr(sRET, 2), par)), I('s_branch %s_RET' % lab)]
        for lab, thr, a in spins: out += spin_stub(lab, thr, a)
        for par in (0, 1):
            r = rare(par); errs += check_hazards(r, 'rare'); out += r
        out += slow
    for e in errs[:40]: print('; ERROR', e, file=sys.stderr)
    if errs: raise SystemExit('hazard errors: %d' % len(errs))
    return out

def desc(name, vg, acc, y=False):
    return '''.amdhsa_kernel %s
  .amdhsa_next_free_vgpr %d
  .amdhsa_next_free_sgpr 102
  .amdhsa_accum_offset %d
  .amdhsa_group_segment_fixed_size 0
  .amdhsa_kernarg_size 64
  .amdhsa_user_sgpr_count 2
  .amdhsa_user_sgpr_kernarg_segment_ptr 1
  .amdhsa_system_sgpr_workgroup_id_x 1
%s.end_amdhsa_kernel''' % (name, vg, acc, '  .amdhsa_system_sgpr_workgroup_id_y 1\n' if y else '')

def fmt(ins):
    if ins.kind == 'dma' and ins.tag and OPT['nodma'] & {'X': 1, 'Wq': 2, 'K': 4, 'V': 4, 'Wo': 8, 'PF': 16}[ins.tag[0]]: return '    s_nop 0'
    if ins.kind == 'vst' and ins.tag and ins.tag[0] == 'St' and OPT['nost']: return '    s_nop 0'
    if OPT['noexp'] and ins.mn == 'v_exp_f32': return '    ' + ins.text.replace('v_exp_f32', 'v_mov_b32')
    k = OPT['kill']
    if ins.tag and ins.kind in ('vst', 'vld') and k & {'RL': 1, 'Out': 2, 'Poll': 4, 'Fl': 8, 'Reg': 32, 'Fz': 64, 'Dec': 128, 'Chk': 128}.get(ins.tag[0], 0): return '    s_nop 0'
    if k & 16 and ins.text.startswith('s_cbranch_vccnz SP_'): return '    s_nop 0'
    if k & 32 and ins.text.startswith('s_cbranch_scc0 L_DECIDE'): return '    s_nop 0'
    return ins.text if ins.kind == 'label' else '    ' + ins.text

if __name__ == '__main__':
    K1 = OPT['name'] + '_kernel'; K2 = 'mha_reduce_kernel'
    hdr = open('standalone__mha_block_cached__near_ridge.s.ref').read().split('; Override launch')[0]
    t = hdr
    t += '; @launch grid=(256,1,1) block=(256,1,1) lds=163840\n'
    t += '.amdgcn_target "amdgcn-amd-amdhsa--gfx950"\n.text\n'
    for K, body in ((K1, main_kernel()),):
        t += '.globl %s\n.p2align 8\n.type %s,@function\n%s:\n' % (K, K, K)
        t += '\n'.join(fmt(i) for i in body) + '\n'
    t += '.section .rodata,"a"\n.p2align 6\n' + desc(K1, 512, 256) + '\n'
    sys.stdout.write(t)
```

```python
import sys, os
sys.path.insert(0, os.path.dirname(os.path.abspath(__file__)))
from asmlib import *

OPT = dict(fill='04444444404', st0pol='', wsoff=0, ptat='', ptl=0, ptpol='', peel=0, lead=4, pre9=0, kp='', vp='', cpf=0, stlast=0, stpol2='sc1', outpol='', l2two='', tlbw=0, tlbs=16, warm=0, woat=6, warmpol='none', l2pf='', l2at='', l2pol='none', xpol='', wopol='', mix=0, pol2='', drop='', padp='', pad1='', padit=0, padfrom=0, pad=0, noexp=0, pf='', pfq='', pfl=0, pfpol='nt', ppos=12, prel=0, rlpol='sc1', kill=0, fuse=1, lag=3, ptouch=7, forceslow=0, map=1, ring=4, stpol='', wpol='', rot=0, kvpol='nt', nodma=0, nost=0, wq8=1, stop='', stamps=0, thr=0x47800000, name='standalone__mha_block_cached__near_ridge')
for a in sys.argv[1:]:
    k, v = a.split('=')
    OPT[k] = v if k in ('stop', 'name', 'kvpol', 'stpol', 'wpol', 'rlpol', 'pf', 'pfq', 'pfpol', 'padp', 'pad1', 'drop', 'pol2', 'l2pf', 'l2at', 'l2pol', 'xpol', 'wopol', 'warmpol', 'l2two', 'stpol2', 'outpol', 'kp', 'vp', 'ptpol', 'st0pol', 'ptat', 'fill') else int(v, 0)

SLOT = 17408
MF = 'v_mfma_f32_16x16x32_bf16'
def vr(b, n=4): return 'v[%d:%d]' % (b, b + n - 1) if n > 1 else 'v%d' % b
def ar(b, n=4): return 'a[%d:%d]' % (b, b + n - 1) if n > 1 else 'a%d' % b
def sr(b, n=4): return 's[%d:%d]' % (b, b + n - 1)

SK, SV, SWQ, SX, SWO, SWS = 8, 12, 16, 20, 24, 28
sWL, sWL8, sT0, sT1 = 32, 33, 34, 35
sKO, sLC, sTHR, sSC, sRET, sR0, sVO = 52, 53, 54, 56, 58, 61, 62
sBH = 63
sST = 64
def Q(ds, qb): return 4 * (ds * 4 + qb)
def S(buf, qb, T=0): return 128 + 32 * buf + 8 * qb + 4 * T
def NEGM(qb): return 192 + 4 * qb
def RING(n): return 208 + 4 * (n % 4)
L0, LT0 = 224, 228
vKA, vVAe, vVAo, vDK, vDV, vDWo, vOA, vST, vTM = 232, 233, 234, 236, 237, 235, 238, 242, 243
vSEL, vRL, vFL, vPL, vOUT, vRD, vCV, vPR, vFV, vCAS = 244, 248, 252, 253, 254, 228, 232, 234, 237, 236
sPO, sCO, sREG, sFULL, sFLO, sPLO, sRLO, sOUO = 55, 60, 5, 7, 98, 99, 100, 101
sFCO, sPCO = 33, 63
vB, vPL2 = 243, 255
SDBG, SOUT = 20, 16
BSTRIDE, FLOFF = 3670528, 3670016
def RING8(n): return 192 + 4 * ((n + 4) % 8)
vWA0, vWA1, vWA80, vWA81, vXA, vDWq, vDX = 244, 245, 246, 247, 248, 249, 250
def O(db, qb): return 4 * (db * 4 + qb)
def ACC(ds, qb, T):
    if ds < 7: return vr(8 * (ds * 4 + qb) + 4 * T)
    return ar(8 * qb + 4 * T)
def XF(j, T, qb): return (32 if j % 6 == 0 else 48 + 32 * j) + 16 * T + 4 * qb
sWX, sXP = 91, 84
def ARING(n): return 64 + 4 * (n % 4)

nstamp = [0]
def stamp(out):
    if not OPT['stamps']: return
    k = nstamp[0]; nstamp[0] += 1
    out.append(I('s_waitcnt lgkmcnt(0)'))
    out.append(I('s_memtime %s' % sr(sST + 2 * k, 2)))
    out.append(I('s_waitcnt lgkmcnt(0)'))

LEAD, PEEL = OPT['lead'], OPT['peel']
NCL = 4 + (PEEL + 1) // 2
assert PEEL >= 1
KSL = {4: 8}
def kslot(n): return KSL.get(n, n % 4)
def mk_sched():
    avail = {('K', 0): 6, ('K', 1): 6, ('K', 2): 7, ('K', 3): 7, ('K', 4): 15, ('V', 0): 10, ('V', 1): 11, ('V', 2): 12, ('V', 3): 13}
    order = [('K', 0), ('K', 1), ('V', 0), ('K', 2), ('V', 1), ('K', 3), ('V', 2), ('K', 4), ('V', 3)]
    done = {k: 0 for k in order}; F = {}
    for per, c in zip(range(5, 16), OPT['fill']):
        F[per] = []
        for _ in range(int(c, 36)):
            k = [k for k in order if avail[k] <= per and done[k] < 4][0]
            F[per].append((k[0], k[1], done[k])); done[k] += 1
    S = {}
    for which, prof, lead in (('K', OPT['kp'], LEAD), ('V', OPT['vp'], LEAD - 1)):
        c = sum(v for k, v in done.items() if k[0] == which)
        assert all(done[which, q // 4] > q % 4 for q in range(c)), 'fill must be a prefix'
        D = {}; first = {}
        for t in range(4 * PEEL + 4):
            n = int(prof[t]) if t < len(prof) else 4
            if t == 4 * PEEL: assert c == 4 * (4 * PEEL + lead), (which, c, 4 * (4 * PEEL + lead))
            D[t] = [(q // 4, q % 4) for q in range(c, c + n)]; c += n
            for tile, p in D[t]:
                first.setdefault(tile, t)
                if which == 'V': assert tile - 4 < t, ('V slot busy', t, tile)
        S[which] = D
        if which == 'K':
            def rec(n, occ):
                if n not in first: return {}
                for sl in ([n % 4] if n > 4 * PEEL else [n % 4, 0, 1, 2, 3, 8]):
                    if occ[sl] <= first[n]:
                        r = rec(n + 1, {**occ, sl: n})
                        if r is not None: return {n: sl, **r}
                return None
            r = rec(5, {0: 0, 1: 1, 2: 2, 3: 3, 8: 4})
            assert r is not None, 'no slot assignment'
            KSL.update(r)
    return F, S['K'], S['V']
FILL, KS, VS = mk_sched()
def fill_dmas(per):
    r = []; prev = None
    for w, n, p in FILL.get(per, []):
        r.append(dma_kv_imm(w, n, p, sT0, prev != (w, n))); prev = (w, n)
    return r
if LEAD == 4: WOS = {(28, 0): (0, 0), (29, 0): (0, 1), (30, 0): (1, 0), (31, 0): (1, 1), (29, 1): (2, 0), (30, 1): (2, 1), (31, 1): (3, 0), 0: (3, 1), 2: (4, 0), 3: (4, 1), 4: (5, 0), 5: (5, 1), 6: (6, 0), 7: (6, 1)}
else: WOS = dict(zip([(29, 0), (30, 0), (30, 1), (31, 0), (31, 1)] + list(range(9)), [(c, h) for c in range(7) for h in range(2)]))
def dma_kv(which, tile, slot, p, soff):
    srd, vo = (SK, vDK) if which == 'K' else (SV, vDV)
    pre = [I('s_add_u32 m0, s%d, %d' % (sWL, slot * SLOT + p * 64))]
    pol = OPT['pol2'] if (which, p) in [('K', 3), ('V', 3), ('K', 1), ('V', 1), ('K', 2), ('V', 2)][:OPT['mix']] else OPT['kvpol']
    d = I('buffer_load_dwordx4 v%d, %s, s%d offen offset:%d %s lds' % (vo, sr(srd), soff, p * 1024, pol.replace('+', ' ')), tag=(which, tile, p))
    return pre, d
def dma_wq(tile, p, st):
    slot = 4 + (tile + 1) % 5
    pre = [I('s_add_u32 m0, s%d, %d' % (sWL8, slot * SLOT + p * 1088)), I('s_mov_b32 s%d, %d' % (st, tile * 32 * 8192 + p * 16384))]
    d = I('buffer_load_dwordx4 v%d, %s, s%d offen %s lds' % (vDWq, sr(SWQ), st, OPT['wpol'].replace('+', ' ')), tag=('Wq', tile, p))
    return pre, d
XB = lambda j: 34816 * (1 - (j & 1))
def dma_x(j, p, st=None):
    pre = [I('s_add_u32 m0, s%d, %d' % (sWX, XB(j) + p * 1088))]
    if p == 0 and j: pre = pre + [I('v_add_u32 v%d, 128, v%d' % (vDX, vDX))]
    d = I('buffer_load_dwordx4 v%d, %s, %s offen %s lds' % (vDX, sr(SX), 's%d' % (sXP + p - 1) if p else '0', OPT['xpol'].replace('+', ' ')), tag=('X', j, p))
    return pre, d
def dma_wo(chunk, half, p, st):
    slot = 2 * (chunk % 4) + half
    pre = [I('s_add_u32 m0, s%d, %d' % (sWL, slot * SLOT + p * 1088)), I('s_mov_b32 s%d, %d' % (st, half * 128 * 896 + p * 7168 + chunk * 128))]
    d = I('buffer_load_dwordx4 v%d, %s, s%d offen %s lds' % (vDWo, sr(SWO), st, OPT['wopol'].replace('+', ' ')), tag=('Wo', chunk, half, p))
    return pre, d
def dma_kv_imm(which, tile, p, st, first=None):
    slot = kslot(tile) if which == 'K' else 4 + tile % 4
    pre, d = dma_kv(which, tile, slot, p, st)
    if first is None: first = p == 0
    if first: pre += [I('s_mov_b32 s%d, %d' % (st, tile * 16384))]
    return pre, d
def adv(so):
    return [I('s_add_u32 s%d, s%d, 16384' % (so, so))]

def rd_wq(tile, n):
    ds, T = n >> 1, n & 1
    slot = 4 + (tile + 1) % 5
    if slot == 8: a = (vWA80, vWA81)[(ds >> 1) & 1]; base = 0
    else: a = (vWA0, vWA1)[(ds >> 1) & 1]; base = (slot - 4) * SLOT
    r = ARING(n)
    return [I('ds_read_b64_tr_b16 %s, v%d offset:%d' % (ar(r + 2 * rho, 2), a, base + rho * 2176 + ds * 64 + T * 8), tag=('fWq', tile, n, rho)) for rho in (0, 1)]
def rd_x(j, qb, T):
    return I('ds_read_b128 %s, v%d offset:%d' % (ar(XF(j, T, qb)), vXA, XB(j) + qb * 2176 + T * 64), tag=('fX', j, qb, T))
def rd_k(t, n):
    T, ds = n >> 3, n & 7
    return [I('ds_read_b128 %s, v%d offset:%d' % (vr(RING(n)), vKA, (kslot(t) % 8) * SLOT + T * 8704 + ds * 64), tag=('fK', t, n, 1))]
def rd_v(t, db):
    a = vVAo if db & 1 else vVAe
    r = RING(db)
    return [I('ds_read_b64_tr_b16 %s, v%d offset:%d' % (vr(r + 2 * rho, 2), a, (t % 4) * SLOT + rho * 8704 + db * 32), tag=('fV', t, db, rho)) for rho in (0, 1)]
def rd_wo(hc, n):
    ds, T = n >> 1, n & 1
    nt = 2 * (hc & 1) + T
    r = RING(n)
    return [I('ds_read_b64_tr_b16 %s, v%d offset:%d' % (vr(r + 2 * rho, 2), vOA + nt, (4 * ds + 2 * rho) * 1088), tag=('fWo', hc, n, rho)) for rho in (0, 1)]

def put_dmas(G, dmas, groups):
    prev = 0
    for (pre, d), g in zip(dmas, groups):
        gp = 4 * g + 1
        G.put(gp, d)
    for (pre, d), g in zip(dmas, groups):
        gp = 4 * g + 1
        hi = gp - 1; got = []
        for ins in reversed(pre):
            for cand in range(hi, prev - 1, -1):
                if G.used[cand] + ins.cost <= G.cap:
                    G.used[cand] += ins.cost; got.append((cand, ins)); hi = cand; break
            else: G.used[hi] += ins.cost; got.append((hi, ins))
        for cand, ins in reversed(got): G.g[cand].append(ins)
        prev = gp + 1

def setup():
    o = []
    A = lambda s: o.append(I(s))
    A('s_cmp_ge_u32 s2, 256'); A('s_cbranch_scc1 L_END')
    A('s_load_dwordx16 s[36:51], s[0:1], 0')
    A('v_lshrrev_b32 v1, 6, v0'); A('v_and_b32 v0, 63, v0')
    A('v_readfirstlane_b32 s3, v1')
    A('s_and_b32 s4, s2, 7'); A('s_lshr_b32 s5, s2, 3')
    if OPT['cpf']:
        A('s_getpc_b64 s[8:9]'); A('s_lshl_b32 s6, s5, 2'); A('s_add_u32 s6, s6, s3'); A('s_mul_i32 s6, s6, %d' % (128 * NCL))
        A('s_mov_b32 s10, %d' % (16384 * NCL)); A('s_mov_b32 s11, 0x20000')
        A('v_min_u32 v201, %d, v0' % (NCL - 1)); A('v_lshlrev_b32 v201, 7, v201')
        o.append(I('buffer_load_dword v200, v201, s[8:11], s6 offen', tag=('CPF',)))
    if OPT['map'] == 0:
        A('s_and_b32 s6, s4, 3'); A('s_lshl_b32 s6, s6, 2'); A('s_and_b32 s7, s5, 3'); A('s_add_u32 s6, s6, s7')
        A('s_lshr_b32 s4, s4, 2'); A('s_lshl_b32 s4, s4, 3'); A('s_lshr_b32 s5, s5, 2'); A('s_add_u32 s4, s4, s5')
    else:
        A('s_lshr_b32 s6, s5, 1'); A('s_and_b32 s5, s5, 1'); A('s_lshl_b32 s4, s4, 1'); A('s_add_u32 s4, s4, s5')
    A('s_lshl_b32 s5, s4, 4'); A('s_add_u32 s%d, s5, s6' % sBH)
    A('s_mul_i32 s%d, s3, 4352' % sWL)
    A('s_and_b32 s7, s3, 1')
    if OPT['wq8']: A('s_lshl_b32 s7, s7, 3'); A('s_add_u32 s%d, s%d, s7' % (sWL8, sWL)); A('s_lshr_b32 s7, s7, 3')
    else: A('s_mov_b32 s%d, s%d' % (sWL8, sWL))
    A('v_and_b32 v1, 15, v0'); A('v_lshrrev_b32 v2, 4, v0'); A('v_bfe_u32 v3, v0, 2, 2'); A('v_and_b32 v4, 3, v0')
    A('v_lshrrev_b32 v5, 5, v0'); A('v_and_b32 v6, 31, v0')
    A('s_lshl_b32 s34, s3, 6'); A('v_lshrrev_b32 v7, 3, v0'); A('v_and_b32 v8, 2, v7'); A('v_add_u32 v7, s34, v7'); A('s_movk_i32 s35, 896')
    A('v_mul_lo_u32 v7, v7, s35'); A('v_and_b32 v9, 7, v0'); A('v_xor_b32 v8, v8, v9'); A('v_lshl_add_u32 v%d, v8, 4, v7' % vDX)
    A('s_lshl_b32 s%d, s%d, 1' % (sWX, sWL))
    for p in range(1, 8): A('s_movk_i32 s%d, %d' % (sXP + p - 1, p * 7168) if p < 5 else 's_mov_b32 s%d, %d' % (sXP + p - 1, p * 7168))
    A('s_lshl_b32 s34, s3, 3'); A('v_add_u32 v7, s34, v5'); A('v_lshlrev_b32 v7, 13, v7'); A('v_lshlrev_b32 v8, 3, v5')
    A('v_xor_b32 v8, v8, v6'); A('v_lshl_add_u32 v%d, v8, 4, v7' % vDWq)
    A('s_waitcnt lgkmcnt(0)')
    def srd(d, p, off, size):
        A('s_add_u32 s%d, s%d, %s' % (d, p, off)); A('s_addc_u32 s%d, s%d, 0' % (d + 1, p + 1))
        A('s_mov_b32 s%d, %s' % (d + 2, size)); A('s_mov_b32 s%d, 0x20000' % (d + 3))
    A('s_mul_i32 s34, s4, 229376'); srd(SX, 36, 's34', '229376')
    A('s_lshl_b32 s34, s6, 9'); A('s_sub_u32 s35, 3670016, s34'); srd(SWQ, 42, 's34', 's35')
    return o

def setup2():
    o = []
    A = lambda s: o.append(I(s))
    def srd(d, p, off, size):
        A('s_add_u32 s%d, s%d, %s' % (d, p, off)); A('s_addc_u32 s%d, s%d, 0' % (d + 1, p + 1))
        A('s_mov_b32 s%d, %s' % (d + 2, size)); A('s_mov_b32 s%d, 0x20000' % (d + 3))
    A('s_lshl_b32 s34, s%d, 19' % sBH); srd(SK, 38, 's34', '524288'); srd(SV, 40, 's34', '524288')
    A('s_mul_i32 s34, s6, 229376'); srd(SWO, 44, 's34', '229376')
    A('s_mul_i32 s34, s4, %d' % BSTRIDE)
    if OPT['wsoff']: A('s_add_u32 s34, s34, %d' % (OPT['wsoff'] << 20))
    srd(SWS, 50, 's34', str(BSTRIDE))
    tw = OPT['tlbw']
    if tw:
        A('s_mov_b32 m0, %d' % (9 * SLOT)); A('v_lshlrev_b32 v255, %d, v0' % OPT['tlbs'])
        if tw & 8: A('s_mul_i32 s34, s4, 229376'); srd(40, 46, 's34', '229376')
        for bit, r in ((1, SK), (1, SV), (16, SWQ), (16, SX), (2, SWO), (4, SWS), (8, 40)):
            if tw & bit: o.append(I('buffer_load_dword v255, %s, 0 offen nt lds' % sr(r), tag=('PF',)))
    A('s_mov_b32 s%d, 0x%x' % (sTHR, OPT['thr']))
    A('s_mov_b32 s%d, 0x3db8aa3b' % sSC); A('s_mov_b32 s%d, 0x3db8aa3b' % (sSC + 1))
    if OPT['rot'] == 0: A('s_mov_b32 s%d, 0' % sKO)
    elif OPT['rot'] == 1: A('s_and_b32 s%d, s%d, 31' % (sKO, sBH))
    elif OPT['rot'] == 2: A('s_lshr_b32 s%d, s2, 3' % sKO)
    elif OPT['rot'] == 3: A('s_mul_i32 s%d, s2, 11' % sKO); A('s_lshr_b32 s34, s2, 5'); A('s_add_u32 s%d, s%d, s34' % (sKO, sKO)); A('s_and_b32 s%d, s%d, 31' % (sKO, sKO))
    elif OPT['rot'] == 4: A('s_and_b32 s%d, s2, 7' % sKO); A('s_lshl_b32 s%d, s%d, 2' % (sKO, sKO))
    A('s_lshl_b32 s%d, s%d, 14' % (sKO, sKO)); A('s_mov_b32 s%d, s%d' % (sVO, sKO)); A('s_mov_b32 s%d, %d' % (sLC, PEEL))
    A('s_movk_i32 s35, 1088')
    A('v_lshrrev_b32 v7, 3, v1'); A('v_and_b32 v8, 2, v1'); A('v_xor_b32 v8, v8, v2'); A('v_lshlrev_b32 v8, 4, v8')
    A('v_and_b32 v9, 7, v1'); A('v_lshl_add_u32 v8, v9, 7, v8'); A('v_mad_u32_u24 v8, v7, s35, v8'); A('v_lshl_add_u32 v%d, s%d, 1, v8' % (vXA, sWL))
    A('v_lshrrev_b32 v9, 1, v3'); A('v_and_b32 v10, 1, v3')
    A('v_lshl_add_u32 v8, v2, 2, v9'); A('v_mul_lo_u32 v8, v8, s35'); A('v_lshl_add_u32 v8, v4, 4, v8')
    if OPT['wq8']: A('v_and_b32 v11, 1, v2'); A('v_lshl_add_u32 v8, v11, 3, v8')
    A('v_add_u32 v8, %d, v8' % (4 * SLOT))
    A('v_mul_u32_u24 v11, 640, v10'); A('v_add_u32 v%d, v8, v11' % vWA0)
    A('v_mul_u32_u24 v11, 384, v10'); A('v_add_u32 v%d, v8, v11' % vWA1)
    A('v_add_u32 v%d, %d, v%d' % (vWA80, 4 * SLOT, vWA0)); A('v_add_u32 v%d, %d, v%d' % (vWA81, 4 * SLOT, vWA1))
    A('v_lshrrev_b32 v8, 1, v1'); A('v_mul_lo_u32 v8, v8, s35'); A('v_and_b32 v11, 1, v1'); A('v_lshl_add_u32 v8, v11, 9, v8')
    A('v_lshl_or_b32 v11, v7, 1, v11'); A('v_xor_b32 v11, v11, v2'); A('v_lshl_add_u32 v%d, v11, 4, v8' % vKA)
    A('v_lshl_add_u32 v8, v2, 1, v9'); A('v_mul_lo_u32 v8, v8, s35'); A('v_lshl_add_u32 v8, v4, 3, v8'); A('v_add_u32 v8, %d, v8' % (4 * SLOT))
    A('v_mul_u32_u24 v11, 544, v10'); A('v_add_u32 v%d, v8, v11' % vVAe)
    A('v_mul_u32_u24 v11, 480, v10'); A('v_add_u32 v%d, v8, v11' % vVAo)
    A('s_lshl_b32 s34, s3, 12'); A('v_lshlrev_b32 v8, 9, v5'); A('v_add_u32 v8, s34, v8')
    A('s_lshl_b32 s5, s7, 1'); A('v_or_b32 v11, s5, v5'); A('v_xor_b32 v11, v11, v6'); A('v_lshl_add_u32 v%d, v11, 4, v8' % vDK)
    A('v_lshlrev_b32 v11, 1, v5'); A('v_xor_b32 v11, v11, v6'); A('v_lshl_add_u32 v%d, v11, 4, v8' % vDV)
    A('v_lshlrev_b32 v8, 8, v3'); A('v_lshl_add_u32 v8, v2, 6, v8'); A('v_lshl_add_u32 v8, v4, 4, v8'); A('v_add_u32 v%d, s34, v8' % vST)
    A('s_lshl_b32 s34, s3, 5'); A('v_lshrrev_b32 v8, 3, v0'); A('v_add_u32 v8, s34, v8'); A('s_movk_i32 s5, 896'); A('v_mul_lo_u32 v8, v8, s5')
    A('v_and_b32 v11, 7, v0'); A('v_lshlrev_b32 v12, 1, v2'); A('v_xor_b32 v11, v11, v12'); A('v_lshl_add_u32 v%d, v11, 4, v8' % vDWo)
    A('v_lshrrev_b32 v8, 1, v2'); A('v_mul_lo_u32 v8, v8, s35'); A('v_and_b32 v11, 1, v2'); A('v_lshl_add_u32 v11, v11, 2, v3')
    A('v_lshl_add_u32 v8, v11, 7, v8'); A('v_lshl_add_u32 v8, v4, 3, v8'); A('v_lshrrev_b32 v11, 1, v11')
    for nt in range(4):
        A('v_xor_b32 v12, %d, v11' % nt); A('v_lshl_add_u32 v%d, v12, 5, v8' % (vOA + nt))
    for qb in range(4): A('v_mov_b32 v%d, 0' % (L0 + qb))
    A('s_mul_i32 s%d, s6, 229376' % sPO)
    A('s_lshl_b32 s34, s3, 7'); A('s_lshl_b32 s35, s6, 2'); A('s_add_u32 s34, s34, s35'); A('s_add_u32 s%d, s34, %d' % (sFLO, FLOFF))
    A('s_lshr_b32 s34, s6, 2'); A('s_lshl_b32 s34, s34, 7'); A('s_add_u32 s%d, s34, %d' % (sPLO, FLOFF))
    A('s_lshl_b32 s34, s6, 10'); A('s_lshl_b32 s35, s3, 8'); A('s_add_u32 s%d, s34, s35' % sRLO)
    A('s_mul_i32 s34, s6, 14336'); A('s_mul_i32 s35, s3, 3584'); A('s_add_u32 s%d, s34, s35' % sOUO)
    A('s_lshl_b32 s%d, s4, 4' % sCO)
    A('s_getreg_b32 s34, hwreg(HW_REG_XCC_ID, 0, 4)')
    if OPT['forceslow'] == 1: A('s_and_b32 s34, s6, 1')
    A('s_or_b32 s%d, s34, 0x80' % sREG); A('s_mul_i32 s%d, s%d, 0x01010101' % (sFULL, sREG))
    A('s_and_b32 s34, s6, 3'); A('s_lshl_b32 s34, s34, 2'); A('s_add_u32 s34, s34, s3'); A('s_lshl_b32 s34, s34, 2'); A('s_add_u32 s34, s34, s%d' % sPLO); A('s_add_u32 s34, s34, 64')
    A('v_lshl_add_u32 v8, v0, 9, s%d' % sFLO); A('v_writelane_b32 v8, s34, 1')
    A('v_mul_u32_u24 v9, %d, v0' % (OPT['ring'] - OPT['lag'] + 1))
    o.append(I('buffer_store_dword v9, v8, %s, 0 offen' % sr(SWS), tag=('Fz',)))
    return o

sPF, sPFt, vPA, vPL128, vPD = 36, 37, 254, 255, 231
pfstate = dict(n=None)
def pf_items(n):
    pre = []
    if pfstate['n'] != n:
        pre += ['v_min_u32 v%d, %d, v%d' % (vPA, (n - 1) * 128, vPL128)]
        pfstate['n'] = n
    pre += ['s_mul_i32 s%d, s3, %d' % (sPFt, n * 128), 's_add_u32 s%d, s%d, s%d' % (sPFt, sPFt, sPF), 's_add_u32 s%d, s%d, %d' % (sPF, sPF, n * 512)]
    pol = OPT['pfpol'].replace('+', ' ').replace('none', '')
    lds = [I('buffer_load_dword v%d, %s, s%d offen %s lds' % (vPA, sr(r), sPFt, pol), tag=('PF',)) for r in (SK, SV)]
    return [([I(p) for p in pre] + [I('s_mov_b32 m0, %d' % (9 * SLOT))], lds[0]), ([], lds[1])]
l2state = dict(n=None)
def l2_items(k):
    it, st = k // 2, k & 1
    n = 4 * int(OPT['l2pf'][it], 36)
    pre = []
    if l2state['n'] != n:
        pre += ['v_min_u32 v254, %d, v251' % ((n - 1) * 128), 'v_add_u32 v254, v254, v255']; l2state['n'] = n
    pre += ['s_mov_b32 s%d, %d' % (sPFt, (4 * it + LEAD - st) * 16384), 's_mov_b32 m0, %d' % (9 * SLOT)]
    pol = OPT['l2pol'].replace('+', ' ').replace('none', '')
    return ([I(p) for p in pre], I('buffer_load_dword v254, %s, s%d offen %s lds' % (sr(SV if st else SK), sPFt, pol), tag=('PF',)))
def pflist(x): return [int(c, 36) for c in x]

def phase1():
    o = []
    k = 0
    for f, t, n in ((dma_x, 0, 8), (dma_wq, 0, 4), (dma_wq, 1, 4), (dma_x, 1, 8), (dma_wq, 2, 4), (dma_wq, 3, 4)):
        for p in range(n):
            pre, d = f(t, p, sT0 + (k & 1)); k += 1
            o += pre + ([I('s_nop 0')] if len(pre) < 2 else []); o.append(d)
    o += setup2()
    wp = OPT['warmpol'].replace('+', ' ').replace('none', '')
    if OPT['warm']: o.append(I('s_mov_b32 m0, %d' % (9 * SLOT)))
    if OPT['warm'] & 2:
        o += [I(c) for c in ['v_bfe_u32 v251, v0, 3, 2', 'v_and_b32 v252, 7, v0', 'v_min_u32 v252, 4, v252', 'v_mul_u32_u24 v251, 896, v251', 'v_lshl_add_u32 v251, v252, 7, v251',
              's_lshl_b32 s36, s6, 2', 's_add_u32 s36, s36, s3', 's_mul_i32 s36, s36, 3584', 's_add_u32 s36, s36, 256']]
        o.append(I('buffer_load_dword v251, %s, s36 offen %s lds' % (sr(SX), wp), tag=('PF',)))
    if OPT['warm'] & 1:
        o += [I(c) for c in ['v_min_u32 v252, 19, v0', 'v_lshrrev_b32 v252, 2, v252', 'v_lshlrev_b32 v252, 13, v252', 'v_lshl_add_u32 v252, v4, 7, v252',
              's_lshl_b32 s37, s4, 2', 's_add_u32 s37, s37, s3', 's_mul_i32 s37, s37, 40960', 's_add_u32 s37, s37, %d' % (128 * 8192)]]
        o.append(I('buffer_load_dword v252, %s, s37 offen %s lds' % (sr(SWQ), wp), tag=('PF',)))
    if OPT['warm'] & 4 and OPT['woat'] < 14:
        o += [I(c) for c in ['v_bfe_u32 v253, v0, 3, 2', 'v_and_b32 v254, 7, v0', 'v_min_u32 v254, 6, v254', 'v_mul_u32_u24 v253, 896, v253', 'v_lshl_add_u32 v253, v254, 7, v253']]
    if OPT['l2pf']:
        o += [I('v_and_b32 v251, 15, v0'), I('v_lshlrev_b32 v251, 7, v251'), I('v_lshrrev_b32 v255, 4, v0'), I('v_lshlrev_b32 v255, 14, v255'),
              I('s_lshl_b32 s%d, s3, 12' % sPFt), I('v_add_u32 v255, s%d, v255' % sPFt)]
    o.append(W(vm=('Wq', 0, 3))); o.append(I('s_barrier'))
    for qb in range(4): o.append(rd_x(0, qb, 0))
    o += rd_wq(0, 0) + [rd_x(0, 0, 1), rd_x(0, 1, 1)] + rd_wq(0, 1) + [rd_x(0, 2, 1), rd_x(0, 3, 1)] + rd_wq(0, 2) + rd_wq(0, 3)
    o.append(W(lg=('fWq', 0, 0, 1)))
    stamp(o)
    for i in range(14):
        mf = []
        for n in range(16):
            ds, T = n >> 1, n & 1
            for qb in range(4):
                d = ACC(ds, qb, T)
                mf.append(I('%s %s, %s, %s, %s' % (MF, d, ar(ARING(n)), ar(XF(i >> 1, i & 1, qb)), '0' if i == 0 else d)))
        G = Gaps(mf)
        for g in range(16):
            nx = g + 4
            if nx < 16:
                for r in rd_wq(i, nx): G.put(4 * g + 3, r)
            elif i < 13:
                for r in rd_wq(i + 1, nx - 16): G.put(4 * g + 3, r)
            if g < 15:
                if g == 12 and i < 13:
                    G.put(4 * g + 2, W(lg=('fWq', i, g + 1, 1), vm=[('Wq', i + 1, 3)] + ([('X', i + 1, 7)] if i < 6 else []))); G.put(4 * g + 2, 's_barrier')
                else: G.put(4 * g + 2, W(lg=('fWq', i, g + 1, 1)))
            elif i < 13: G.put(4 * g + 2, W(lg=('fWq', i + 1, 0, 1)))
        if i < 6:
            for qb in range(4):
                for T in range(2): G.put((52, 53, 56, 57)[qb], rd_x(i + 1, qb, T))
        dm = []
        if i < 5: dm = [dma_x(i + 2, p) for p in range(8)]
        fl = fill_dmas(i)
        wq = [dma_wq(i + 4, p, sT1) for p in range(4)] if i <= 9 else []
        if wq and fl:
            while wq or fl:
                if wq: dm.append(wq.pop(0))
                if fl: dm.append(fl.pop(0))
        else: dm += wq + fl
        n = len(dm)
        grp = list(range(1, 13)) if n == 12 else [1 + (k * 12) // n for k in range(n)]
        if OPT['l2pf']:
            ks = [k for k, c in enumerate(OPT['l2at']) if int(c, 36) == i]
            for k, g in zip(ks, (14, 15)): dm.append(l2_items(k)); grp = grp + [g]
            if OPT['l2two'] and ks:
                assert len(ks) == 1
                d = dm[-1][1]
                dm.append(([], I(d.text.split(' offen')[0] + ' offen %s lds' % OPT['l2two'].replace('+', ' ').replace('none', ''), tag=('PF',)))); grp = grp + [15]
            assert len(ks) <= 2
        if OPT['warm'] & 4 and i == OPT['woat']:
            assert len(grp) == len([g for g in grp if g < 14])
            dm.append(([I(c) for c in ['s_lshl_b32 s37, s4, 2', 's_add_u32 s37, s37, s3', 's_mul_i32 s37, s37, 3584', 's_mov_b32 m0, %d' % (9 * SLOT)]],
                       I('buffer_load_dword v253, %s, s37 offen %s lds' % (sr(SWO), wp), tag=('PF',)))); grp = grp + [15]
        put_dmas(G, dm, grp)
        if i == 12:
            G.chain(['s_mov_b32 s%d, s48' % SDBG, 's_mov_b32 s%d, s49' % (SDBG + 1), 's_movk_i32 s%d, 256' % (SDBG + 2),
                     's_mul_i32 s%d, s4, 229376' % sT1, 's_add_u32 s%d, s46, s%d' % (SOUT, sT1), 's_addc_u32 s%d, s47, 0' % (SOUT + 1), 's_mov_b32 s%d, 229376' % (SOUT + 2)], 8)
        if i == 13:
            G.chain(['s_and_b32 s%d, s6, 3' % sFCO, 's_lshl_b32 s%d, s%d, 2' % (sFCO, sFCO), 's_add_u32 s%d, s%d, s3' % (sFCO, sFCO), 's_lshl_b32 s%d, s%d, 2' % (sFCO, sFCO),
                     's_add_u32 s%d, s%d, s%d' % (sFCO, sFCO, sPLO), 's_add_u32 s%d, s%d, 64' % (sFCO, sFCO),
                     's_lshl_b32 s%d, s3, 7' % sPCO, 's_add_u32 s%d, s%d, %d' % (sPCO, sPCO, FLOFF + 64), 's_sub_u32 s%d, s%d, s%d' % (sPCO, sPCO, sPLO)], 30)
        o += G.flat()
    stamp(o)
    o.append(I('s_nop 3'))
    def conv(src, dst):
        r = []
        for k in range(4): r.append(I('v_pk_mul_f32 %s, %s, %s' % (vr(src + 2 * k, 2), vr(src + 2 * k, 2), sr(sSC, 2))))
        for k in range(4): r.append(I('v_cvt_pk_bf16_f32 v%d, v%d, v%d' % (dst + k, src + 2 * k, src + 2 * k + 1)))
        return r
    fl = fill_dmas(14)
    for f in range(28):
        o += conv(8 * f, 4 * f)
        if f % 6 == 2 and fl:
            pre, d = fl.pop(0); o += pre + [I('s_nop 0'), d]
    assert not fl
    o.append(W(vm=('K', 0, 3))); o.append(I('s_barrier'))
    for n in range(4): o += rd_k(0, n)
    for k in range(32): o.append(I('v_accvgpr_read_b32 v%d, a%d' % (128 + k, k)))
    for qb in range(4): o += conv(128 + 8 * qb, Q(7, qb))
    o.append(W(lg=('fK', 0, 0, 1)))
    return o

def softmax_items(buf, qb):
    b = S(buf, qb); lt = LT0 + qb
    it = []
    for k in range(8):
        it.append(('e', k, I('v_exp_f32 v%d, v%d' % (b + k, b + k))))
        if k == 1: it.append(('v', k, I('v_add_f32 v%d, v%d, v%d' % (lt, b, b + 1))))
        elif k > 1: it.append(('v', k, I('v_add_f32 v%d, v%d, v%d' % (lt, lt, b + k))))
        if k & 1: it.append(('v', k, I('v_cvt_pk_bf16_f32 v%d, v%d, v%d' % (b + k // 2, b + k - 1, b + k))))
    return it

def place_softmax(G, buf, qbs, expgaps):
    eg = list(expgaps); pend = []
    for qb in qbs:
        for kind, k, ins in softmax_items(buf, qb):
            if kind == 'e':
                gp = eg.pop(0); G.put(gp, ins); last = gp
            else: pend.append((ins, last + 1))
    return pend

def place_chain(G, pend):
    cur = 0
    for ins, lo in pend: cur = G.place(ins, max(cur, lo))
    return cur

stubs = []
def check_items(t):
    lab = 'RS_%d' % (t % 4 if 4 * PEEL <= t < 28 else 100 + t)
    if lab not in [s[0] for s in stubs]: stubs.append((lab, t & 1))
    return [I('v_max_f32 v%d, v%d, v%d' % (vTM, vTM, LT0 + 3)), I('v_cmp_lt_f32 vcc, s%d, v%d' % (sTHR, vTM)),
            I('s_cbranch_vccnz %s' % lab), I('%s_RET:' % lab)]

def qk_mfmas(t1, first):
    mf = []
    for n in range(16):
        T, ds = n >> 3, n & 7
        for qb in range(4):
            d = vr(S(t1 & 1, qb, T))
            c = d if ds else ('0' if first else vr(NEGM(qb)))
            mf.append(I('%s %s, %s, %s, %s' % (MF, d, vr(RING(n)), vr(Q(ds, qb)), c)))
    return mf
def pv_mfmas(t):
    mf = []
    for db in range(16):
        for qb in range(4):
            d = ar(O(db, qb))
            mf.append(I('%s %s, %s, %s, %s' % (MF, d, vr(RING(db)), vr(S(t & 1, qb)), d if t else '0')))
    return mf

def prologue():
    o = []
    G = Gaps(qk_mfmas(0, True))
    for g in range(16):
        nx = g + 4
        for r in (rd_k(0, nx) if nx < 16 else rd_k(1, nx - 16)): G.put(4 * g + 3, r)
        if g == 12:
            G.put(4 * g + 2, W(lg=('fK', 0, g + 1, 1), vm=[('K', 1, 3), ('V', 0, 3)])); G.put(4 * g + 2, 's_barrier')
        elif g < 15: G.put(4 * g + 2, W(lg=('fK', 0, g + 1, 1)))
        else: G.put(4 * g + 2, W(lg=('fK', 1, 0, 1)))
    G.chain(['s_mov_b32 s%d, %d' % (sKO, LEAD * 16384), 's_mov_b32 s%d, %d' % (sVO, (LEAD - 1) * 16384)])
    dm = fill_dmas(15)
    put_dmas(G, dm, [1 + (k * 14) // len(dm) for k in range(len(dm))])
    if OPT['prel']: o.insert(0, I('buffer_load_dword v254, off, %s, s%d sc1' % (sr(SDBG), sCO), tag=('Prel',)))
    o += G.flat()
    A = lambda s: o.append(I(s))
    if OPT['prel'] == 2: o.append(W(vm=('Prel',)))
    A('v_mbcnt_lo_u32_b32 v252, -1, 0'); A('v_mov_b32 v253, s%d' % sREG)
    A('v_or_b32 v252, s3, v252'); A('v_lshl_add_u32 v252, v252, 8, s6')
    if OPT['forceslow'] == 2:
        A('s_and_b32 s%d, s4, 1' % sT0); A('s_lshl_b32 s%d, s%d, 8' % (sT0, sT0)); A('s_cmp_eq_u32 s6, 0'); A('s_cselect_b32 s%d, s%d, 0' % (sT0, sT0)); A('v_add_u32 v252, s%d, v252' % sT0)
    o.append(I('buffer_store_byte v253, v252, %s, s%d offen' % (sr(SDBG), sCO), tag=('Reg',)))
    A('s_nop 1')
    tm = [244, 245, 246, 247]; tc = [248, 249, 250, 251]
    for st in range(4):
        for qb in range(4):
            b = S(0, qb)
            if st == 0: A('v_max3_f32 v%d, v%d, v%d, v%d' % (tm[qb], b, b + 1, b + 2))
            elif st < 3: A('v_max3_f32 v%d, v%d, v%d, v%d' % (tm[qb], tm[qb], b + 2 * st + 1, b + 2 * st + 2))
            else: A('v_max_f32 v%d, v%d, v%d' % (tm[qb], tm[qb], b + 7))
    for sw in ('v_permlane32_swap_b32', 'v_permlane16_swap_b32'):
        for qb in range(4): A('v_mov_b32 v%d, v%d' % (tc[qb], tm[qb]))
        for qb in range(4): A('%s v%d, v%d' % (sw, tm[qb], tc[qb]))
        for qb in range(4): A('v_max_f32 v%d, v%d, v%d' % (tm[qb], tm[qb], tc[qb]))
    for qb in range(4):
        for r in range(4): A('v_sub_f32 v%d, 0, v%d' % (NEGM(qb) + r, tm[qb]))
    for qb in range(4):
        for k in range(8): A('v_sub_f32 v%d, v%d, v%d' % (S(0, qb) + k, S(0, qb) + k, tm[qb]))
    i0 = softmax_items(0, 0); i1 = softmax_items(0, 1)
    for x, y in zip(i0, i1): o.append(x[2]); o.append(y[2])
    return o

def padput(G, n, t, half):
    if OPT['padp']:
        prof = [int(c, 36) for c in OPT['padp']]
        mx = max(prof)
        for k in range(half, mx, 2):
            gp = 6 + 10 * (k // 2)
            if t >= 28:
                if prof[7] > k: G.put(gp, 's_nop 15', force=True)
                continue
            N = sum(1 for p in prof[:7] if p > k)
            if N == 0: continue
            lab = 'PAD_%d_%d' % (t % 4, k)
            if N < 7:
                G.put(gp, 's_cmp_lt_u32 s%d, %d' % (sLC, N), force=True); G.put(gp, 's_cbranch_scc0 %s' % lab, force=True)
            G.put(gp, 's_nop 15', force=True)
            if N < 7: G.put(gp, I(lab + ':'), force=True)
        return
    cond = OPT['padit'] or OPT['padfrom']
    if cond and t >= 28:
        if OPT['padit']: return
        cond = False
    for k in range(n):
        gp = 10 + 12 * k
        if cond:
            lab = 'PAD_%d_%d_%d' % (t % 4, half, k)
            G.put(gp, ('s_cmp_lt_u32 s%d, %d' % (sLC, OPT['padit'])) if OPT['padit'] else ('s_cmp_ge_u32 s%d, %d' % (sLC, OPT['padfrom'])), force=True)
            G.put(gp, 's_cbranch_scc0 %s' % lab, force=True)
        G.put(gp, 's_nop 15', force=True)
        if cond: G.put(gp, I(lab + ':'), force=True)

def step(t):
    o = []
    cur = t & 1
    max3 = I('v_max3_f32 v%d, v%d, v%d, v%d' % (vTM, LT0, LT0 + 1, LT0 + 2))
    ladd = [I('v_add_f32 v%d, v%d, v%d' % (L0 + q, L0 + q, LT0 + q)) for q in range(4)]
    if t < 4 * PEEL:
        dK = [dma_kv_imm('K', n, p, sT0, k == 0 or p == 0) for k, (n, p) in enumerate(KS[t])]
        dV = [dma_kv_imm('V', n, p, sT0, k == 0 or p == 0) for k, (n, p) in enumerate(VS[t])]
    else:
        if t + LEAD < 32: dK = [dma_kv('K', t + LEAD, (t + LEAD) % 4, p, sKO) for p in range(4)]
        else: dK = [dma_wo(*WOS[t, 0], p, sT0) for p in range(4)]
        if t + LEAD < 33: dV = [dma_kv('V', t + LEAD - 1, 4 + (t + LEAD - 1) % 4, p, sVO) for p in range(4)]
        else: dV = [dma_wo(*WOS[t, 1], p, sT0) for p in range(4)]
    if OPT['drop'] and t < 28:
        prof = [int(c) for c in OPT['drop']]
        order = [('K', 3), ('V', 3), ('K', 1), ('V', 1), ('K', 2), ('V', 2)]
        for k, (w, p) in enumerate(order):
            N = sum(1 for q in prof if q > k)
            if not N: continue
            lst, so = (dK, sKO) if w == 'K' else (dV, sVO)
            pre, d = lst[p]
            pre2 = [I('s_cmp_lt_u32 s%d, %d' % (sLC, N)), I('s_cselect_b32 s37, 0, s%d' % so)] + pre
            lst[p] = (pre2, I(d.text.replace(', s%d offen' % so, ', s37 offen').replace(OPT['kvpol'].replace('+', ' '), ''), tag=d.tag))
    if t < 31:
        G = Gaps(qk_mfmas(t + 1, False))
        for g in range(16):
            nx = g + 4
            for r in (rd_k(t + 1, nx) if nx < 16 else rd_v(t, nx - 16)): G.put(4 * g + 3, r)
            G.put(4 * g + 2, W(lg=('fK', t + 1, g + 1, 1) if g < 15 else ('fV', t, 0, 1)))
        eg = [0, 4, 5, 8, 12, 13] + [4 * g for g in range(4, 14)]
        pend = place_softmax(G, cur, (2, 3), eg)
        put_dmas(G, dK, {4: [5, 7, 9, 11], 3: [5, 8, 11], 2: [6, 10], 1: [8], 0: []}[len(dK)])
        if t == 28 and LEAD == 4:
            cz = G.chain(['v_mbcnt_lo_u32_b32 v%d, -1, 0' % vTM, 'v_and_b32 v%d, 3, v%d' % (vTM, vTM), 'v_lshlrev_b32 v%d, 2, v%d' % (vTM, vTM)], 1, 20)
            softplace(G, I('buffer_load_dword v%d, v%d, %s, s%d offen sc1' % (vCAS, vTM, sr(SDBG), sCO), tag=('Chk',)), cz + 1, 20)
        idx = [k for k, (ins, lo) in enumerate(pend) if ins.mn == 'v_add_f32' and ins.ops[0] == 'v%d' % (LT0 + 2)][-1]
        pend.insert(idx + 1, (max3, pend[idx][1]))
        cg = place_chain(G, pend)
        ck = check_items(t)
        cg = G.place(ck[0], cg); cg = G.place(ck[1], cg); cg = G.place(ck[2], cg + 1); G.put(cg, ck[3])
        assert cg >= 36
        G.chain(ladd, cg)
        padput(G, (OPT['pad'] + 1) // 2, t, 0)
        o += G.flat()
    else:
        for pre, d in dK: o += pre; o.append(I('s_nop 0')); o.append(d)
        i0 = softmax_items(cur, 2); i1 = softmax_items(cur, 3)
        for x, y in zip(i0, i1): o.append(x[2]); o.append(y[2])
        o.append(max3); o += check_items(t); o += ladd
    G = Gaps(pv_mfmas(t))
    if t < 30: nxt_rd = lambda n: rd_k(t + 2, n); nxt_tag = ('fK', t + 2, 0, 1); vmw = [('K', t + 2, 3), ('V', t + 1, 3)] + ([('Chk',)] if t == 29 else [])
    elif t == 30: nxt_rd = lambda n: rd_v(31, n); nxt_tag = ('fV', 31, 0, 1); vmw = [('V', 31, 3)]
    else: nxt_rd = lambda n: rd_wo(0, n); nxt_tag = ('fWo', 0, 0, 1); vmw = [('Wo', 0, 1, 3)]
    for g in range(16):
        nx = g + 4
        for r in (rd_v(t, nx) if nx < 16 else nxt_rd(nx - 16)): G.put(4 * g + 3, r)
        if g == 12:
            G.put(4 * g + 2, W(lg=('fV', t, g + 1, 1), vm=vmw)); G.put(4 * g + 2, 's_barrier')
        else: G.put(4 * g + 2, W(lg=('fV', t, g + 1, 1) if g < 15 else nxt_tag))
    pend = []
    if t < 31: pend = place_softmax(G, cur ^ 1, (0, 1), [4 * g for g in range(16)])
    grp = {4: [1, 3, 5, 7], 3: [1, 4, 7], 2: [2, 6], 1: [4], 0: []}[len(dV)]
    if OPT['pfl'] and t < 28:
        if t == 0 and pfstate['n'] != OPT['pfl']: raise SystemExit('last pfq must equal pfl')
        dV = dV + pf_items(OPT['pfl']); grp = grp + [10, 11]
    if t >= 28:
        for k, r in enumerate(pt_at(2 * (t - 28) + 1)): dV = dV + [pt_items(r)]; grp = grp + [(11 if t < 31 else 14) + k]
    put_dmas(G, dV, grp)
    place_chain(G, pend)
    if t < 31:
        G.chain(adv(sKO), 34)
        if t + LEAD < 32: G.chain(adv(sVO), 34)
    if t < 30 and (kslot(t + 1) == 8) != (kslot(t + 2) == 8): softplace(G, '%s v%d, %d, v%d' % ('v_add_u32' if kslot(t + 2) == 8 else 'v_subrev_u32', vKA, 8 * SLOT, vKA), 36, 50)
    if OPT['warm'] & 4 and OPT['woat'] == 100 + t:
        cz = 0
        for c in ['v_mbcnt_lo_u32_b32 v244, -1, 0', 's_lshl_b32 s37, s4, 2', 'v_bfe_u32 v%d, v244, 3, 2' % vTM, 's_add_u32 s37, s37, s3', 'v_and_b32 v244, 7, v244', 's_mul_i32 s37, s37, 3584',
                  'v_min_u32 v244, 6, v244', 'v_mul_u32_u24 v%d, 896, v%d' % (vTM, vTM), 'v_lshl_add_u32 v%d, v244, 7, v%d' % (vTM, vTM)]: cz = softplace(G, c, cz, cz + 4)
        softplace(G, I('buffer_load_dword v244, v%d, %s, s37 offen %s' % (vTM, sr(SWO), OPT['warmpol'].replace('+', ' ').replace('none', '')), tag=('PF',)), cz + 1, cz + 8)
    padput(G, OPT['pad'] // 2, t, 1)
    if t == 28 and LEAD < 4:
        cz = 34
        for c in ['v_mbcnt_lo_u32_b32 v%d, -1, 0' % vTM, 'v_and_b32 v%d, 3, v%d' % (vTM, vTM), 'v_lshlrev_b32 v%d, 2, v%d' % (vTM, vTM)]: cz = softplace(G, c, cz, cz + 3)
        softplace(G, I('buffer_load_dword v%d, v%d, %s, s%d offen sc1' % (vCAS, vTM, sr(SDBG), sCO), tag=('Chk',)), cz + 1, cz + 6)
    if OPT['ptl'] and 4 * PEEL <= t < 28:
        cz = softplace(G, I('buffer_load_dword v245, v246, %s, s36 offen %s' % (sr(SWS), OPT['ptpol'].replace('+', ' ')), tag=('PT', t)), 37, 45)
        softplace(G, 's_add_u32 s36, s36, %d' % (128 * OPT['ptl']), cz + 1, cz + 6)
    if OPT['ptl'] and t == 4 * PEEL - 1:
        cz = 30
        for c in ['v_mbcnt_lo_u32_b32 v246, -1, 0', 's_mul_i32 s36, s3, %d' % (OPT['ring'] * 4096), 'v_min_u32 v246, %d, v246' % (OPT['ptl'] - 1),
                  's_add_u32 s36, s36, s%d' % sPO, 'v_lshlrev_b32 v246, 7, v246']: cz = softplace(G, c, cz, cz + 4)
    if t == 30 and OPT['ptouch'] and not OPT['ptl'] and not OPT['ptat']:
        sh = OPT['ptouch']; R = OPT['ring']
        cz = 32
        for c in ['v_mbcnt_lo_u32_b32 v%d, -1, 0' % vTM, 's_mul_i32 s%d, s3, %d' % (sVO, R * 4096), 'v_mbcnt_hi_u32_b32 v%d, -1, v%d' % (vTM, vTM),
                  's_add_u32 s%d, s%d, s%d' % (sVO, sVO, sPO), 'v_lshlrev_b32 v%d, %d, v%d' % (vTM, sh, vTM)]: cz = softplace(G, c, cz, cz + 3)
        n = -(-R * 4096 // (64 << sh))
        for k in range(n):
            cz = softplace(G, I('buffer_load_dword v%d, v%d, %s, s%d offen' % (vFV, vTM, sr(SWS), sVO), tag=('PT', k)), cz + 1, min(63, cz + 4))
            if k < n - 1: cz = softplace(G, 's_add_u32 s%d, s%d, %d' % (sVO, sVO, 64 << sh), cz + 1, cz + 4) + 4
    if t == 29:
        ch = ['v_cmp_ne_u32 vcc, s%d, v%d' % (sFULL, vCAS), 'v_mbcnt_lo_u32_b32 v%d, -1, 0' % vTM, 's_or_b32 s%d, s6, s3' % sVO, 'v_or_b32 v%d, s%d, v%d' % (vTM, sVO, vTM),
              's_cmp_eq_u64 vcc, 0', 's_cselect_b32 s%d, 32, 64' % sVO, 'v_lshlrev_b32 v%d, 8, v%d' % (vTM, vTM), 's_or_b32 s%d, s%d, s%d' % (sVO, sVO, sREG), 'v_mov_b32 v%d, s%d' % (vCAS, sVO),
              I('buffer_store_byte v%d, v%d, %s, s%d offen' % (vCAS, vTM, sr(SDBG), sCO), tag=('Dec',))]
        cz = 52
        for k, c in enumerate(ch): cz = softplace(G, c, min(63, cz + (k in (4, 9))), min(63, cz + 2))
    if 4 * PEEL <= t < 28 and t % 4 == 3:
        gp = G.place('s_add_u32 s%d, s%d, 1' % (sLC, sLC), 44); G.place('s_cmp_lt_u32 s%d, 7' % sLC, max(gp + 1, 52))
        G.put(63, 's_cbranch_scc1 L_LOOP', force=True)
    if t == 31:
        ch = []
        for sw in ('v_permlane32_swap_b32', 'v_permlane16_swap_b32'):
            ch += ['v_mov_b32 v%d, v%d' % (LT0 + q, L0 + q) for q in range(4)]
            ch += ['%s v%d, v%d' % (sw, L0 + q, LT0 + q) for q in range(4)]
            ch += ['v_add_f32 v%d, v%d, v%d' % (L0 + q, L0 + q, LT0 + q) for q in range(4)]
        ch += ['v_rcp_f32 v%d, v%d' % (L0 + q, L0 + q) for q in range(4)]
        G.chain(ch, 0)
        ch = ['v_mbcnt_lo_u32_b32 v255, -1, 0', 'v_mbcnt_hi_u32_b32 v255, -1, v255', 's_mov_b32 s%d, 229376' % sVO,
              'v_and_b32 v243, 15, v255', 'v_lshrrev_b32 v254, 4, v255',
              'v_lshl_add_u32 v%d, v255, 9, s%d' % (vFL, sFLO), 'v_lshl_add_u32 v%d, v243, 4, s%d' % (vRL, sRLO),
              'v_writelane_b32 v%d, s%d, 1' % (vFL, sFCO), 'v_mad_u32_u24 v%d, v254, s%d, v%d' % (vRL, sVO, vRL)]
        ch += ['v_add_u32 v%d, %d, v%d' % (vRL + j, j * 917504, vRL) for j in (1, 2, 3)]
        ch += ['v_and_b32 v255, 1, v254', 'v_mul_lo_u32 v255, v255, s%d' % sPCO, 'v_lshl_add_u32 v%d, v243, 2, s%d' % (vPL, sPLO), 'v_add_u32 v%d, v255, v%d' % (vPL, vPL)]
        ch += ['v_lshrrev_b32 v255, 1, v254', 'v_lshlrev_b32 v254, 5, v254', 'v_lshl_add_u32 v254, v255, 20, v254', 'v_add_u32 v254, s%d, v254' % sOUO,
               'v_lshrrev_b32 v255, 2, v243', 'v_lshl_add_u32 v254, v255, 3, v254', 'v_and_b32 v255, 3, v243', 'v_mul_u32_u24 v255, 896, v255', 'v_add_u32 v%d, v255, v254' % vOUT]
        ch += ['v_and_b32 v255, 1, v243', 'v_lshlrev_b32 v255, 4, v255', 'v_lshlrev_b32 v255, v255, v%d' % vSEL, 'v_lshrrev_b32 v%d, 1, v243' % (vSEL + 3), 'v_lshlrev_b32 v%d, v%d, 1' % (vSEL + 3, vSEL + 3)]
        ch.insert(0, 'v_mov_b32 v%d, 0x3f80' % vSEL)
        for r in range(4): ch += ['v_bfe_i32 v%d, v%d, %d, 1' % (vSEL + r, vSEL + 3, r), 'v_and_b32 v%d, v255, v%d' % (vSEL + r, vSEL + r)]
        ch += ['v_lshl_add_u32 v%d, v243, 2, s%d' % (vPL2, sPLO), 'v_mul_i32_i24 v%d, %d, v243' % (vB, OPT['ring'] - 2 * OPT['lag'] + 2)]
        G.cap = 3
        G.chain(ch, 0)
    o += G.flat()
    return o

def pt_items(r):
    pre = ['v_mbcnt_lo_u32_b32 v%d, -1, 0' % vPT, 'v_min_u32 v%d, 31, v%d' % (vPT, vPT), 'v_lshlrev_b32 v%d, 7, v%d' % (vPT, vPT)]
    if r == 0: pre += ['s_lshl_b32 s36, s3, 12', 's_add_u32 s36, s36, s%d' % sPO]
    else: pre += ['s_add_u32 s36, s36, 16384']
    return [I(c) for c in pre] + [I('s_mov_b32 m0, %d' % (9 * SLOT))], I('buffer_load_dword v%d, %s, s36 offen %s lds' % (vPT, sr(SWS), OPT['ptpol'].replace('+', ' ')), tag=('PF',))
vPT = 231
def pt_at(code): return [r for r, c in enumerate(OPT['ptat']) if int(c, 36) == code]
def oconv():
    o = []
    A = lambda s: o.append(I(s))
    k = 0
    for ds in range(8):
        for qb in range(4):
            tmp = 128 + 8 * (k % 4); k += 1
            if k in (2, 12, 22) and (k - 2) // 10 < len(pt_at(8)):
                pre, d = pt_items(pt_at(8)[(k - 2) // 10]); o += pre + [I('s_nop 0'), d]
            for T in range(2):
                for r in range(4): A('v_accvgpr_read_b32 v%d, a%d' % (tmp + 4 * T + r, O(2 * ds + T, qb) + r))
            for j in range(4): A('v_cvt_pk_bf16_f32 v%d, v%d, v%d' % (Q(ds, qb) + j, tmp + 2 * j, tmp + 2 * j + 1))
    return o

def ringadv(reg, hc, R):
    return 's_add_u32 s%d, s%d, 16384' % (reg, reg) if (hc + 1) % R else 's_sub_u32 s%d, s%d, %d' % (reg, reg, (R - 1) * 16384)
def epi_items(hc, pol, R=14):
    buf = hc & 1; it = []
    if R != 14 and hc < R and OPT['st0pol']: pol = OPT['st0pol'].replace('+', ' ')
    if R != 14 and hc >= 14 - OPT['stlast']: pol = OPT['stpol2'].replace('+', ' ')
    for qb in range(4):
        b = S(buf, qb)
        for j in range(4):
            it.append(I('v_mul_f32 v%d, v%d, v%d' % (b + 2 * j, b + 2 * j, L0 + qb)))
            it.append(I('v_mul_f32 v%d, v%d, v%d' % (b + 2 * j + 1, b + 2 * j + 1, L0 + qb)))
            it.append(I('v_cvt_pk_bf16_f32 v%d, v%d, v%d' % (b + j, b + 2 * j, b + 2 * j + 1)))
        it.append(I('buffer_store_dwordx4 %s, v%d, %s, s%d offen offset:%d %s' % (vr(b), vST, sr(SWS), sPO, qb * 1024, pol), tag=('St', hc, qb)))
    it.append(I(ringadv(sPO, hc, R)))
    return it

def rd_wo8(hc, n):
    ds, T = n >> 1, n & 1
    nt = 2 * (hc & 1) + T
    r = RING8(n)
    return [I('ds_read_b64_tr_b16 %s, v%d offset:%d' % (vr(r + 2 * rho, 2), vOA + nt, (4 * ds + 2 * rho) * 1088), tag=('fWo', hc, n, rho)) for rho in (0, 1)]
def red_loads(hc, rb): return [I('buffer_load_dwordx4 %s, v%d, %s, s%d offen %s' % (ar(rb + 4 * j), vRL + j, sr(SWS), sCO, 'sc1' if hc == 99 else OPT['rlpol'].replace('+', ' ').replace('none', '')), tag=('RL', hc, j)) for j in range(4)]
def red_mfmas(rb, d=vRD): return [I('%s %s, %s, %s, %s' % (MF, vr(d), vr(vSEL), ar(rb + 4 * j), vr(d) if j else '0')) for j in range(4)]
def red_out(hc, d=vRD, cv=vCV):
    return [I('v_cvt_pk_bf16_f32 v%d, v%d, v%d' % (cv, d, d + 1)), I('v_cvt_pk_bf16_f32 v%d, v%d, v%d' % (cv + 1, d + 2, d + 3)),
            I('buffer_store_dwordx2 %s, v%d, %s, 0 offen offset:%d %s' % (vr(cv, 2), vOUT, sr(SOUT), hc * 64, OPT['outpol'].replace('+', ' ')), tag=('Out', hc))]
def poll(tag, a=vPL): return I('buffer_load_dword v%d, v%d, %s, 0 offen sc1' % (vPR, a, sr(SWS)), tag=tag)
def flag(val):
    R, LAG = OPT['ring'], OPT['lag']
    if val + 1 - LAG >= 0: r = [I('v_add_u32 v%d, %d, v%d' % (vFV, val, vB))]
    else: r = [I('v_mov_b32 v%d, %d' % (vFV, R - LAG + 1)), I('v_writelane_b32 v%d, %d, 0' % (vFV, val))]
    return r + [I('buffer_store_dword v%d, v%d, %s, 0 offen' % (vFV, vFL, sr(SWS)), tag=('Fl', val))]
spins = []
def spin_stub(lab, thr, a):
    o = []
    A = lambda s: o.append(I(s))
    A('%s:' % lab); A('s_movk_i32 s%d, 0x7fff' % sT1)
    A('%s_L:' % lab); o.append(poll(None, a)); A('s_waitcnt vmcnt(0)'); A('v_cmp_gt_u32 vcc, %d, v%d' % (thr, vPR))
    A('s_sub_u32 s%d, s%d, 1' % (sT1, sT1)); A('s_cbranch_scc1 %s_RET' % lab); A('s_cbranch_vccnz %s_L' % lab); A('s_branch %s_RET' % lab)
    return o

def softplace(G, ins, lo, hi=None):
    if isinstance(ins, str): ins = I(ins)
    hi = G.n - 1 if hi is None else hi
    for gp in range(lo, hi + 1):
        if G.fits(gp, ins): return G.put(gp, ins)
    for extra in (1, 2, 3, 4):
        for gp in range(lo, hi + 1):
            if G.used[gp] + ins.cost <= G.cap + extra and not (ins.kind == 'ds' and any(x.kind == 'valu' for x in G.g[gp])):
                return G.put(gp, ins, force=True)
    raise AssertionError(('no room', ins.text))

def phase3(fast):
    o = []
    LAG = OPT['lag']
    pol = OPT['stpol'].replace('+', ' ') if fast else 'sc1'
    R = OPT['ring'] if fast else 14
    for hc in range(14):
        p = hc
        mf = []
        consume = fast and p - LAG - 1 >= 0
        red = red_mfmas(0) if consume else []
        rpos = {40: 0, 42: 1, 44: 2, 46: 3}
        gi = {}
        for n in range(16):
            ds, T = n >> 1, n & 1
            for qb in range(4):
                d = vr(S(hc & 1, qb, T))
                k = 4 * n + qb
                if red and k in rpos: mf.append(red[rpos[k]])
                gi[k] = len(mf)
                mf.append(I('%s %s, %s, %s, %s' % (MF, d, vr(RING8(n)), vr(Q(ds, qb)), d if ds else '0')))
        G = Gaps(mf)
        ch = hc >> 1
        dopoll = fast and p >= LAG
        if consume:
            rl = red_loads(p - LAG - 1, 0)
            G.put(0, rl[2]); G.put(5, rl[3]); G.put(6, ringadv(sCO, p - LAG - 1, R))
        if dopoll: G.put(OPT['ppos'], poll(('Poll', p)))
        for g in range(16):
            nx = g + 7
            if nx < 16 or hc < 13:
                for r in (rd_wo8(hc, nx) if nx < 16 else rd_wo8(hc + 1, nx - 16)): G.put(gi[4 * g + 3], r)
            if g & 1:
                if g < 15: lg = ('fWo', hc, g + 2 if g < 14 else 15, 1)
                else: lg = ('fWo', hc + 1, 1, 1) if hc < 13 else None
                vm = []
                if g == 9:
                    if (hc & 1) and hc < 13: vm.append(('Wo', ch + 1, 1, 3))
                    if dopoll: vm.append(('Poll', p))
                    elif fast and p >= 2: vm.append(('St', p - 2, 3))
                if lg or vm: G.put(gi[4 * g + 2], W(lg=lg, vm=vm or None))
                if g == 9 and (hc & 1) and hc < 13: G.put(gi[4 * g + 2], 's_barrier')
        dm = []
        if hc in WOS: dm = [dma_wo(*WOS[hc], q, sT0) for q in range(4)]
        grp = ([4, 5, 7, 8] if fast else [1, 2, 3, 4])[:len(dm)]
        if fast:
            for r in pt_at(9 + hc): dm = [pt_items(r)] + dm; grp = [2] + grp
        put_dmas(G, dm, grp)
        after = gi[38] + 1
        stlo = 0
        if fast and p >= 2:
            f = flag(p - 1)
            cg = G.chain(f[:-1], 30); softplace(G, f[-1], max(after, cg + 1))
        if dopoll:
            lab = 'SP_%d' % p
            spins.append((lab, p - LAG + 1, vPL))
            cg = G.place('v_cmp_gt_u32 vcc, %d, v%d' % (p - LAG + 1, vPR), after)
            cg = G.place('s_cbranch_vccnz %s' % lab, cg + 1); G.put(cg, I('%s_RET:' % lab))
            stlo = cg + 1
            rl = red_loads(p - LAG, 0)
            softplace(G, rl[0], gi[53]); softplace(G, rl[1], gi[61])
        og = 0
        if fast and p - LAG - 2 >= 0: og = softplace(G, red_out(p - LAG - 2)[2], gi[44])
        if consume:
            ro = red_out(p - LAG - 1)
            cg = softplace(G, ro[0], max(gi[46] + 6, og + 1)); cg = softplace(G, ro[1], cg)
        if hc < 12:
            delta = 34816 if (ch + 1) % 4 else -3 * 34816
            pair = (0, 1) if hc % 2 == 0 else (2, 3)
            for nt in pair:
                softplace(G, ('v_add_u32 v%d, %d, v%d' % (vOA + nt, delta, vOA + nt)) if delta > 0 else ('v_subrev_u32 v%d, %d, v%d' % (vOA + nt, -delta, vOA + nt)), gi[36])
        if hc > 0:
            cur = 0; last = stlo
            ep = epi_items(hc - 1, pol, R)
            if stlo:
                pre = {}
                for ins, tg in zip([x for x in ep if x.kind == 'vst'][:3], (stlo, gi[46], gi[50])): last = pre[ins.tag] = softplace(G, ins, tg)
            for ins in ep:
                if ins.kind == 'vst':
                    if stlo and ins.tag in pre: assert cur < pre[ins.tag], (hc, ins.tag, cur, pre)
                    else: last = softplace(G, ins, max(cur + 1, last))
                elif ins.kind == 'salu': softplace(G, ins, last)
                else: cur = softplace(G, ins, cur)
        o += G.flat()
    if not fast:
        o.append(I('s_nop 7'))
        o += epi_items(13, pol, R)
    return o

def fast_tail():
    o = []
    A = lambda s: o.append(I(s))
    LAG = OPT['lag']; R = OPT['ring']
    h0 = 13 - LAG
    ep = epi_items(13, OPT['stpol'].replace('+', ' '), R)
    rl = red_loads(h0, 0)
    o += rl[2:]; A(ringadv(sCO, h0, R))
    o.append(poll(('Poll', 14)))
    f = flag(13); o += f[:-1]
    A('s_nop 2')
    o += ep[:12]
    o.append(W(vm=('Poll', 14))); o.append(f[-1])
    spins.append(('SP_14', 15 - LAG, vPL))
    A('v_cmp_gt_u32 vcc, %d, v%d' % (15 - LAG, vPR)); o += ep[13:15]; A('s_cbranch_vccnz SP_14'); A('SP_14_RET:')
    o.append(ep[12]); o += ep[15:-1]
    o += red_loads(h0 + 1, 16); A(ringadv(sCO, h0 + 1, R))
    o.append(red_out(h0 - 1)[2])
    o += red_mfmas(0)
    A('v_mov_b32 v%d, 14' % vFV)
    o.append(W(vm=('St', 13, 3)))
    o.append(I('buffer_store_dword v%d, v%d, %s, 0 offen' % (vFV, vFL, sr(SWS)), tag=('Fl', 14)))
    o.append(poll(('Poll', 15), vPL2))
    o.append(W(vm=('RL', h0 + 1, 3)))
    o += red_mfmas(16, 128)
    ro0 = red_out(h0); o += ro0[:2]
    o.append(W(vm=('Poll', 15)))
    spins.append(('SP_15', 14, vPL2))
    A('v_cmp_gt_u32 vcc, 14, v%d' % vPR); A('s_nop 0'); A('s_cbranch_vccnz SP_15'); A('SP_15_RET:')
    rest = list(range(h0 + 2, 14))
    for k, hc in enumerate(rest):
        o += red_loads(hc, 16 * k + 32); A(ringadv(sCO, hc, R))
    o.append(ro0[2])
    o += red_out(h0 + 1, 128, 132)
    mm = [red_mfmas(16 * k + 32, 136 + 8 * k) for k in range(len(rest))]
    o.append(W(vm=('RL', 13, 3)))
    for j in range(4):
        for m in mm: o.append(m[j])
    A('s_nop 7')
    for k, hc in enumerate(rest): o += red_out(hc, 136 + 8 * k, 140 + 8 * k)
    return o

def dec_load(tag=None): return I('buffer_load_dword v%d, off, %s, s%d sc1' % (vCAS, sr(SDBG), sCO), tag=tag)
def decide():
    o = []
    A = lambda s: o.append(I(s))
    o.append(W(vm=('DecL',)))
    A('v_readfirstlane_b32 s%d, v%d' % (sT0, vCAS))
    A('s_bitcmp1_b32 s%d, 5' % sT0); A('s_cbranch_scc0 L_DECIDE'); A('L_FAST:'); A('s_mov_b32 s%d, 0' % sCO)
    return o

def slow_path(pro):
    o = []
    A = lambda s: o.append(I(s))
    A('L_DECIDE:')
    A('v_mbcnt_lo_u32_b32 v237, -1, 0'); A('v_lshl_add_u32 v237, v237, 8, s6')
    A('s_mov_b32 s%d, 0x40000' % sLC)
    A('L_DEC_A:')
    o.append(dec_load()); A('s_waitcnt vmcnt(0)'); A('v_readfirstlane_b32 s%d, v%d' % (sT0, vCAS))
    A('s_bitcmp1_b32 s%d, 5' % sT0); A('s_cbranch_scc1 L_FAST')
    A('s_bitcmp1_b32 s%d, 6' % sT0); A('s_cbranch_scc1 L_SLOW')
    A('s_bitcmp1_b32 s%d, 7' % sT0); A('s_cbranch_scc0 L_DEC_V')
    A('s_xor_b32 s%d, s%d, s%d' % (sT0, sT0, sREG)); A('s_and_b32 s%d, s%d, 15' % (sT0, sT0)); A('s_cbranch_scc1 L_SLOW')
    A('s_sub_u32 s%d, s%d, 1' % (sLC, sLC)); A('s_cbranch_scc0 L_DEC_A'); A('s_branch L_SLOW')
    A('L_DEC_V:')
    A('s_or_b32 s%d, s%d, 64' % (sT0, sREG)); A('v_mov_b32 v%d, s%d' % (vCAS, sT0))
    A('buffer_store_byte v%d, v237, %s, s%d offen' % (vCAS, sr(SDBG), sCO)); A('s_waitcnt vmcnt(0)')
    o.append(dec_load()); A('s_waitcnt vmcnt(0)'); A('v_readfirstlane_b32 s%d, v%d' % (sT0, vCAS))
    A('s_bitcmp1_b32 s%d, 7' % sT0); A('s_cbranch_scc1 L_DEC_A')
    A('L_SLOW:')
    o += phase3(False)
    A('s_waitcnt vmcnt(0)'); A('buffer_wbl2 sc1'); A('s_waitcnt vmcnt(0)')
    A('s_barrier'); A('s_cmp_eq_u32 s3, 0'); A('s_cbranch_scc0 L_END')
    A('s_and_b32 s%d, s6, 3' % sT0); A('s_lshl_b32 s%d, s%d, 3' % (sT0, sT0)); A('s_lshl_b32 s%d, 16, s%d' % (sT0, sT0)); A('v_mov_b32 v%d, s%d' % (vCAS, sT0))
    A('v_and_b32 v255, -4, v237')
    A('buffer_atomic_or v%d, v255, %s, s%d offen sc0 sc1' % (vCAS, sr(SDBG), sCO)); A('s_waitcnt vmcnt(0)')
    A('v_mbcnt_lo_u32_b32 v255, -1, 0'); A('v_lshrrev_b32 v%d, 2, v255' % vCAS); A('v_lshlrev_b32 v255, 2, v255'); A('v_lshl_add_u32 v255, v%d, 8, v255' % vCAS)
    A('v_mov_b32 v%d, 0' % vCAS)
    A('buffer_atomic_or v%d, v255, %s, s%d offen sc0 sc1' % (vCAS, sr(SDBG), sCO)); A('s_waitcnt vmcnt(0)')
    A('s_mov_b32 s%d, 0x10101010' % sT0); A('v_and_b32 v%d, s%d, v%d' % (vCAS, sT0, vCAS)); A('v_cmp_eq_u32 vcc, s%d, v%d' % (sT0, vCAS))
    A('s_nop 1'); A('s_and_b32 s%d, vcc_lo, 15' % sT0); A('s_cmp_eq_u32 s%d, 15' % sT0); A('s_cbranch_scc0 L_END')
    A('buffer_inv sc1'); A('s_waitcnt vmcnt(0)')
    for j in range(4): A('v_subrev_u32 v%d, s%d, v%d' % (vRL + j, sRLO, vRL + j))
    A('v_subrev_u32 v%d, s%d, v%d' % (vOUT, sOUO, vOUT))
    A('s_mov_b32 s%d, 0' % sLC)
    A('L_SLOOP:')
    A('s_lshl_b32 s%d, s%d, 8' % (sCO, sLC))
    o += red_loads(99, 0)
    A('s_bfe_u32 s%d, s%d, 0x40002' % (sT0, sLC)); A('s_mul_i32 s%d, s%d, 14336' % (sT0, sT0))
    A('s_and_b32 s%d, s%d, 3' % (sT1, sLC)); A('s_mul_i32 s%d, s%d, 3584' % (sT1, sT1)); A('s_add_u32 s%d, s%d, s%d' % (sT0, sT0, sT1))
    A('s_andn2_b32 s%d, s%d, 63' % (sT1, sLC)); A('s_add_u32 s%d, s%d, s%d' % (sT0, sT0, sT1))
    A('s_waitcnt vmcnt(0)')
    o += red_mfmas(0); A('s_nop 7')
    ro = red_out(0); o += ro[:2]
    A('buffer_store_dwordx2 %s, v%d, %s, s%d offen' % (vr(vCV, 2), vOUT, sr(SOUT), sT0))
    A('s_add_u32 s%d, s%d, 1' % (sLC, sLC)); A('s_cmp_lt_u32 s%d, 896' % sLC); A('s_cbranch_scc1 L_SLOOP')
    A('s_waitcnt vmcnt(0)'); A('s_endpgm')
    return o

def rare(par):
    o = []
    A = lambda s: o.append(I(s))
    A('RARE_%d:' % par)
    A('s_nop 7'); A('s_nop 7')
    A('v_mbcnt_lo_u32_b32 v252, -1, 0'); A('v_mbcnt_hi_u32_b32 v252, -1, v252')
    A('v_and_b32 v253, 15, v252'); A('v_lshlrev_b32 v253, 9, v253'); A('v_lshrrev_b32 v252, 4, v252'); A('v_lshl_add_u32 v252, v252, 4, v253')
    A('s_sub_u32 s%d, s%d, %d' % (sR0, sKO, LEAD * 16384))
    for T in range(2):
        if T: A('s_add_u32 s%d, s%d, 8192' % (sR0, sR0))
        for ds in range(0, 8, 2):
            A('buffer_load_dwordx4 v[244:247], v252, %s, s%d offen offset:%d' % (sr(SK), sR0, ds * 64))
            A('buffer_load_dwordx4 v[248:251], v252, %s, s%d offen offset:%d' % (sr(SK), sR0, ds * 64 + 64))
            A('s_waitcnt vmcnt(0)')
            for d2 in range(2):
                for qb in range(4):
                    d = vr(S(par, qb, T))
                    A('%s %s, %s, %s, %s' % (MF, d, vr(244 + 4 * d2), vr(Q(ds + d2, qb)), d if ds + d2 else vr(NEGM(qb))))
            A('s_nop 7')
    A('s_nop 7')
    for qb in range(4):
        b = S(par, qb); y = S(par ^ 1, qb)
        A('v_max3_f32 v253, v%d, v%d, v%d' % (b, b + 1, b + 2)); A('v_max3_f32 v253, v253, v%d, v%d' % (b + 3, b + 4))
        A('v_max3_f32 v253, v253, v%d, v%d' % (b + 5, b + 6)); A('v_max_f32 v253, v253, v%d' % (b + 7))
        for sw in ('v_permlane32_swap_b32', 'v_permlane16_swap_b32'):
            A('v_mov_b32 v254, v253'); A('s_nop 1'); A('%s v253, v254' % sw); A('v_max_f32 v253, v253, v254')
        A('v_max_f32 v253, 0, v253')
        A('v_exp_f32 v255, -v253')
        for r in range(4): A('v_sub_f32 v%d, v%d, v253' % (NEGM(qb) + r, NEGM(qb) + r))
        for k in range(8): A('v_sub_f32 v%d, v%d, v253' % (y + k, y + k))
        for k in range(8): A('v_sub_f32 v%d, v%d, v253' % (b + k, b + k))
        for kind, k, ins in softmax_items(par, qb):
            o.append(ins)
            if kind == 'e': A('s_nop 0')
        A('v_mul_f32 v%d, v%d, v255' % (L0 + qb, L0 + qb))
        for db in range(0, 16, 2):
            regs = [O(db + d, qb) + r for d in range(2) for r in range(4)]
            for k, a in enumerate(regs): A('v_accvgpr_read_b32 v%d, a%d' % (244 + k, a))
            for k, a in enumerate(regs): A('v_mul_f32 v%d, v%d, v255' % (244 + k, 244 + k))
            for k, a in enumerate(regs): A('v_accvgpr_write_b32 a%d, v%d' % (a, 244 + k))
    A('s_nop 1')
    A('s_setpc_b64 %s' % sr(sRET, 2))
    return o

def dump_v(first, nfrag):
    o = []
    A = lambda s: o.append(I(s))
    A('s_nop 7'); A('s_nop 7'); A('s_waitcnt vmcnt(0) lgkmcnt(0)')
    A('s_lshl_b32 s34, s%d, 17' % sBH); A('s_add_u32 s28, s50, s34'); A('s_addc_u32 s29, s51, 0'); A('s_mov_b32 s30, 131072')
    for f in range(nfrag):
        A('s_mov_b32 s35, %d' % ((f // 4) * 16384 + (f % 4) * 1024))
        A('buffer_store_dwordx4 %s, v%d, %s, s35 offen' % (vr(first + 4 * f), vST, sr(SWS)))
    A('s_waitcnt vmcnt(0)'); A('s_endpgm')
    return o

def stamps_out():
    o = []
    if not OPT['stamps']: return o
    A = lambda s: o.append(I(s))
    A('s_waitcnt vmcnt(0)')
    A('s_memrealtime s[94:95]'); A('s_waitcnt lgkmcnt(0)')
    A('s_add_u32 s28, s50, 0x4000000'); A('s_addc_u32 s29, s51, 0'); A('s_mov_b32 s30, 0x100000')
    A('s_lshl_b32 s34, s2, 2'); A('s_add_u32 s34, s34, s3'); A('s_lshl_b32 s34, s34, 7')
    A('v_mov_b32 v1, 0')
    for k in range(32):
        A('v_mov_b32 v0, s%d' % (sST + k)); A('buffer_store_dword v0, v1, %s, s34 offen offset:%d' % (sr(SWS), 4 * k)); A('s_nop 1')
    return o

def main_kernel():
    pre = setup()
    if OPT['stamps']: pre = [I('s_memrealtime s[92:93]')] + pre
    stamp(pre)
    p1 = phase1()
    if OPT['stop'] == 'q':
        body = pre + p1 + dump_v(0, 32); loop = None; post = []; slow = []
        stream = body
    else:
        stamp(p1)
        pro = prologue()
        stamp(pro)
        iters = [sum((step(4 * it + k) for k in range(4)), []) for it in range(7)]
        if OPT['stamps'] == 2:
            for it in iters:
                it[0:0] = [I('s_waitcnt lgkmcnt(0)'), I('s_memrealtime s[96:97]'), I('s_waitcnt lgkmcnt(0)'), ] + [I('s_mov_b32 s%d, s%d' % (84 + k, 85 + k)) for k in range(6)] + [I('s_mov_b32 s90, s96')]
        tail = []
        stamp(tail)
        for t in range(28, 32): tail += step(t)
        stamp(tail)
        for n in (4, 5, 6): tail += rd_wo8(0, n)
        tail.append(dec_load(('DecL',)))
        tail += oconv()
        slow = []
        if OPT['stop'] == 'o': tail += dump_v(0, 32)
        else:
            stamp(tail)
            tail += [W(lg=('fWo', 0, 1, 1))] + decide()
            common = pre + p1 + pro + sum(iters, []) + tail
            slow = slow_path(common)
            resolve_waits(common + slow); finalize_waits(slow)
            tail += phase3(True)
            stamp(tail)
            tail += fast_tail()
            stamp(tail)
            tail += stamps_out()
            tail += [I('s_waitcnt vmcnt(0)')]
        stream = pre + p1 + pro + sum(iters, []) + tail
    resolve_waits(stream)
    if OPT['stop'] != 'q': unify_iters(iters[PEEL:])
    finalize_waits(stream)
    errs = check_hazards(stream, 'main')
    if slow: errs += check_hazards(common + slow, 'slow')
    out = []
    if OPT['stop'] == 'q': out = stream
    else: out = pre + p1 + pro + sum(iters[:PEEL], []) + [I('L_LOOP:')] + iters[PEEL] + tail
    out += [I('L_END:'), I('s_endpgm')]
    if OPT['stop'] != 'q':
        for lab, par in stubs:
            out += [I('%s:' % lab), I('s_call_b64 %s, RARE_%d' % (sr(sRET, 2), par)), I('s_branch %s_RET' % lab)]
        for lab, thr, a in spins: out += spin_stub(lab, thr, a)
        for par in (0, 1):
            r = rare(par); errs += check_hazards(r, 'rare'); out += r
        out += slow
    for e in errs[:40]: print('; ERROR', e, file=sys.stderr)
    if errs: raise SystemExit('hazard errors: %d' % len(errs))
    return out

def desc(name, vg, acc, y=False):
    return '''.amdhsa_kernel %s
  .amdhsa_next_free_vgpr %d
  .amdhsa_next_free_sgpr 102
  .amdhsa_accum_offset %d
  .amdhsa_group_segment_fixed_size 0
  .amdhsa_kernarg_size 64
  .amdhsa_user_sgpr_count 2
  .amdhsa_user_sgpr_kernarg_segment_ptr 1
  .amdhsa_system_sgpr_workgroup_id_x 1
%s.end_amdhsa_kernel''' % (name, vg, acc, '  .amdhsa_system_sgpr_workgroup_id_y 1\n' if y else '')

def fmt(ins):
    if ins.kind == 'dma' and ins.tag and OPT['nodma'] & {'X': 1, 'Wq': 2, 'K': 4, 'V': 4, 'Wo': 8, 'PF': 16}[ins.tag[0]]: return '    s_nop 0'
    if ins.kind == 'vst' and ins.tag and ins.tag[0] == 'St' and OPT['nost']: return '    s_nop 0'
    if OPT['noexp'] and ins.mn == 'v_exp_f32': return '    ' + ins.text.replace('v_exp_f32', 'v_mov_b32')
    k = OPT['kill']
    if ins.tag and ins.kind in ('vst', 'vld') and k & {'RL': 1, 'Out': 2, 'Poll': 4, 'Fl': 8, 'Reg': 32, 'Fz': 64, 'Dec': 128, 'Chk': 128}.get(ins.tag[0], 0): return '    s_nop 0'
    if k & 16 and ins.text.startswith('s_cbranch_vccnz SP_'): return '    s_nop 0'
    if k & 32 and ins.text.startswith('s_cbranch_scc0 L_DECIDE'): return '    s_nop 0'
    return ins.text if ins.kind == 'label' else '    ' + ins.text

if __name__ == '__main__':
    K1 = OPT['name'] + '_kernel'; K2 = 'mha_reduce_kernel'
    hdr = open('standalone__mha_block_cached__near_ridge.s.ref').read().split('; Override launch')[0]
    t = hdr
    t += '; @launch grid=(256,1,1) block=(256,1,1) lds=163840\n'
    t += '.amdgcn_target "amdgcn-amd-amdhsa--gfx950"\n.text\n'
    for K, body in ((K1, main_kernel()),):
        t += '.globl %s\n.p2align 8\n.type %s,@function\n%s:\n' % (K, K, K)
        t += '\n'.join(fmt(i) for i in body) + '\n'
    t += '.section .rodata,"a"\n.p2align 6\n' + desc(K1, 512, 256) + '\n'
    sys.stdout.write(t)
```

```python
import sys, os
sys.path.insert(0, os.path.dirname(os.path.abspath(__file__)))
from asmlib import *

OPT = dict(tight=0, ncl=0, chain=0, w2=0, fill='04444444404', st0pol='', wsoff=0, ptat='', ptl=0, ptpol='', peel=0, lead=4, pre9=0, kp='', vp='', cpf=0, stlast=0, stpol2='sc1', outpol='', l2two='', tlbw=0, tlbs=16, warm=0, woat=6, warmpol='none', l2pf='', l2at='', l2pol='none', xpol='', wopol='', mix=0, pol2='', drop='', padp='', pad1='', padit=0, padfrom=0, pad=0, noexp=0, pf='', pfq='', pfl=0, pfpol='nt', ppos=12, prel=0, rlpol='sc1', kill=0, fuse=1, lag=3, ptouch=7, forceslow=0, map=1, ring=4, stpol='', wpol='', rot=0, kvpol='nt', nodma=0, nost=0, wq8=1, stop='', stamps=0, thr=0x47800000, name='standalone__mha_block_cached__near_ridge')
for a in sys.argv[1:]:
    k, v = a.split('=')
    OPT[k] = v if k in ('stop', 'name', 'kvpol', 'stpol', 'wpol', 'rlpol', 'pf', 'pfq', 'pfpol', 'padp', 'pad1', 'drop', 'pol2', 'l2pf', 'l2at', 'l2pol', 'xpol', 'wopol', 'warmpol', 'l2two', 'stpol2', 'outpol', 'kp', 'vp', 'ptpol', 'st0pol', 'ptat', 'fill') else int(v, 0)

SLOT = 17408
MF = 'v_mfma_f32_16x16x32_bf16'
def vr(b, n=4): return 'v[%d:%d]' % (b, b + n - 1) if n > 1 else 'v%d' % b
def ar(b, n=4): return 'a[%d:%d]' % (b, b + n - 1) if n > 1 else 'a%d' % b
def sr(b, n=4): return 's[%d:%d]' % (b, b + n - 1)

SK, SV, SWQ, SX, SWO, SWS = 8, 12, 16, 20, 24, 28
sWL, sWL8, sT0, sT1 = 32, 33, 34, 35
sKO, sLC, sTHR, sSC, sRET, sR0, sVO = 52, 53, 54, 56, 58, 61, 62
sBH = 63
sST = 64
def Q(ds, qb): return 4 * (ds * 4 + qb)
def S(buf, qb, T=0): return 128 + 32 * buf + 8 * qb + 4 * T
def NEGM(qb): return 192 + 4 * qb
def RING(n): return 208 + 4 * (n % 4)
L0, LT0 = 224, 228
vKA, vVAe, vVAo, vDK, vDV, vDWo, vOA, vST, vTM = 232, 233, 234, 236, 237, 235, 238, 242, 243
vSEL, vRL, vFL, vPL, vOUT, vRD, vCV, vPR, vFV, vCAS = 244, 248, 252, 253, 254, 228, 232, 234, 237, 236
sPO, sCO, sREG, sFULL, sFLO, sPLO, sRLO, sOUO = 55, 60, 5, 7, 98, 99, 100, 101
sFCO, sPCO = 33, 63
vB, vPL2 = 243, 255
SDBG, SOUT = 20, 16
BSTRIDE, FLOFF = 3670528, 3670016
def RING8(n): return 192 + 4 * ((n + 4) % 8)
vWA0, vWA1, vWA80, vWA81, vXA, vDWq, vDX = 244, 245, 246, 247, 248, 249, 250
def O(db, qb): return 4 * (db * 4 + qb)
def ACC(ds, qb, T):
    if ds < 7: return vr(8 * (ds * 4 + qb) + 4 * T)
    return ar(8 * qb + 4 * T)
def XF(j, T, qb): return (32 if j % 6 == 0 else 48 + 32 * j) + 16 * T + 4 * qb
sWX, sXP = 91, 84
def ARING(n): return 64 + 4 * (n % 4)

nstamp = [0]
def stamp(out):
    if not OPT['stamps']: return
    k = nstamp[0]; nstamp[0] += 1
    out.append(I('s_waitcnt lgkmcnt(0)'))
    out.append(I('%s %s' % ('s_memrealtime' if OPT['stamps'] == 3 else 's_memtime', sr(sST + 2 * k, 2))))
    out.append(I('s_waitcnt lgkmcnt(0)'))

LEAD, PEEL, CH = OPT['lead'], OPT['peel'], OPT['chain']
NCL = OPT['ncl'] or 4 + (PEEL + 1) // 2
assert PEEL >= 1
KSL = {4: 8}
def kslot(n): return KSL.get(n, n % 4)
def mk_sched():
    avail = {('K', 0): 6, ('K', 1): 6, ('K', 2): 7, ('K', 3): 7, ('K', 4): 15, ('V', 0): 10, ('V', 1): 11, ('V', 2): 12, ('V', 3): 13}
    order = [('K', 0), ('K', 1), ('V', 0), ('K', 2), ('V', 1), ('K', 3), ('V', 2), ('K', 4), ('V', 3)]
    done = {k: 0 for k in order}; F = {}
    for per, c in zip(range(5, 16), OPT['fill']):
        F[per] = []
        for _ in range(int(c, 36)):
            k = [k for k in order if avail[k] <= per and done[k] < 4][0]
            F[per].append((k[0], k[1], done[k])); done[k] += 1
    S = {}
    for which, prof, lead in (('K', OPT['kp'], LEAD), ('V', OPT['vp'], LEAD - 1)):
        c = sum(v for k, v in done.items() if k[0] == which)
        assert all(done[which, q // 4] > q % 4 for q in range(c)), 'fill must be a prefix'
        D = {}; first = {}
        for t in range(4 * PEEL + 4):
            n = int(prof[t]) if t < len(prof) else 4
            if t == 4 * PEEL: assert c == 4 * (4 * PEEL + lead), (which, c, 4 * (4 * PEEL + lead))
            D[t] = [(q // 4, q % 4) for q in range(c, c + n)]; c += n
            for tile, p in D[t]:
                first.setdefault(tile, t)
                if which == 'V': assert tile - 4 < t, ('V slot busy', t, tile)
        S[which] = D
        if which == 'K':
            def rec(n, occ):
                if n not in first: return {}
                for sl in ([n % 4] if n > 4 * PEEL else [n % 4, 0, 1, 2, 3, 8]):
                    if occ[sl] <= first[n]:
                        r = rec(n + 1, {**occ, sl: n})
                        if r is not None: return {n: sl, **r}
                return None
            r = rec(5, {0: 0, 1: 1, 2: 2, 3: 3, 8: 4})
            assert r is not None, 'no slot assignment'
            KSL.update(r)
    return F, S['K'], S['V']
FILL, KS, VS = mk_sched()
def fill_dmas(per):
    r = []; prev = None
    for w, n, p in FILL.get(per, []):
        r.append(dma_kv_imm(w, n, p, sT0, prev != (w, n))); prev = (w, n)
    return r
if LEAD == 4: WOS = {(28, 0): (0, 0), (29, 0): (0, 1), (30, 0): (1, 0), (31, 0): (1, 1), (29, 1): (2, 0), (30, 1): (2, 1), (31, 1): (3, 0), 0: (3, 1), 2: (4, 0), 3: (4, 1), 4: (5, 0), 5: (5, 1), 6: (6, 0), 7: (6, 1)}
else: WOS = dict(zip([(29, 0), (30, 0), (30, 1), (31, 0), (31, 1)] + list(range(9)), [(c, h) for c in range(7) for h in range(2)]))
def dma_kv(which, tile, slot, p, soff):
    srd, vo = (SK, vDK) if which == 'K' else (SV, vDV)
    pre = [I('s_add_u32 m0, s%d, %d' % (sWL, slot * SLOT + p * 64))]
    pol = OPT['pol2'] if (which, p) in [('K', 3), ('V', 3), ('K', 1), ('V', 1), ('K', 2), ('V', 2)][:OPT['mix']] else OPT['kvpol']
    d = I('buffer_load_dwordx4 v%d, %s, s%d offen offset:%d %s lds' % (vo, sr(srd), soff, p * 1024, pol.replace('+', ' ')), tag=(which, tile, p))
    return pre, d
def dma_wq(tile, p, st):
    slot = 4 + (tile + 1) % 5
    pre = [I('s_add_u32 m0, s%d, %d' % (sWL8, slot * SLOT + p * 1088)), I('s_mov_b32 s%d, %d' % (st, tile * 32 * 8192 + p * 16384))]
    d = I('buffer_load_dwordx4 v%d, %s, s%d offen %s lds' % (vDWq, sr(SWQ), st, OPT['wpol'].replace('+', ' ')), tag=('Wq', tile, p))
    return pre, d
XB = lambda j: 34816 * (1 - (j & 1))
def dma_x(j, p, st=None):
    pre = [I('s_add_u32 m0, s%d, %d' % (sWX, XB(j) + p * 1088))]
    if p == 0 and j: pre = pre + [I('v_add_u32 v%d, 128, v%d' % (vDX, vDX))]
    d = I('buffer_load_dwordx4 v%d, %s, %s offen %s lds' % (vDX, sr(SX), 's%d' % (sXP + p - 1) if p else '0', OPT['xpol'].replace('+', ' ')), tag=('X', j, p))
    return pre, d
def dma_wo(chunk, half, p, st):
    slot = 2 * (chunk % 4) + half
    pre = [I('s_add_u32 m0, s%d, %d' % (sWL, slot * SLOT + p * 1088)), I('s_mov_b32 s%d, %d' % (st, half * 128 * 896 + p * 7168 + chunk * 128))]
    d = I('buffer_load_dwordx4 v%d, %s, s%d offen %s lds' % (vDWo, sr(SWO), st, OPT['wopol'].replace('+', ' ')), tag=('Wo', chunk, half, p))
    return pre, d
def dma_kv_imm(which, tile, p, st, first=None):
    slot = kslot(tile) if which == 'K' else 4 + tile % 4
    pre, d = dma_kv(which, tile, slot, p, st)
    if first is None: first = p == 0
    if first: pre += [I('s_mov_b32 s%d, %d' % (st, tile * 16384))]
    return pre, d
def adv(so):
    return [I('s_add_u32 s%d, s%d, 16384' % (so, so))]

def rd_wq(tile, n):
    ds, T = n >> 1, n & 1
    slot = 4 + (tile + 1) % 5
    if slot == 8: a = (vWA80, vWA81)[(ds >> 1) & 1]; base = 0
    else: a = (vWA0, vWA1)[(ds >> 1) & 1]; base = (slot - 4) * SLOT
    r = ARING(n)
    return [I('ds_read_b64_tr_b16 %s, v%d offset:%d' % (ar(r + 2 * rho, 2), a, base + rho * 2176 + ds * 64 + T * 8), tag=('fWq', tile, n, rho)) for rho in (0, 1)]
def rd_x(j, qb, T):
    return I('ds_read_b128 %s, v%d offset:%d' % (ar(XF(j, T, qb)), vXA, XB(j) + qb * 2176 + T * 64), tag=('fX', j, qb, T))
def rd_k(t, n):
    T, ds = n >> 3, n & 7
    return [I('ds_read_b128 %s, v%d offset:%d' % (vr(RING(n)), vKA, (kslot(t) % 8) * SLOT + T * 8704 + ds * 64), tag=('fK', t, n, 1))]
def rd_v(t, db):
    a = vVAo if db & 1 else vVAe
    r = RING(db)
    return [I('ds_read_b64_tr_b16 %s, v%d offset:%d' % (vr(r + 2 * rho, 2), a, (t % 4) * SLOT + rho * 8704 + db * 32), tag=('fV', t, db, rho)) for rho in (0, 1)]
def rd_wo(hc, n):
    ds, T = n >> 1, n & 1
    nt = 2 * (hc & 1) + T
    r = RING(n)
    return [I('ds_read_b64_tr_b16 %s, v%d offset:%d' % (vr(r + 2 * rho, 2), vOA + nt, (4 * ds + 2 * rho) * 1088), tag=('fWo', hc, n, rho)) for rho in (0, 1)]

def put_dmas(G, dmas, groups):
    prev = 0
    for (pre, d), g in zip(dmas, groups):
        gp = 4 * g + 1
        G.put(gp, d)
    for (pre, d), g in zip(dmas, groups):
        gp = 4 * g + 1
        hi = gp - 1; got = []
        for ins in reversed(pre):
            for cand in range(hi, prev - 1, -1):
                if G.used[cand] + ins.cost <= G.cap:
                    G.used[cand] += ins.cost; got.append((cand, ins)); hi = cand; break
            else: G.used[hi] += ins.cost; got.append((hi, ins))
        for cand, ins in reversed(got): G.g[cand].append(ins)
        prev = gp + 1

def setup():
    o = []
    A = lambda s: o.append(I(s))
    A('s_cmp_ge_u32 s2, 256'); A('s_cbranch_scc1 L_END')
    A('s_load_dwordx16 s[36:51], s[0:1], 0')
    A('v_lshrrev_b32 v1, 6, v0'); A('v_and_b32 v0, 63, v0')
    A('v_readfirstlane_b32 s3, v1')
    A('s_and_b32 s4, s2, 7'); A('s_lshr_b32 s5, s2, 3')
    if OPT['cpf']:
        A('s_getpc_b64 s[8:9]'); A('s_lshl_b32 s6, s5, 2'); A('s_add_u32 s6, s6, s3'); A('s_mul_i32 s6, s6, %d' % (128 * NCL))
        A('s_mov_b32 s10, %d' % (16384 * NCL)); A('s_mov_b32 s11, 0x20000')
        A('v_min_u32 v201, %d, v0' % (NCL - 1)); A('v_lshlrev_b32 v201, 7, v201')
        o.append(I('buffer_load_dword v200, v201, s[8:11], s6 offen', tag=('CPF',)))
    if OPT['map'] == 0:
        A('s_and_b32 s6, s4, 3'); A('s_lshl_b32 s6, s6, 2'); A('s_and_b32 s7, s5, 3'); A('s_add_u32 s6, s6, s7')
        A('s_lshr_b32 s4, s4, 2'); A('s_lshl_b32 s4, s4, 3'); A('s_lshr_b32 s5, s5, 2'); A('s_add_u32 s4, s4, s5')
    else:
        A('s_lshr_b32 s6, s5, 1'); A('s_and_b32 s5, s5, 1'); A('s_lshl_b32 s4, s4, 1'); A('s_add_u32 s4, s4, s5')
    A('s_lshl_b32 s5, s4, 4'); A('s_add_u32 s%d, s5, s6' % sBH)
    A('s_mul_i32 s%d, s3, 4352' % sWL)
    A('s_and_b32 s7, s3, 1')
    if OPT['wq8']: A('s_lshl_b32 s7, s7, 3'); A('s_add_u32 s%d, s%d, s7' % (sWL8, sWL)); A('s_lshr_b32 s7, s7, 3')
    else: A('s_mov_b32 s%d, s%d' % (sWL8, sWL))
    A('v_and_b32 v1, 15, v0'); A('v_lshrrev_b32 v2, 4, v0'); A('v_bfe_u32 v3, v0, 2, 2'); A('v_and_b32 v4, 3, v0')
    A('v_lshrrev_b32 v5, 5, v0'); A('v_and_b32 v6, 31, v0')
    A('s_lshl_b32 s34, s3, 6'); A('v_lshrrev_b32 v7, 3, v0'); A('v_and_b32 v8, 2, v7'); A('v_add_u32 v7, s34, v7'); A('s_movk_i32 s35, 896')
    A('v_mul_lo_u32 v7, v7, s35'); A('v_and_b32 v9, 7, v0'); A('v_xor_b32 v8, v8, v9'); A('v_lshl_add_u32 v%d, v8, 4, v7' % vDX)
    A('s_lshl_b32 s%d, s%d, 1' % (sWX, sWL))
    for p in range(1, 8): A('s_movk_i32 s%d, %d' % (sXP + p - 1, p * 7168) if p < 5 else 's_mov_b32 s%d, %d' % (sXP + p - 1, p * 7168))
    A('s_lshl_b32 s34, s3, 3'); A('v_add_u32 v7, s34, v5'); A('v_lshlrev_b32 v7, 13, v7'); A('v_lshlrev_b32 v8, 3, v5')
    A('v_xor_b32 v8, v8, v6'); A('v_lshl_add_u32 v%d, v8, 4, v7' % vDWq)
    A('s_waitcnt lgkmcnt(0)')
    def srd(d, p, off, size):
        A('s_add_u32 s%d, s%d, %s' % (d, p, off)); A('s_addc_u32 s%d, s%d, 0' % (d + 1, p + 1))
        A('s_mov_b32 s%d, %s' % (d + 2, size)); A('s_mov_b32 s%d, 0x20000' % (d + 3))
    A('s_mul_i32 s34, s4, 229376'); srd(SX, 36, 's34', '229376')
    A('s_lshl_b32 s34, s6, 9'); A('s_sub_u32 s35, 3670016, s34'); srd(SWQ, 42, 's34', 's35')
    return o

def setup2():
    o = []
    A = lambda s: o.append(I(s))
    def srd(d, p, off, size):
        A('s_add_u32 s%d, s%d, %s' % (d, p, off)); A('s_addc_u32 s%d, s%d, 0' % (d + 1, p + 1))
        A('s_mov_b32 s%d, %s' % (d + 2, size)); A('s_mov_b32 s%d, 0x20000' % (d + 3))
    A('s_lshl_b32 s34, s%d, 19' % sBH); srd(SK, 38, 's34', '524288'); srd(SV, 40, 's34', '524288')
    A('s_mul_i32 s34, s6, 229376'); srd(SWO, 44, 's34', '229376')
    A('s_mul_i32 s34, s4, %d' % BSTRIDE)
    if OPT['wsoff']: A('s_add_u32 s34, s34, %d' % (OPT['wsoff'] << 20))
    srd(SWS, 50, 's34', str(BSTRIDE))
    tw = OPT['tlbw']
    if tw:
        A('s_mov_b32 m0, %d' % (9 * SLOT)); A('v_lshlrev_b32 v255, %d, v0' % OPT['tlbs'])
        if tw & 8: A('s_mul_i32 s34, s4, 229376'); srd(40, 46, 's34', '229376')
        for bit, r in ((1, SK), (1, SV), (16, SWQ), (16, SX), (2, SWO), (4, SWS), (8, 40)):
            if tw & bit: o.append(I('buffer_load_dword v255, %s, 0 offen nt lds' % sr(r), tag=('PF',)))
    A('s_mov_b32 s%d, 0x%x' % (sTHR, OPT['thr']))
    A('s_mov_b32 s%d, 0x3db8aa3b' % sSC); A('s_mov_b32 s%d, 0x3db8aa3b' % (sSC + 1))
    if OPT['rot'] == 0: A('s_mov_b32 s%d, 0' % sKO)
    elif OPT['rot'] == 1: A('s_and_b32 s%d, s%d, 31' % (sKO, sBH))
    elif OPT['rot'] == 2: A('s_lshr_b32 s%d, s2, 3' % sKO)
    elif OPT['rot'] == 3: A('s_mul_i32 s%d, s2, 11' % sKO); A('s_lshr_b32 s34, s2, 5'); A('s_add_u32 s%d, s%d, s34' % (sKO, sKO)); A('s_and_b32 s%d, s%d, 31' % (sKO, sKO))
    elif OPT['rot'] == 4: A('s_and_b32 s%d, s2, 7' % sKO); A('s_lshl_b32 s%d, s%d, 2' % (sKO, sKO))
    A('s_lshl_b32 s%d, s%d, 14' % (sKO, sKO)); A('s_mov_b32 s%d, s%d' % (sVO, sKO)); A('s_mov_b32 s%d, %d' % (sLC, PEEL))
    A('s_movk_i32 s35, 1088')
    A('v_lshrrev_b32 v7, 3, v1'); A('v_and_b32 v8, 2, v1'); A('v_xor_b32 v8, v8, v2'); A('v_lshlrev_b32 v8, 4, v8')
    A('v_and_b32 v9, 7, v1'); A('v_lshl_add_u32 v8, v9, 7, v8'); A('v_mad_u32_u24 v8, v7, s35, v8'); A('v_lshl_add_u32 v%d, s%d, 1, v8' % (vXA, sWL))
    A('v_lshrrev_b32 v9, 1, v3'); A('v_and_b32 v10, 1, v3')
    A('v_lshl_add_u32 v8, v2, 2, v9'); A('v_mul_lo_u32 v8, v8, s35'); A('v_lshl_add_u32 v8, v4, 4, v8')
    if OPT['wq8']: A('v_and_b32 v11, 1, v2'); A('v_lshl_add_u32 v8, v11, 3, v8')
    A('v_add_u32 v8, %d, v8' % (4 * SLOT))
    A('v_mul_u32_u24 v11, 640, v10'); A('v_add_u32 v%d, v8, v11' % vWA0)
    A('v_mul_u32_u24 v11, 384, v10'); A('v_add_u32 v%d, v8, v11' % vWA1)
    A('v_add_u32 v%d, %d, v%d' % (vWA80, 4 * SLOT, vWA0)); A('v_add_u32 v%d, %d, v%d' % (vWA81, 4 * SLOT, vWA1))
    A('v_lshrrev_b32 v8, 1, v1'); A('v_mul_lo_u32 v8, v8, s35'); A('v_and_b32 v11, 1, v1'); A('v_lshl_add_u32 v8, v11, 9, v8')
    A('v_lshl_or_b32 v11, v7, 1, v11'); A('v_xor_b32 v11, v11, v2'); A('v_lshl_add_u32 v%d, v11, 4, v8' % vKA)
    A('v_lshl_add_u32 v8, v2, 1, v9'); A('v_mul_lo_u32 v8, v8, s35'); A('v_lshl_add_u32 v8, v4, 3, v8'); A('v_add_u32 v8, %d, v8' % (4 * SLOT))
    A('v_mul_u32_u24 v11, 544, v10'); A('v_add_u32 v%d, v8, v11' % vVAe)
    A('v_mul_u32_u24 v11, 480, v10'); A('v_add_u32 v%d, v8, v11' % vVAo)
    A('s_lshl_b32 s34, s3, 12'); A('v_lshlrev_b32 v8, 9, v5'); A('v_add_u32 v8, s34, v8')
    A('s_lshl_b32 s5, s7, 1'); A('v_or_b32 v11, s5, v5'); A('v_xor_b32 v11, v11, v6'); A('v_lshl_add_u32 v%d, v11, 4, v8' % vDK)
    A('v_lshlrev_b32 v11, 1, v5'); A('v_xor_b32 v11, v11, v6'); A('v_lshl_add_u32 v%d, v11, 4, v8' % vDV)
    A('v_lshlrev_b32 v8, 8, v3'); A('v_lshl_add_u32 v8, v2, 6, v8'); A('v_lshl_add_u32 v8, v4, 4, v8'); A('v_add_u32 v%d, s34, v8' % vST)
    A('s_lshl_b32 s34, s3, 5'); A('v_lshrrev_b32 v8, 3, v0'); A('v_add_u32 v8, s34, v8'); A('s_movk_i32 s5, 896'); A('v_mul_lo_u32 v8, v8, s5')
    A('v_and_b32 v11, 7, v0'); A('v_lshlrev_b32 v12, 1, v2'); A('v_xor_b32 v11, v11, v12'); A('v_lshl_add_u32 v%d, v11, 4, v8' % vDWo)
    A('v_lshrrev_b32 v8, 1, v2'); A('v_mul_lo_u32 v8, v8, s35'); A('v_and_b32 v11, 1, v2'); A('v_lshl_add_u32 v11, v11, 2, v3')
    A('v_lshl_add_u32 v8, v11, 7, v8'); A('v_lshl_add_u32 v8, v4, 3, v8'); A('v_lshrrev_b32 v11, 1, v11')
    for nt in range(4):
        A('v_xor_b32 v12, %d, v11' % nt); A('v_lshl_add_u32 v%d, v12, 5, v8' % (vOA + nt))
    for qb in range(4): A('v_mov_b32 v%d, 0' % (L0 + qb))
    A('s_mul_i32 s%d, s6, 229376' % sPO)
    A('s_lshl_b32 s34, s3, 7'); A('s_lshl_b32 s35, s6, 2'); A('s_add_u32 s34, s34, s35'); A('s_add_u32 s%d, s34, %d' % (sFLO, FLOFF))
    A('s_lshr_b32 s34, s6, 2'); A('s_lshl_b32 s34, s34, 7'); A('s_add_u32 s%d, s34, %d' % (sPLO, FLOFF))
    A('s_lshl_b32 s34, s6, 10'); A('s_lshl_b32 s35, s3, 8'); A('s_add_u32 s%d, s34, s35' % sRLO)
    A('s_mul_i32 s34, s6, 14336'); A('s_mul_i32 s35, s3, 3584'); A('s_add_u32 s%d, s34, s35' % sOUO)
    A('s_lshl_b32 s%d, s4, 4' % sCO)
    A('s_getreg_b32 s34, hwreg(HW_REG_XCC_ID, 0, 4)')
    if OPT['forceslow'] == 1: A('s_and_b32 s34, s6, 1')
    A('s_or_b32 s%d, s34, 0x80' % sREG); A('s_mul_i32 s%d, s%d, 0x01010101' % (sFULL, sREG))
    A('s_and_b32 s34, s6, 3'); A('s_lshl_b32 s34, s34, 2'); A('s_add_u32 s34, s34, s3'); A('s_lshl_b32 s34, s34, 2'); A('s_add_u32 s34, s34, s%d' % sPLO); A('s_add_u32 s34, s34, 64')
    A('v_lshl_add_u32 v8, v0, 9, s%d' % sFLO); A('v_writelane_b32 v8, s34, 1')
    A('v_mul_u32_u24 v9, %d, v0' % (OPT['ring'] - OPT['lag'] + 1))
    o.append(I('buffer_store_dword v9, v8, %s, 0 offen' % sr(SWS), tag=('Fz',)))
    return o

sPF, sPFt, vPA, vPL128, vPD = 36, 37, 254, 255, 231
pfstate = dict(n=None)
def pf_items(n):
    pre = []
    if pfstate['n'] != n:
        pre += ['v_min_u32 v%d, %d, v%d' % (vPA, (n - 1) * 128, vPL128)]
        pfstate['n'] = n
    pre += ['s_mul_i32 s%d, s3, %d' % (sPFt, n * 128), 's_add_u32 s%d, s%d, s%d' % (sPFt, sPFt, sPF), 's_add_u32 s%d, s%d, %d' % (sPF, sPF, n * 512)]
    pol = OPT['pfpol'].replace('+', ' ').replace('none', '')
    lds = [I('buffer_load_dword v%d, %s, s%d offen %s lds' % (vPA, sr(r), sPFt, pol), tag=('PF',)) for r in (SK, SV)]
    return [([I(p) for p in pre] + [I('s_mov_b32 m0, %d' % (9 * SLOT))], lds[0]), ([], lds[1])]
l2state = dict(n=None)
def l2_items(k):
    its = [i for i, c in enumerate(OPT['l2pf']) if c != '0']
    it, st = its[k // 2], k & 1
    n = 4 * int(OPT['l2pf'][it], 36)
    pre = []
    if l2state['n'] != n:
        pre += ['v_min_u32 v254, %d, v251' % ((n - 1) * 128), 'v_add_u32 v254, v254, v255']; l2state['n'] = n
    pre += ['s_mov_b32 s%d, %d' % (sPFt, (4 * it + LEAD - st) * 16384), 's_mov_b32 m0, %d' % (9 * SLOT)]
    pol = OPT['l2pol'].replace('+', ' ').replace('none', '')
    return ([I(p) for p in pre], I('buffer_load_dword v254, %s, s%d offen %s lds' % (sr(SV if st else SK), sPFt, pol), tag=('PF',)))
def pflist(x): return [int(c, 36) for c in x]

def phase1():
    o = []
    k = 0
    for f, t, n in ((dma_x, 0, 8), (dma_wq, 0, 4), (dma_wq, 1, 4), (dma_x, 1, 8), (dma_wq, 2, 4), (dma_wq, 3, 4)):
        for p in range(n):
            pre, d = f(t, p, sT0 + (k & 1)); k += 1
            o += pre + ([I('s_nop 0')] if len(pre) < 2 else []); o.append(d)
    o += setup2()
    wp = OPT['warmpol'].replace('+', ' ').replace('none', '')
    if OPT['warm']: o.append(I('s_mov_b32 m0, %d' % (9 * SLOT)))
    if OPT['warm'] & 2:
        o += [I(c) for c in ['v_bfe_u32 v251, v0, 3, 2', 'v_and_b32 v252, 7, v0', 'v_min_u32 v252, 4, v252', 'v_mul_u32_u24 v251, 896, v251', 'v_lshl_add_u32 v251, v252, 7, v251',
              's_lshl_b32 s36, s6, 2', 's_add_u32 s36, s36, s3', 's_mul_i32 s36, s36, 3584', 's_add_u32 s36, s36, 256']]
        o.append(I('buffer_load_dword v251, %s, s36 offen %s lds' % (sr(SX), wp), tag=('PF',)))
    if OPT['warm'] & 1:
        o += [I(c) for c in ['v_min_u32 v252, 19, v0', 'v_lshrrev_b32 v252, 2, v252', 'v_lshlrev_b32 v252, 13, v252', 'v_lshl_add_u32 v252, v4, 7, v252',
              's_lshl_b32 s37, s4, 2', 's_add_u32 s37, s37, s3', 's_mul_i32 s37, s37, 40960', 's_add_u32 s37, s37, %d' % (128 * 8192)]]
        o.append(I('buffer_load_dword v252, %s, s37 offen %s lds' % (sr(SWQ), wp), tag=('PF',)))
    if OPT['warm'] & 4 and OPT['woat'] < 14:
        o += [I(c) for c in ['v_bfe_u32 v253, v0, 3, 2', 'v_and_b32 v254, 7, v0', 'v_min_u32 v254, 6, v254', 'v_mul_u32_u24 v253, 896, v253', 'v_lshl_add_u32 v253, v254, 7, v253']]
    if OPT['l2pf']:
        o += [I('v_and_b32 v251, 15, v0'), I('v_lshlrev_b32 v251, 7, v251'), I('v_lshrrev_b32 v255, 4, v0'), I('v_lshlrev_b32 v255, 14, v255'),
              I('s_lshl_b32 s%d, s3, 12' % sPFt), I('v_add_u32 v255, s%d, v255' % sPFt)]
    o.append(W(vm=('Wq', 0, 3))); o.append(I('s_barrier'))
    for qb in range(4): o.append(rd_x(0, qb, 0))
    o += rd_wq(0, 0) + [rd_x(0, 0, 1), rd_x(0, 1, 1)] + rd_wq(0, 1) + [rd_x(0, 2, 1), rd_x(0, 3, 1)] + rd_wq(0, 2) + rd_wq(0, 3)
    o.append(W(lg=('fWq', 0, 0, 1)))
    stamp(o)
    for i in range(14):
        mf = []
        for n in range(16):
            ds, T = n >> 1, n & 1
            for qb in range(4):
                d = ACC(ds, qb, T)
                mf.append(I('%s %s, %s, %s, %s' % (MF, d, ar(ARING(n)), ar(XF(i >> 1, i & 1, qb)), '0' if i == 0 else d)))
        G = Gaps(mf)
        for g in range(16):
            nx = g + 4
            if nx < 16:
                for r in rd_wq(i, nx): G.put(4 * g + 3, r)
            elif i < 13:
                for r in rd_wq(i + 1, nx - 16): G.put(4 * g + 3, r)
            if g < 15:
                if g == 12 and i < 13:
                    G.put(4 * g + 2, W(lg=('fWq', i, g + 1, 1), vm=[('Wq', i + 1, 3)] + ([('X', i + 1, 7)] if i < 6 else []))); G.put(4 * g + 2, 's_barrier')
                else: G.put(4 * g + 2, W(lg=('fWq', i, g + 1, 1)))
            elif i < 13: G.put(4 * g + 2, W(lg=('fWq', i + 1, 0, 1)))
        if i < 6:
            for qb in range(4):
                for T in range(2): G.put((52, 53, 56, 57)[qb], rd_x(i + 1, qb, T))
        dm = []
        if i < 5: dm = [dma_x(i + 2, p) for p in range(8)]
        fl = fill_dmas(i)
        wq = [dma_wq(i + 4, p, sT1) for p in range(4)] if i <= 9 else []
        if wq and fl:
            while wq or fl:
                if wq: dm.append(wq.pop(0))
                if fl: dm.append(fl.pop(0))
        else: dm += wq + fl
        n = len(dm)
        grp = list(range(1, 13)) if n == 12 else [1 + (k * 12) // n for k in range(n)]
        if OPT['l2pf']:
            ks = [k for k, c in enumerate(OPT['l2at']) if int(c, 36) == i]
            cand = (14, 15) if i >= 6 else ((12, 15) if i == 5 else (15,))
            assert len(ks) <= len(cand)
            for k, g in zip(ks, cand): dm.append(l2_items(k)); grp = grp + [g]
            if OPT['l2two'] and ks:
                assert len(ks) == 1
                d = dm[-1][1]
                dm.append(([], I(d.text.split(' offen')[0] + ' offen %s lds' % OPT['l2two'].replace('+', ' ').replace('none', ''), tag=('PF',)))); grp = grp + [15]
            assert len(ks) <= 2
        if OPT['warm'] & 4 and i == OPT['woat']:
            assert len(grp) == len([g for g in grp if g < 14])
            dm.append(([I(c) for c in ['s_lshl_b32 s37, s4, 2', 's_add_u32 s37, s37, s3', 's_mul_i32 s37, s37, 3584', 's_mov_b32 m0, %d' % (9 * SLOT)]],
                       I('buffer_load_dword v253, %s, s37 offen %s lds' % (sr(SWO), wp), tag=('PF',)))); grp = grp + [15]
        put_dmas(G, dm, grp)
        if i == 12:
            G.chain(['s_mov_b32 s%d, s48' % SDBG, 's_mov_b32 s%d, s49' % (SDBG + 1), 's_movk_i32 s%d, 256' % (SDBG + 2),
                     's_mul_i32 s%d, s4, 229376' % sT1, 's_add_u32 s%d, s46, s%d' % (SOUT, sT1), 's_addc_u32 s%d, s47, 0' % (SOUT + 1), 's_mov_b32 s%d, 229376' % (SOUT + 2)], 8)
        if i == 13:
            G.chain(['s_and_b32 s%d, s6, 3' % sFCO, 's_lshl_b32 s%d, s%d, 2' % (sFCO, sFCO), 's_add_u32 s%d, s%d, s3' % (sFCO, sFCO), 's_lshl_b32 s%d, s%d, 2' % (sFCO, sFCO),
                     's_add_u32 s%d, s%d, s%d' % (sFCO, sFCO, sPLO), 's_add_u32 s%d, s%d, 64' % (sFCO, sFCO),
                     's_lshl_b32 s%d, s3, 7' % sPCO, 's_add_u32 s%d, s%d, %d' % (sPCO, sPCO, FLOFF + 64), 's_sub_u32 s%d, s%d, s%d' % (sPCO, sPCO, sPLO)], 30)
        o += G.flat()
    stamp(o)
    o.append(I('s_nop 3'))
    def conv(src, dst):
        r = []
        for k in range(4): r.append(I('v_pk_mul_f32 %s, %s, %s' % (vr(src + 2 * k, 2), vr(src + 2 * k, 2), sr(sSC, 2))))
        for k in range(4): r.append(I('v_cvt_pk_bf16_f32 v%d, v%d, v%d' % (dst + k, src + 2 * k, src + 2 * k + 1)))
        return r
    fl = fill_dmas(14)
    for f in range(28):
        o += conv(8 * f, 4 * f)
        if f % 6 == 2 and fl:
            pre, d = fl.pop(0); o += pre + [I('s_nop 0'), d]
    assert not fl
    o.append(W(vm=('K', 0, 3))); o.append(I('s_barrier'))
    for n in range(4): o += rd_k(0, n)
    for k in range(32): o.append(I('v_accvgpr_read_b32 v%d, a%d' % (128 + k, k)))
    for qb in range(4): o += conv(128 + 8 * qb, Q(7, qb))
    o.append(W(lg=('fK', 0, CH & 1, 1)))
    return o

def softmax_items(buf, qb):
    b = S(buf, qb); lt = LT0 + qb
    it = []
    for k in range(8):
        it.append(('e', k, I('v_exp_f32 v%d, v%d' % (b + k, b + k))))
        if k == 1: it.append(('v', k, I('v_add_f32 v%d, v%d, v%d' % (lt, b, b + 1))))
        elif k > 1: it.append(('v', k, I('v_add_f32 v%d, v%d, v%d' % (lt, lt, b + k))))
        if k & 1: it.append(('v', k, I('v_cvt_pk_bf16_f32 v%d, v%d, v%d' % (b + k // 2, b + k - 1, b + k))))
    return it

def place_softmax(G, buf, qbs, expgaps):
    eg = list(expgaps); pend = []
    for qb in qbs:
        for kind, k, ins in softmax_items(buf, qb):
            if kind == 'e':
                gp = eg.pop(0); G.put(gp, ins); last = gp
            else: pend.append((ins, last + 1))
    return pend

def place_chain(G, pend):
    cur = 0
    for ins, lo in pend: cur = G.place(ins, max(cur, lo))
    return cur

stubs = []
def check_items(t):
    lab = 'RS_%d' % (t % 4 if 4 * PEEL <= t < 28 else 100 + t)
    if lab not in [s[0] for s in stubs]: stubs.append((lab, t & 1))
    return [I('v_max_f32 v%d, v%d, v%d' % (vTM, vTM, LT0 + 3)), I('v_cmp_lt_f32 vcc, s%d, v%d' % (sTHR, vTM)),
            I('s_cbranch_vccnz %s' % lab), I('%s_RET:' % lab)]

def qk_mfmas(t1, first):
    mf = []
    for n, qb in ([(2 * G + k, qb) for G in range(8) for qb in range(4) for k in range(2)] if CH & 1 else [(n, qb) for n in range(16) for qb in range(4)]):
        T, ds = n >> 3, n & 7
        d = vr(S(t1 & 1, qb, T))
        c = d if ds else ('0' if first else vr(NEGM(qb)))
        mf.append(I('%s %s, %s, %s, %s' % (MF, d, vr(RING(n)), vr(Q(ds, qb)), c)))
    return mf
def qk_reads(G, t1, nxt, nxt_tag):
    for g in range(8):
        if OPT['w2'] and g: G.put(8 * g, W(lg=('fK', t1, 2 * g + 1, 1)))
        rs = [rd_k(t1, nx) if nx < 16 else nxt(nx - 16) for nx in (2 * g + 4, 2 * g + 5)]
        for r in rs[0]: G.put(8 * g + 6, r)
        G.put(8 * g + 7, W(lg=('fK', t1, 2 * g + 3 - OPT['w2'], 1) if g < 7 else nxt_tag))
        for k, r in enumerate(rs[1]): G.put(8 * g + 7 + (k if g < 7 else 0), r, force=True)
def pv_mfmas(t):
    mf = []
    for db in range(16):
        for qb in (range(3, -1, -1) if CH & 2 and db & 1 else range(4)):
            d = ar(O(db, qb))
            mf.append(I('%s %s, %s, %s, %s' % (MF, d, vr(RING(db)), vr(S(t & 1, qb)), d if t else '0')))
    return mf

def prologue():
    o = []
    G = Gaps(qk_mfmas(0, True))
    if CH & 1:
        G.put(50, W(vm=[('K', 1, 3), ('V', 0, 3)])); G.put(50, 's_barrier')
        qk_reads(G, 0, lambda n: rd_k(1, n), ('fK', 1, 1, 1))
    for g in range(0 if CH & 1 else 16):
        nx = g + 4
        for r in (rd_k(0, nx) if nx < 16 else rd_k(1, nx - 16)): G.put(4 * g + 3, r)
        if g == 12:
            G.put(4 * g + 2, W(lg=('fK', 0, g + 1, 1), vm=[('K', 1, 3), ('V', 0, 3)])); G.put(4 * g + 2, 's_barrier')
        elif g < 15: G.put(4 * g + 2, W(lg=('fK', 0, g + 1, 1)))
        else: G.put(4 * g + 2, W(lg=('fK', 1, 0, 1)))
    G.chain(['s_mov_b32 s%d, %d' % (sKO, LEAD * 16384), 's_mov_b32 s%d, %d' % (sVO, (LEAD - 1) * 16384)])
    dm = fill_dmas(15)
    put_dmas(G, dm, [1 + (k * 14) // len(dm) for k in range(len(dm))])
    if OPT['prel']: o.insert(0, I('buffer_load_dword v254, off, %s, s%d sc1' % (sr(SDBG), sCO), tag=('Prel',)))
    o += G.flat()
    A = lambda s: o.append(I(s))
    if OPT['prel'] == 2: o.append(W(vm=('Prel',)))
    A('v_mbcnt_lo_u32_b32 v252, -1, 0'); A('v_mov_b32 v253, s%d' % sREG)
    A('v_or_b32 v252, s3, v252'); A('v_lshl_add_u32 v252, v252, 8, s6')
    if OPT['forceslow'] == 2:
        A('s_and_b32 s%d, s4, 1' % sT0); A('s_lshl_b32 s%d, s%d, 8' % (sT0, sT0)); A('s_cmp_eq_u32 s6, 0'); A('s_cselect_b32 s%d, s%d, 0' % (sT0, sT0)); A('v_add_u32 v252, s%d, v252' % sT0)
    o.append(I('buffer_store_byte v253, v252, %s, s%d offen' % (sr(SDBG), sCO), tag=('Reg',)))
    A('s_nop 1')
    tm = [244, 245, 246, 247]; tc = [248, 249, 250, 251]
    for st in range(4):
        for qb in range(4):
            b = S(0, qb)
            if st == 0: A('v_max3_f32 v%d, v%d, v%d, v%d' % (tm[qb], b, b + 1, b + 2))
            elif st < 3: A('v_max3_f32 v%d, v%d, v%d, v%d' % (tm[qb], tm[qb], b + 2 * st + 1, b + 2 * st + 2))
            else: A('v_max_f32 v%d, v%d, v%d' % (tm[qb], tm[qb], b + 7))
    for sw in ('v_permlane32_swap_b32', 'v_permlane16_swap_b32'):
        for qb in range(4): A('v_mov_b32 v%d, v%d' % (tc[qb], tm[qb]))
        for qb in range(4): A('%s v%d, v%d' % (sw, tm[qb], tc[qb]))
        for qb in range(4): A('v_max_f32 v%d, v%d, v%d' % (tm[qb], tm[qb], tc[qb]))
    for qb in range(4):
        for r in range(4): A('v_sub_f32 v%d, 0, v%d' % (NEGM(qb) + r, tm[qb]))
    for qb in range(4):
        for k in range(8): A('v_sub_f32 v%d, v%d, v%d' % (S(0, qb) + k, S(0, qb) + k, tm[qb]))
    i0 = softmax_items(0, 0); i1 = softmax_items(0, 1)
    for x, y in zip(i0, i1): o.append(x[2]); o.append(y[2])
    return o

def padput(G, n, t, half):
    if OPT['padp']:
        prof = [int(c, 36) for c in OPT['padp']]
        mx = max(prof)
        for k in range(half, mx, 2):
            gp = 6 + 10 * (k // 2)
            if t >= 28:
                if prof[7] > k: G.put(gp, 's_nop 15', force=True)
                continue
            N = sum(1 for p in prof[:7] if p > k)
            if N == 0: continue
            lab = 'PAD_%d_%d' % (t % 4, k)
            if N < 7:
                G.put(gp, 's_cmp_lt_u32 s%d, %d' % (sLC, N), force=True); G.put(gp, 's_cbranch_scc0 %s' % lab, force=True)
            G.put(gp, 's_nop 15', force=True)
            if N < 7: G.put(gp, I(lab + ':'), force=True)
        return
    cond = OPT['padit'] or OPT['padfrom']
    if cond and t >= 28:
        if OPT['padit']: return
        cond = False
    for k in range(n):
        gp = 10 + 12 * k
        if cond:
            lab = 'PAD_%d_%d_%d' % (t % 4, half, k)
            G.put(gp, ('s_cmp_lt_u32 s%d, %d' % (sLC, OPT['padit'])) if OPT['padit'] else ('s_cmp_ge_u32 s%d, %d' % (sLC, OPT['padfrom'])), force=True)
            G.put(gp, 's_cbranch_scc0 %s' % lab, force=True)
        G.put(gp, 's_nop 15', force=True)
        if cond: G.put(gp, I(lab + ':'), force=True)

def step(t):
    o = []
    cur = t & 1
    max3 = I('v_max3_f32 v%d, v%d, v%d, v%d' % (vTM, LT0, LT0 + 1, LT0 + 2))
    ladd = [I('v_add_f32 v%d, v%d, v%d' % (L0 + q, L0 + q, LT0 + q)) for q in range(4)]
    if t < 4 * PEEL:
        dK = [dma_kv_imm('K', n, p, sT0, k == 0 or p == 0) for k, (n, p) in enumerate(KS[t])]
        dV = [dma_kv_imm('V', n, p, sT0, k == 0 or p == 0) for k, (n, p) in enumerate(VS[t])]
    else:
        if t + LEAD < 32: dK = [dma_kv('K', t + LEAD, (t + LEAD) % 4, p, sKO) for p in range(4)]
        else: dK = [dma_wo(*WOS[t, 0], p, sT0) for p in range(4)]
        if t + LEAD < 33: dV = [dma_kv('V', t + LEAD - 1, 4 + (t + LEAD - 1) % 4, p, sVO) for p in range(4)]
        else: dV = [dma_wo(*WOS[t, 1], p, sT0) for p in range(4)]
    if OPT['drop'] and t < 28:
        prof = [int(c) for c in OPT['drop']]
        order = [('K', 3), ('V', 3), ('K', 1), ('V', 1), ('K', 2), ('V', 2)]
        for k, (w, p) in enumerate(order):
            N = sum(1 for q in prof if q > k)
            if not N: continue
            lst, so = (dK, sKO) if w == 'K' else (dV, sVO)
            pre, d = lst[p]
            pre2 = [I('s_cmp_lt_u32 s%d, %d' % (sLC, N)), I('s_cselect_b32 s37, 0, s%d' % so)] + pre
            lst[p] = (pre2, I(d.text.replace(', s%d offen' % so, ', s37 offen').replace(OPT['kvpol'].replace('+', ' '), ''), tag=d.tag))
    if t < 31:
        G = Gaps(qk_mfmas(t + 1, False))
        eg = [0, 4, 5, 8, 12, 13] + [4 * g for g in range(4, 14)]
        if CH & 1:
            qk_reads(G, t + 1, lambda n: rd_v(t, n), ('fV', t, 0, 1))
            eg = [8 * g + k for g in range(7) for k in ((1, 3) if OPT['w2'] else (0, 2, 4) if g < 2 else (0, 3))][:16]
            if OPT['w2']: eg = sorted(eg + [5, 13])
        for g in range(0 if CH & 1 else 16):
            nx = g + 4
            for r in (rd_k(t + 1, nx) if nx < 16 else rd_v(t, nx - 16)): G.put(4 * g + 3, r)
            G.put(4 * g + 2, W(lg=('fK', t + 1, g + 1, 1) if g < 15 else ('fV', t, 0, 1)))
        pend = place_softmax(G, cur, (2, 3), eg)
        put_dmas(G, dK, {4: [5, 7, 9, 11], 3: [5, 8, 11], 2: [6, 10], 1: [8], 0: []}[len(dK)])
        if t == 28 and LEAD == 4:
            cz = G.chain(['v_mbcnt_lo_u32_b32 v%d, -1, 0' % vTM, 'v_and_b32 v%d, 3, v%d' % (vTM, vTM), 'v_lshlrev_b32 v%d, 2, v%d' % (vTM, vTM)], 1, 20)
            softplace(G, I('buffer_load_dword v%d, v%d, %s, s%d offen sc1' % (vCAS, vTM, sr(SDBG), sCO), tag=('Chk',)), cz + 1, 20)
        idx = [k for k, (ins, lo) in enumerate(pend) if ins.mn == 'v_add_f32' and ins.ops[0] == 'v%d' % (LT0 + 2)][-1]
        pend.insert(idx + 1, (max3, pend[idx][1]))
        cg = place_chain(G, pend)
        ck = check_items(t)
        cg = G.place(ck[0], cg); cg = G.place(ck[1], cg); cg = G.place(ck[2], cg + 1); G.put(cg, ck[3])
        assert cg >= 40
        G.chain(ladd, cg)
        padput(G, (OPT['pad'] + 1) // 2, t, 0)
        o += G.flat()
    else:
        for pre, d in dK: o += pre; o.append(I('s_nop 0')); o.append(d)
        i0 = softmax_items(cur, 2); i1 = softmax_items(cur, 3)
        for x, y in zip(i0, i1): o.append(x[2]); o.append(y[2])
        o.append(max3); o += check_items(t); o += ladd
    G = Gaps(pv_mfmas(t))
    if t < 30: nxt_rd = lambda n: rd_k(t + 2, n); nxt_tag = ('fK', t + 2, CH & 1, 1); vmw = [('K', t + 2, 3), ('V', t + 1, 3)] + ([('Chk',)] if t == 29 else [])
    elif t == 30: nxt_rd = lambda n: rd_v(31, n); nxt_tag = ('fV', 31, 0, 1); vmw = [('V', 31, 3)]
    else: nxt_rd = lambda n: rd_wo(0, n); nxt_tag = ('fWo', 0, 0, 1); vmw = [('Wo', 0, 1, 3)]
    for g in range(16):
        nx = g + 4
        if g == 15 and CH & 1 and t < 30: G.put(63, W(lg=nxt_tag))
        for r in (rd_v(t, nx) if nx < 16 else nxt_rd(nx - 16)): G.put(4 * g + 3, r)
        if g == 15 and CH & 1 and t < 30: pass
        elif g == 12:
            G.put(4 * g + 2, W(lg=('fV', t, g + 1, 1), vm=vmw)); G.put(4 * g + 2, 's_barrier')
        else: G.put(4 * g + 2, W(lg=('fV', t, g + 1, 1) if g < 15 else nxt_tag))
    pend = []
    if t < 31: pend = place_softmax(G, cur ^ 1, (0, 1), [4 * g for g in range(16)])
    grp = {4: [1, 3, 5, 7], 3: [1, 4, 7], 2: [2, 6], 1: [4], 0: []}[len(dV)]
    if OPT['pfl'] and t < 28:
        if t == 0 and pfstate['n'] != OPT['pfl']: raise SystemExit('last pfq must equal pfl')
        dV = dV + pf_items(OPT['pfl']); grp = grp + [10, 11]
    if t >= 28:
        for k, r in enumerate(pt_at(2 * (t - 28) + 1)): dV = dV + [pt_items(r)]; grp = grp + [(11 if t < 31 else 14) + k]
    put_dmas(G, dV, grp)
    place_chain(G, pend)
    if t < 31:
        G.chain(adv(sKO), 34)
        if t + LEAD < 32: G.chain(adv(sVO), 34)
    if t < 30 and (kslot(t + 1) == 8) != (kslot(t + 2) == 8): softplace(G, '%s v%d, %d, v%d' % ('v_add_u32' if kslot(t + 2) == 8 else 'v_subrev_u32', vKA, 8 * SLOT, vKA), 36, 50)
    if OPT['warm'] & 4 and OPT['woat'] == 100 + t:
        cz = 0
        for c in ['v_mbcnt_lo_u32_b32 v244, -1, 0', 's_lshl_b32 s37, s4, 2', 'v_bfe_u32 v%d, v244, 3, 2' % vTM, 's_add_u32 s37, s37, s3', 'v_and_b32 v244, 7, v244', 's_mul_i32 s37, s37, 3584',
                  'v_min_u32 v244, 6, v244', 'v_mul_u32_u24 v%d, 896, v%d' % (vTM, vTM), 'v_lshl_add_u32 v%d, v244, 7, v%d' % (vTM, vTM)]: cz = softplace(G, c, cz, cz + 4)
        softplace(G, I('buffer_load_dword v244, v%d, %s, s37 offen %s' % (vTM, sr(SWO), OPT['warmpol'].replace('+', ' ').replace('none', '')), tag=('PF',)), cz + 1, cz + 8)
    padput(G, OPT['pad'] // 2, t, 1)
    if t == 28 and LEAD < 4:
        cz = 34
        for c in ['v_mbcnt_lo_u32_b32 v%d, -1, 0' % vTM, 'v_and_b32 v%d, 3, v%d' % (vTM, vTM), 'v_lshlrev_b32 v%d, 2, v%d' % (vTM, vTM)]: cz = softplace(G, c, cz, cz + 3)
        softplace(G, I('buffer_load_dword v%d, v%d, %s, s%d offen sc1' % (vCAS, vTM, sr(SDBG), sCO), tag=('Chk',)), cz + 1, cz + 6)
    if OPT['ptl'] and 4 * PEEL <= t < 28:
        cz = softplace(G, I('buffer_load_dword v245, v246, %s, s36 offen %s' % (sr(SWS), OPT['ptpol'].replace('+', ' ')), tag=('PT', t)), 37, 45)
        softplace(G, 's_add_u32 s36, s36, %d' % (128 * OPT['ptl']), cz + 1, cz + 6)
    if OPT['ptl'] and t == 4 * PEEL - 1:
        cz = 30
        for c in ['v_mbcnt_lo_u32_b32 v246, -1, 0', 's_mul_i32 s36, s3, %d' % (OPT['ring'] * 4096), 'v_min_u32 v246, %d, v246' % (OPT['ptl'] - 1),
                  's_add_u32 s36, s36, s%d' % sPO, 'v_lshlrev_b32 v246, 7, v246']: cz = softplace(G, c, cz, cz + 4)
    if t == 30 and OPT['ptouch'] and not OPT['ptl'] and not OPT['ptat']:
        sh = OPT['ptouch']; R = OPT['ring']
        cz = 32
        for c in ['v_mbcnt_lo_u32_b32 v%d, -1, 0' % vTM, 's_mul_i32 s%d, s3, %d' % (sVO, R * 4096), 'v_mbcnt_hi_u32_b32 v%d, -1, v%d' % (vTM, vTM),
                  's_add_u32 s%d, s%d, s%d' % (sVO, sVO, sPO), 'v_lshlrev_b32 v%d, %d, v%d' % (vTM, sh, vTM)]: cz = softplace(G, c, cz, cz + 3)
        n = -(-R * 4096 // (64 << sh))
        for k in range(n):
            cz = softplace(G, I('buffer_load_dword v%d, v%d, %s, s%d offen' % (vFV, vTM, sr(SWS), sVO), tag=('PT', k)), cz + 1, min(63, cz + 4))
            if k < n - 1: cz = softplace(G, 's_add_u32 s%d, s%d, %d' % (sVO, sVO, 64 << sh), cz + 1, cz + 4) + 4
    if t == 29:
        ch = ['v_cmp_ne_u32 vcc, s%d, v%d' % (sFULL, vCAS), 'v_mbcnt_lo_u32_b32 v%d, -1, 0' % vTM, 's_or_b32 s%d, s6, s3' % sVO, 'v_or_b32 v%d, s%d, v%d' % (vTM, sVO, vTM),
              's_cmp_eq_u64 vcc, 0', 's_cselect_b32 s%d, 32, 64' % sVO, 'v_lshlrev_b32 v%d, 8, v%d' % (vTM, vTM), 's_or_b32 s%d, s%d, s%d' % (sVO, sVO, sREG), 'v_mov_b32 v%d, s%d' % (vCAS, sVO),
              I('buffer_store_byte v%d, v%d, %s, s%d offen' % (vCAS, vTM, sr(SDBG), sCO), tag=('Dec',))]
        cz = 52
        for k, c in enumerate(ch): cz = softplace(G, c, min(63, cz + (k in (4, 9))), min(63, cz + 2))
    if 4 * PEEL <= t < 28 and t % 4 == 3:
        gp = G.place('s_add_u32 s%d, s%d, 1' % (sLC, sLC), 44); G.place('s_cmp_lt_u32 s%d, 7' % sLC, max(gp + 1, 52))
        G.put(63, 's_cbranch_scc1 L_LOOP', force=True)
    if t == 31:
        ch = []
        for sw in ('v_permlane32_swap_b32', 'v_permlane16_swap_b32'):
            ch += ['v_mov_b32 v%d, v%d' % (LT0 + q, L0 + q) for q in range(4)]
            ch += ['%s v%d, v%d' % (sw, L0 + q, LT0 + q) for q in range(4)]
            ch += ['v_add_f32 v%d, v%d, v%d' % (L0 + q, L0 + q, LT0 + q) for q in range(4)]
        ch += ['v_rcp_f32 v%d, v%d' % (L0 + q, L0 + q) for q in range(4)]
        G.chain(ch, 0)
        ch = ['v_mbcnt_lo_u32_b32 v255, -1, 0', 'v_mbcnt_hi_u32_b32 v255, -1, v255', 's_mov_b32 s%d, 229376' % sVO,
              'v_and_b32 v243, 15, v255', 'v_lshrrev_b32 v254, 4, v255',
              'v_lshl_add_u32 v%d, v255, 9, s%d' % (vFL, sFLO), 'v_lshl_add_u32 v%d, v243, 4, s%d' % (vRL, sRLO),
              'v_writelane_b32 v%d, s%d, 1' % (vFL, sFCO), 'v_mad_u32_u24 v%d, v254, s%d, v%d' % (vRL, sVO, vRL)]
        ch += ['v_add_u32 v%d, %d, v%d' % (vRL + j, j * 917504, vRL) for j in (1, 2, 3)]
        ch += ['v_and_b32 v255, 1, v254', 'v_mul_lo_u32 v255, v255, s%d' % sPCO, 'v_lshl_add_u32 v%d, v243, 2, s%d' % (vPL, sPLO), 'v_add_u32 v%d, v255, v%d' % (vPL, vPL)]
        ch += ['v_lshrrev_b32 v255, 1, v254', 'v_lshlrev_b32 v254, 5, v254', 'v_lshl_add_u32 v254, v255, 20, v254', 'v_add_u32 v254, s%d, v254' % sOUO,
               'v_lshrrev_b32 v255, 2, v243', 'v_lshl_add_u32 v254, v255, 3, v254', 'v_and_b32 v255, 3, v243', 'v_mul_u32_u24 v255, 896, v255', 'v_add_u32 v%d, v255, v254' % vOUT]
        ch += ['v_and_b32 v255, 1, v243', 'v_lshlrev_b32 v255, 4, v255', 'v_lshlrev_b32 v255, v255, v%d' % vSEL, 'v_lshrrev_b32 v%d, 1, v243' % (vSEL + 3), 'v_lshlrev_b32 v%d, v%d, 1' % (vSEL + 3, vSEL + 3)]
        ch.insert(0, 'v_mov_b32 v%d, 0x3f80' % vSEL)
        for r in range(4): ch += ['v_bfe_i32 v%d, v%d, %d, 1' % (vSEL + r, vSEL + 3, r), 'v_and_b32 v%d, v255, v%d' % (vSEL + r, vSEL + r)]
        ch += ['v_lshl_add_u32 v%d, v243, 2, s%d' % (vPL2, sPLO), 'v_mul_i32_i24 v%d, %d, v243' % (vB, OPT['ring'] - 2 * OPT['lag'] + 2)]
        G.cap = 3
        G.chain(ch, 0)
    o += G.flat()
    return o

def pt_items(r):
    pre = ['v_mbcnt_lo_u32_b32 v%d, -1, 0' % vPT, 'v_min_u32 v%d, 31, v%d' % (vPT, vPT), 'v_lshlrev_b32 v%d, 7, v%d' % (vPT, vPT)]
    if r == 0: pre += ['s_lshl_b32 s36, s3, 12', 's_add_u32 s36, s36, s%d' % sPO]
    else: pre += ['s_add_u32 s36, s36, 16384']
    return [I(c) for c in pre] + [I('s_mov_b32 m0, %d' % (9 * SLOT))], I('buffer_load_dword v%d, %s, s36 offen %s lds' % (vPT, sr(SWS), OPT['ptpol'].replace('+', ' ')), tag=('PF',))
vPT = 231
def pt_at(code): return [r for r, c in enumerate(OPT['ptat']) if int(c, 36) == code]
def oconv():
    o = []
    A = lambda s: o.append(I(s))
    k = 0
    for ds in range(8):
        for qb in range(4):
            tmp = 128 + 8 * (k % 4); k += 1
            if k in (2, 12, 22) and (k - 2) // 10 < len(pt_at(8)):
                pre, d = pt_items(pt_at(8)[(k - 2) // 10]); o += pre + [I('s_nop 0'), d]
            for T in range(2):
                for r in range(4): A('v_accvgpr_read_b32 v%d, a%d' % (tmp + 4 * T + r, O(2 * ds + T, qb) + r))
            for j in range(4): A('v_cvt_pk_bf16_f32 v%d, v%d, v%d' % (Q(ds, qb) + j, tmp + 2 * j, tmp + 2 * j + 1))
    return o

def ringadv(reg, hc, R):
    return 's_add_u32 s%d, s%d, 16384' % (reg, reg) if (hc + 1) % R else 's_sub_u32 s%d, s%d, %d' % (reg, reg, (R - 1) * 16384)
def epi_items(hc, pol, R=14):
    buf = hc & 1; it = []
    if R != 14 and hc < R and OPT['st0pol']: pol = OPT['st0pol'].replace('+', ' ')
    if R != 14 and hc >= 14 - OPT['stlast']: pol = OPT['stpol2'].replace('+', ' ')
    for qb in range(4):
        b = S(buf, qb)
        for j in range(4):
            it.append(I('v_mul_f32 v%d, v%d, v%d' % (b + 2 * j, b + 2 * j, L0 + qb)))
            it.append(I('v_mul_f32 v%d, v%d, v%d' % (b + 2 * j + 1, b + 2 * j + 1, L0 + qb)))
            it.append(I('v_cvt_pk_bf16_f32 v%d, v%d, v%d' % (b + j, b + 2 * j, b + 2 * j + 1)))
        it.append(I('buffer_store_dwordx4 %s, v%d, %s, s%d offen offset:%d %s' % (vr(b), vST, sr(SWS), sPO, qb * 1024, pol), tag=('St', hc, qb)))
    it.append(I(ringadv(sPO, hc, R)))
    return it

def rd_wo8(hc, n):
    ds, T = n >> 1, n & 1
    nt = 2 * (hc & 1) + T
    r = RING8(n)
    return [I('ds_read_b64_tr_b16 %s, v%d offset:%d' % (vr(r + 2 * rho, 2), vOA + nt, (4 * ds + 2 * rho) * 1088), tag=('fWo', hc, n, rho)) for rho in (0, 1)]
def red_loads(hc, rb): return [I('buffer_load_dwordx4 %s, v%d, %s, s%d offen %s' % (ar(rb + 4 * j), vRL + j, sr(SWS), sCO, 'sc1' if hc == 99 else OPT['rlpol'].replace('+', ' ').replace('none', '')), tag=('RL', hc, j)) for j in range(4)]
def red_mfmas(rb, d=vRD): return [I('%s %s, %s, %s, %s' % (MF, vr(d), vr(vSEL), ar(rb + 4 * j), vr(d) if j else '0')) for j in range(4)]
def red_out(hc, d=vRD, cv=vCV):
    return [I('v_cvt_pk_bf16_f32 v%d, v%d, v%d' % (cv, d, d + 1)), I('v_cvt_pk_bf16_f32 v%d, v%d, v%d' % (cv + 1, d + 2, d + 3)),
            I('buffer_store_dwordx2 %s, v%d, %s, 0 offen offset:%d %s' % (vr(cv, 2), vOUT, sr(SOUT), hc * 64, OPT['outpol'].replace('+', ' ')), tag=('Out', hc))]
def poll(tag, a=vPL): return I('buffer_load_dword v%d, v%d, %s, 0 offen sc1' % (vPR, a, sr(SWS)), tag=tag)
def flag(val):
    R, LAG = OPT['ring'], OPT['lag']
    if val + 1 - LAG >= 0: r = [I('v_add_u32 v%d, %d, v%d' % (vFV, val, vB))]
    else: r = [I('v_mov_b32 v%d, %d' % (vFV, R - LAG + 1)), I('v_writelane_b32 v%d, %d, 0' % (vFV, val))]
    return r + [I('buffer_store_dword v%d, v%d, %s, 0 offen' % (vFV, vFL, sr(SWS)), tag=('Fl', val))]
spins = []
def spin_stub(lab, thr, a):
    o = []
    A = lambda s: o.append(I(s))
    A('%s:' % lab); A('s_movk_i32 s%d, 0x7fff' % sT1)
    A('%s_L:' % lab); o.append(poll(None, a)); A('s_waitcnt vmcnt(0)'); A('v_cmp_gt_u32 vcc, %d, v%d' % (thr, vPR))
    A('s_sub_u32 s%d, s%d, 1' % (sT1, sT1)); A('s_cbranch_scc1 %s_RET' % lab); A('s_cbranch_vccnz %s_L' % lab); A('s_branch %s_RET' % lab)
    return o

def softplace(G, ins, lo, hi=None):
    if isinstance(ins, str): ins = I(ins)
    hi = G.n - 1 if hi is None else hi
    for gp in range(lo, hi + 1):
        if G.fits(gp, ins): return G.put(gp, ins)
    for extra in (1, 2, 3, 4):
        for gp in range(lo, hi + 1):
            if G.used[gp] + ins.cost <= G.cap + extra and not (ins.kind == 'ds' and any(x.kind == 'valu' for x in G.g[gp])):
                return G.put(gp, ins, force=True)
    raise AssertionError(('no room', ins.text))

def phase3(fast):
    o = []
    LAG = OPT['lag']
    pol = OPT['stpol'].replace('+', ' ') if fast else 'sc1'
    R = OPT['ring'] if fast else 14
    for hc in range(14):
        p = hc
        mf = []
        consume = fast and p - LAG - 1 >= 0
        red = red_mfmas(0) if consume else []
        rpos = {40: 0, 42: 1, 44: 2, 46: 3}
        gi = {}
        for n in range(16):
            ds, T = n >> 1, n & 1
            for qb in range(4):
                d = vr(S(hc & 1, qb, T))
                k = 4 * n + qb
                if red and k in rpos: mf.append(red[rpos[k]])
                gi[k] = len(mf)
                mf.append(I('%s %s, %s, %s, %s' % (MF, d, vr(RING8(n)), vr(Q(ds, qb)), d if ds else '0')))
        G = Gaps(mf)
        ch = hc >> 1
        dopoll = fast and p >= LAG
        if consume:
            rl = red_loads(p - LAG - 1, 0)
            G.put(0, rl[2]); G.put(5, rl[3]); G.put(6, ringadv(sCO, p - LAG - 1, R))
        if dopoll: G.put(OPT['ppos'], poll(('Poll', p)))
        for g in range(16):
            nx = g + 7
            if nx < 16 or hc < 13:
                for r in (rd_wo8(hc, nx) if nx < 16 else rd_wo8(hc + 1, nx - 16)): G.put(gi[4 * g + 3], r)
            if g & 1:
                if g < 15: lg = ('fWo', hc, g + 2 if g < 14 else 15, 1)
                else: lg = ('fWo', hc + 1, 1, 1) if hc < 13 else None
                vm = []
                if g == 9:
                    if (hc & 1) and hc < 13: vm.append(('Wo', ch + 1, 1, 3))
                    if dopoll: vm.append(('Poll', p))
                    elif fast and p >= 2: vm.append(('St', p - 2, 3))
                if lg or vm: G.put(gi[4 * g + 2], W(lg=lg, vm=vm or None))
                if g == 9 and (hc & 1) and hc < 13: G.put(gi[4 * g + 2], 's_barrier')
        dm = []
        if hc in WOS: dm = [dma_wo(*WOS[hc], q, sT0) for q in range(4)]
        grp = ([4, 5, 7, 8] if fast else [1, 2, 3, 4])[:len(dm)]
        if fast:
            for r in pt_at(9 + hc): dm = [pt_items(r)] + dm; grp = [2] + grp
        put_dmas(G, dm, grp)
        after = gi[38] + 1
        stlo = 0
        if fast and p >= 2:
            f = flag(p - 1)
            cg = G.chain(f[:-1], 30); softplace(G, f[-1], max(after, cg + 1))
        if dopoll:
            lab = 'SP_%d' % p
            spins.append((lab, p - LAG + 1, vPL))
            cg = G.place('v_cmp_gt_u32 vcc, %d, v%d' % (p - LAG + 1, vPR), after)
            cg = G.place('s_cbranch_vccnz %s' % lab, cg + 1); G.put(cg, I('%s_RET:' % lab))
            stlo = cg + 1
            rl = red_loads(p - LAG, 0)
            softplace(G, rl[0], gi[53]); softplace(G, rl[1], gi[61])
        og = 0
        if fast and p - LAG - 2 >= 0: og = softplace(G, red_out(p - LAG - 2)[2], gi[44])
        if consume:
            ro = red_out(p - LAG - 1)
            cg = softplace(G, ro[0], max(gi[46] + 6, og + 1)); cg = softplace(G, ro[1], cg)
        if hc < 12:
            delta = 34816 if (ch + 1) % 4 else -3 * 34816
            pair = (0, 1) if hc % 2 == 0 else (2, 3)
            for nt in pair:
                softplace(G, ('v_add_u32 v%d, %d, v%d' % (vOA + nt, delta, vOA + nt)) if delta > 0 else ('v_subrev_u32 v%d, %d, v%d' % (vOA + nt, -delta, vOA + nt)), gi[36])
        if hc > 0:
            cur = 0; last = stlo
            ep = epi_items(hc - 1, pol, R)
            if stlo:
                pre = {}
                for ins, tg in zip([x for x in ep if x.kind == 'vst'][:3], (stlo, gi[46], gi[50])): last = pre[ins.tag] = softplace(G, ins, tg)
            for ins in ep:
                if ins.kind == 'vst':
                    if stlo and ins.tag in pre: assert cur < pre[ins.tag], (hc, ins.tag, cur, pre)
                    else: last = softplace(G, ins, max(cur + 1, last))
                elif ins.kind == 'salu': softplace(G, ins, last)
                else: cur = softplace(G, ins, cur)
        o += G.flat()
    if not fast:
        o.append(I('s_nop 7'))
        o += epi_items(13, pol, R)
    return o

def fast_tail():
    o = []
    A = lambda s: o.append(I(s))
    LAG = OPT['lag']; R = OPT['ring']
    h0 = 13 - LAG
    ep = epi_items(13, OPT['stpol'].replace('+', ' '), R)
    rl = red_loads(h0, 0)
    o += rl[2:]; A(ringadv(sCO, h0, R))
    o.append(poll(('Poll', 14)))
    f = flag(13); o += f[:-1]
    A('s_nop 2')
    o += ep[:12]
    o.append(W(vm=('Poll', 14))); o.append(f[-1])
    spins.append(('SP_14', 15 - LAG, vPL))
    A('v_cmp_gt_u32 vcc, %d, v%d' % (15 - LAG, vPR)); o += ep[13:15]; A('s_cbranch_vccnz SP_14'); A('SP_14_RET:')
    o.append(ep[12]); o += ep[15:-1]
    o += red_loads(h0 + 1, 16); A(ringadv(sCO, h0 + 1, R))
    o.append(red_out(h0 - 1)[2])
    o += red_mfmas(0)
    A('v_mov_b32 v%d, 14' % vFV)
    o.append(W(vm=('St', 13, 3)))
    o.append(I('buffer_store_dword v%d, v%d, %s, 0 offen' % (vFV, vFL, sr(SWS)), tag=('Fl', 14)))
    o.append(poll(('Poll', 15), vPL2))
    o.append(W(vm=('RL', h0 + 1, 3)))
    o += red_mfmas(16, 128)
    ro0 = red_out(h0); o += ro0[:2]
    o.append(W(vm=('Poll', 15)))
    spins.append(('SP_15', 14, vPL2))
    A('v_cmp_gt_u32 vcc, 14, v%d' % vPR); A('s_nop 0'); A('s_cbranch_vccnz SP_15'); A('SP_15_RET:')
    rest = list(range(h0 + 2, 14))
    for k, hc in enumerate(rest):
        o += red_loads(hc, 16 * k + 32); A(ringadv(sCO, hc, R))
    o.append(ro0[2])
    o += red_out(h0 + 1, 128, 132)
    mm = [red_mfmas(16 * k + 32, 136 + 8 * k) for k in range(len(rest))]
    o.append(W(vm=('RL', 13, 3)))
    for j in range(4):
        for m in mm: o.append(m[j])
    A('s_nop 7')
    for k, hc in enumerate(rest): o += red_out(hc, 136 + 8 * k, 140 + 8 * k)
    return o

def dec_load(tag=None): return I('buffer_load_dword v%d, off, %s, s%d sc1' % (vCAS, sr(SDBG), sCO), tag=tag)
def decide():
    o = []
    A = lambda s: o.append(I(s))
    o.append(W(vm=('DecL',)))
    A('v_readfirstlane_b32 s%d, v%d' % (sT0, vCAS))
    A('s_bitcmp1_b32 s%d, 5' % sT0); A('s_cbranch_scc0 L_DECIDE'); A('L_FAST:'); A('s_mov_b32 s%d, 0' % sCO)
    return o

def slow_path(pro):
    o = []
    A = lambda s: o.append(I(s))
    A('L_DECIDE:')
    A('v_mbcnt_lo_u32_b32 v237, -1, 0'); A('v_lshl_add_u32 v237, v237, 8, s6')
    A('s_mov_b32 s%d, 0x40000' % sLC)
    A('L_DEC_A:')
    o.append(dec_load()); A('s_waitcnt vmcnt(0)'); A('v_readfirstlane_b32 s%d, v%d' % (sT0, vCAS))
    A('s_bitcmp1_b32 s%d, 5' % sT0); A('s_cbranch_scc1 L_FAST')
    A('s_bitcmp1_b32 s%d, 6' % sT0); A('s_cbranch_scc1 L_SLOW')
    A('s_bitcmp1_b32 s%d, 7' % sT0); A('s_cbranch_scc0 L_DEC_V')
    A('s_xor_b32 s%d, s%d, s%d' % (sT0, sT0, sREG)); A('s_and_b32 s%d, s%d, 15' % (sT0, sT0)); A('s_cbranch_scc1 L_SLOW')
    A('s_sub_u32 s%d, s%d, 1' % (sLC, sLC)); A('s_cbranch_scc0 L_DEC_A'); A('s_branch L_SLOW')
    A('L_DEC_V:')
    A('s_or_b32 s%d, s%d, 64' % (sT0, sREG)); A('v_mov_b32 v%d, s%d' % (vCAS, sT0))
    A('buffer_store_byte v%d, v237, %s, s%d offen' % (vCAS, sr(SDBG), sCO)); A('s_waitcnt vmcnt(0)')
    o.append(dec_load()); A('s_waitcnt vmcnt(0)'); A('v_readfirstlane_b32 s%d, v%d' % (sT0, vCAS))
    A('s_bitcmp1_b32 s%d, 7' % sT0); A('s_cbranch_scc1 L_DEC_A')
    A('L_SLOW:')
    o += phase3(False)
    A('s_waitcnt vmcnt(0)'); A('buffer_wbl2 sc1'); A('s_waitcnt vmcnt(0)')
    A('s_barrier'); A('s_cmp_eq_u32 s3, 0'); A('s_cbranch_scc0 L_END')
    A('s_and_b32 s%d, s6, 3' % sT0); A('s_lshl_b32 s%d, s%d, 3' % (sT0, sT0)); A('s_lshl_b32 s%d, 16, s%d' % (sT0, sT0)); A('v_mov_b32 v%d, s%d' % (vCAS, sT0))
    A('v_and_b32 v255, -4, v237')
    A('buffer_atomic_or v%d, v255, %s, s%d offen sc0 sc1' % (vCAS, sr(SDBG), sCO)); A('s_waitcnt vmcnt(0)')
    A('v_mbcnt_lo_u32_b32 v255, -1, 0'); A('v_lshrrev_b32 v%d, 2, v255' % vCAS); A('v_lshlrev_b32 v255, 2, v255'); A('v_lshl_add_u32 v255, v%d, 8, v255' % vCAS)
    A('v_mov_b32 v%d, 0' % vCAS)
    A('buffer_atomic_or v%d, v255, %s, s%d offen sc0 sc1' % (vCAS, sr(SDBG), sCO)); A('s_waitcnt vmcnt(0)')
    A('s_mov_b32 s%d, 0x10101010' % sT0); A('v_and_b32 v%d, s%d, v%d' % (vCAS, sT0, vCAS)); A('v_cmp_eq_u32 vcc, s%d, v%d' % (sT0, vCAS))
    A('s_nop 1'); A('s_and_b32 s%d, vcc_lo, 15' % sT0); A('s_cmp_eq_u32 s%d, 15' % sT0); A('s_cbranch_scc0 L_END')
    A('buffer_inv sc1'); A('s_waitcnt vmcnt(0)')
    for j in range(4): A('v_subrev_u32 v%d, s%d, v%d' % (vRL + j, sRLO, vRL + j))
    A('v_subrev_u32 v%d, s%d, v%d' % (vOUT, sOUO, vOUT))
    A('s_mov_b32 s%d, 0' % sLC)
    A('L_SLOOP:')
    A('s_lshl_b32 s%d, s%d, 8' % (sCO, sLC))
    o += red_loads(99, 0)
    A('s_bfe_u32 s%d, s%d, 0x40002' % (sT0, sLC)); A('s_mul_i32 s%d, s%d, 14336' % (sT0, sT0))
    A('s_and_b32 s%d, s%d, 3' % (sT1, sLC)); A('s_mul_i32 s%d, s%d, 3584' % (sT1, sT1)); A('s_add_u32 s%d, s%d, s%d' % (sT0, sT0, sT1))
    A('s_andn2_b32 s%d, s%d, 63' % (sT1, sLC)); A('s_add_u32 s%d, s%d, s%d' % (sT0, sT0, sT1))
    A('s_waitcnt vmcnt(0)')
    o += red_mfmas(0); A('s_nop 7')
    ro = red_out(0); o += ro[:2]
    A('buffer_store_dwordx2 %s, v%d, %s, s%d offen' % (vr(vCV, 2), vOUT, sr(SOUT), sT0))
    A('s_add_u32 s%d, s%d, 1' % (sLC, sLC)); A('s_cmp_lt_u32 s%d, 896' % sLC); A('s_cbranch_scc1 L_SLOOP')
    A('s_waitcnt vmcnt(0)'); A('s_endpgm')
    return o

def rare(par):
    o = []
    A = lambda s: o.append(I(s))
    A('RARE_%d:' % par)
    A('s_nop 7'); A('s_nop 7')
    A('v_mbcnt_lo_u32_b32 v252, -1, 0'); A('v_mbcnt_hi_u32_b32 v252, -1, v252')
    A('v_and_b32 v253, 15, v252'); A('v_lshlrev_b32 v253, 9, v253'); A('v_lshrrev_b32 v252, 4, v252'); A('v_lshl_add_u32 v252, v252, 4, v253')
    A('s_sub_u32 s%d, s%d, %d' % (sR0, sKO, LEAD * 16384))
    for T in range(2):
        if T: A('s_add_u32 s%d, s%d, 8192' % (sR0, sR0))
        for ds in range(0, 8, 2):
            A('buffer_load_dwordx4 v[244:247], v252, %s, s%d offen offset:%d' % (sr(SK), sR0, ds * 64))
            A('buffer_load_dwordx4 v[248:251], v252, %s, s%d offen offset:%d' % (sr(SK), sR0, ds * 64 + 64))
            A('s_waitcnt vmcnt(0)')
            for d2 in range(2):
                for qb in range(4):
                    d = vr(S(par, qb, T))
                    A('%s %s, %s, %s, %s' % (MF, d, vr(244 + 4 * d2), vr(Q(ds + d2, qb)), d if ds + d2 else vr(NEGM(qb))))
            A('s_nop 7')
    A('s_nop 7')
    for qb in range(4):
        b = S(par, qb); y = S(par ^ 1, qb)
        A('v_max3_f32 v253, v%d, v%d, v%d' % (b, b + 1, b + 2)); A('v_max3_f32 v253, v253, v%d, v%d' % (b + 3, b + 4))
        A('v_max3_f32 v253, v253, v%d, v%d' % (b + 5, b + 6)); A('v_max_f32 v253, v253, v%d' % (b + 7))
        for sw in ('v_permlane32_swap_b32', 'v_permlane16_swap_b32'):
            A('v_mov_b32 v254, v253'); A('s_nop 1'); A('%s v253, v254' % sw); A('v_max_f32 v253, v253, v254')
        A('v_max_f32 v253, 0, v253')
        A('v_exp_f32 v255, -v253')
        for r in range(4): A('v_sub_f32 v%d, v%d, v253' % (NEGM(qb) + r, NEGM(qb) + r))
        for k in range(8): A('v_sub_f32 v%d, v%d, v253' % (y + k, y + k))
        for k in range(8): A('v_sub_f32 v%d, v%d, v253' % (b + k, b + k))
        for kind, k, ins in softmax_items(par, qb):
            o.append(ins)
            if kind == 'e': A('s_nop 0')
        A('v_mul_f32 v%d, v%d, v255' % (L0 + qb, L0 + qb))
        for db in range(0, 16, 2):
            regs = [O(db + d, qb) + r for d in range(2) for r in range(4)]
            for k, a in enumerate(regs): A('v_accvgpr_read_b32 v%d, a%d' % (244 + k, a))
            for k, a in enumerate(regs): A('v_mul_f32 v%d, v%d, v255' % (244 + k, 244 + k))
            for k, a in enumerate(regs): A('v_accvgpr_write_b32 a%d, v%d' % (a, 244 + k))
    A('s_nop 1')
    A('s_setpc_b64 %s' % sr(sRET, 2))
    return o

def dump_v(first, nfrag):
    o = []
    A = lambda s: o.append(I(s))
    A('s_nop 7'); A('s_nop 7'); A('s_waitcnt vmcnt(0) lgkmcnt(0)')
    A('s_lshl_b32 s34, s%d, 17' % sBH); A('s_add_u32 s28, s50, s34'); A('s_addc_u32 s29, s51, 0'); A('s_mov_b32 s30, 131072')
    for f in range(nfrag):
        A('s_mov_b32 s35, %d' % ((f // 4) * 16384 + (f % 4) * 1024))
        A('buffer_store_dwordx4 %s, v%d, %s, s35 offen' % (vr(first + 4 * f), vST, sr(SWS)))
    A('s_waitcnt vmcnt(0)'); A('s_endpgm')
    return o

def stamps_out():
    o = []
    if not OPT['stamps']: return o
    A = lambda s: o.append(I(s))
    A('s_waitcnt vmcnt(0)')
    A('s_memrealtime s[94:95]'); A('s_waitcnt lgkmcnt(0)')
    A('s_add_u32 s28, s50, 0x4000000'); A('s_addc_u32 s29, s51, 0'); A('s_mov_b32 s30, 0x100000')
    A('s_lshl_b32 s34, s2, 2'); A('s_add_u32 s34, s34, s3'); A('s_lshl_b32 s34, s34, 7')
    A('v_mov_b32 v1, 0')
    for k in range(32):
        A('v_mov_b32 v0, s%d' % (sST + k)); A('buffer_store_dword v0, v1, %s, s34 offen offset:%d' % (sr(SWS), 4 * k)); A('s_nop 1')
    return o

def main_kernel():
    pre = setup()
    if OPT['stamps']: pre = [I('s_memrealtime s[92:93]')] + pre
    stamp(pre)
    p1 = phase1()
    if OPT['stop'] == 'q':
        body = pre + p1 + dump_v(0, 32); loop = None; post = []; slow = []
        stream = body
    else:
        stamp(p1)
        pro = prologue()
        stamp(pro)
        iters = [sum((step(4 * it + k) for k in range(4)), []) for it in range(7)]
        if OPT['stamps'] == 2:
            for it in iters:
                it[0:0] = [I('s_waitcnt lgkmcnt(0)'), I('s_memrealtime s[96:97]'), I('s_waitcnt lgkmcnt(0)'), ] + [I('s_mov_b32 s%d, s%d' % (84 + k, 85 + k)) for k in range(6)] + [I('s_mov_b32 s90, s96')]
        tail = []
        stamp(tail)
        for t in range(28, 32): tail += step(t)
        stamp(tail)
        for n in (4, 5, 6): tail += rd_wo8(0, n)
        tail.append(dec_load(('DecL',)))
        tail += oconv()
        slow = []
        if OPT['stop'] == 'o': tail += dump_v(0, 32)
        else:
            stamp(tail)
            tail += [W(lg=('fWo', 0, 1, 1))] + decide()
            common = pre + p1 + pro + sum(iters, []) + tail
            slow = slow_path(common)
            resolve_waits(common + slow); finalize_waits(slow)
            tail += phase3(True)
            stamp(tail)
            tail += fast_tail()
            stamp(tail)
            tail += stamps_out()
            tail += [I('s_waitcnt vmcnt(0)')]
        stream = pre + p1 + pro + sum(iters, []) + tail
    resolve_waits(stream)
    if OPT['stop'] != 'q' and PEEL < 7: unify_iters(iters[PEEL:])
    finalize_waits(stream)
    errs = check_hazards(stream, 'main')
    if slow: errs += check_hazards(common + slow, 'slow')
    out = []
    if OPT['stop'] == 'q': out = stream
    else: out = pre + p1 + pro + sum(iters[:PEEL], []) + ([I('L_LOOP:')] + iters[PEEL] if PEEL < 7 else []) + tail
    out += [I('L_END:'), I('s_endpgm')]
    if OPT['stop'] != 'q':
        for lab, par in stubs:
            out += [I('%s:' % lab), I('s_call_b64 %s, RARE_%d' % (sr(sRET, 2), par)), I('s_branch %s_RET' % lab)]
        for lab, thr, a in spins: out += spin_stub(lab, thr, a)
        for par in (0, 1):
            r = rare(par); errs += check_hazards(r, 'rare'); out += r
        out += slow
    for e in errs[:40]: print('; ERROR', e, file=sys.stderr)
    if errs: raise SystemExit('hazard errors: %d' % len(errs))
    return out

def desc(name, vg, acc, y=False):
    return '''.amdhsa_kernel %s
  .amdhsa_next_free_vgpr %d
  .amdhsa_next_free_sgpr 102
  .amdhsa_accum_offset %d
  .amdhsa_group_segment_fixed_size 0
  .amdhsa_kernarg_size 64
  .amdhsa_user_sgpr_count 2
  .amdhsa_user_sgpr_kernarg_segment_ptr 1
  .amdhsa_system_sgpr_workgroup_id_x 1
%s.end_amdhsa_kernel''' % (name, vg, acc, '  .amdhsa_system_sgpr_workgroup_id_y 1\n' if y else '')

def fmt(ins):
    if ins.kind == 'dma' and ins.tag and OPT['nodma'] & {'X': 1, 'Wq': 2, 'K': 4, 'V': 4, 'Wo': 8, 'PF': 16}[ins.tag[0]]: return '    s_nop 0'
    if ins.kind == 'vst' and ins.tag and ins.tag[0] == 'St' and OPT['nost']: return '    s_nop 0'
    if OPT['noexp'] and ins.mn == 'v_exp_f32': return '    ' + ins.text.replace('v_exp_f32', 'v_mov_b32')
    k = OPT['kill']
    if ins.tag and ins.kind in ('vst', 'vld') and k & {'RL': 1, 'Out': 2, 'Poll': 4, 'Fl': 8, 'Reg': 32, 'Fz': 64, 'Dec': 128, 'Chk': 128}.get(ins.tag[0], 0): return '    s_nop 0'
    if k & 16 and ins.text.startswith('s_cbranch_vccnz SP_'): return '    s_nop 0'
    if k & 32 and ins.text.startswith('s_cbranch_scc0 L_DECIDE'): return '    s_nop 0'
    return ins.text if ins.kind == 'label' else '    ' + ins.text

if __name__ == '__main__':
    K1 = OPT['name'] + '_kernel'; K2 = 'mha_reduce_kernel'
    hdr = open('standalone__mha_block_cached__near_ridge.s.ref').read().split('; Override launch')[0]
    t = hdr
    t += '; @launch grid=(256,1,1) block=(256,1,1) lds=163840\n'
    t += '.amdgcn_target "amdgcn-amd-amdhsa--gfx950"\n.text\n'
    for K, body in ((K1, main_kernel()),):
        t += '.globl %s\n.p2align 8\n.type %s,@function\n%s:\n' % (K, K, K)
        t += '\n'.join((fmt(i).strip().replace(', ', ',') if OPT['tight'] else fmt(i)) for i in body) + '\n'
    t += '.section .rodata,"a"\n.p2align 6\n' + desc(K1, 512, 256) + '\n'
    sys.stdout.write(t)
```

```python
import sys, os
sys.path.insert(0, os.path.dirname(os.path.abspath(__file__)))
from asmlib import *

OPT = dict(xr=0, xs=0, pm=0, skip='1,9,10,9,19,9', tight=0, ncl=0, chain=0, w2=0, fill='04444444404', st0pol='', wsoff=0, ptat='', ptl=0, ptpol='', peel=0, lead=4, pre9=0, kp='', vp='', cpf=0, stlast=0, stpol2='sc1', outpol='', l2two='', tlbw=0, tlbs=16, warm=0, woat=6, warmpol='none', l2pf='', l2at='', l2pol='none', xpol='', wopol='', mix=0, pol2='', drop='', padp='', pad1='', padit=0, padfrom=0, pad=0, noexp=0, pf='', pfq='', pfl=0, pfpol='nt', ppos=12, prel=0, rlpol='sc1', kill=0, fuse=1, lag=3, ptouch=7, forceslow=0, map=1, ring=4, stpol='', wpol='', rot=0, kvpol='nt', nodma=0, nost=0, wq8=1, stop='', stamps=0, thr=0x47800000, name='standalone__mha_block_cached__near_ridge')
for a in sys.argv[1:]:
    k, v = a.split('=')
    OPT[k] = v if k in ('stop', 'name', 'kvpol', 'stpol', 'wpol', 'rlpol', 'pf', 'pfq', 'pfpol', 'padp', 'pad1', 'drop', 'pol2', 'l2pf', 'l2at', 'l2pol', 'xpol', 'wopol', 'warmpol', 'l2two', 'stpol2', 'outpol', 'kp', 'vp', 'ptpol', 'st0pol', 'ptat', 'fill', 'skip') else int(v, 0)

SLOT = 17408
MF = 'v_mfma_f32_16x16x32_bf16'
def vr(b, n=4): return 'v[%d:%d]' % (b, b + n - 1) if n > 1 else 'v%d' % b
def ar(b, n=4): return 'a[%d:%d]' % (b, b + n - 1) if n > 1 else 'a%d' % b
def sr(b, n=4): return 's[%d:%d]' % (b, b + n - 1)

SK, SV, SWQ, SX, SWO, SWS = 8, 12, 16, 20, 24, 28
sWL, sWL8, sT0, sT1 = 32, 33, 34, 35
sKO, sLC, sTHR, sSC, sRET, sR0, sVO = 52, 53, 54, 56, 58, 61, 62
sBH = 63
sST = 64
def Q(ds, qb): return 4 * (ds * 4 + qb)
def S(buf, qb, T=0): return 128 + 32 * buf + 8 * qb + 4 * T
def NEGM(qb): return 192 + 4 * qb
def RING(n): return 208 + 4 * (n % 4)
L0, LT0 = 224, 228
vKA, vVAe, vVAo, vDK, vDV, vDWo, vOA, vST, vTM = 232, 233, 234, 236, 237, 235, 238, 242, 243
vSEL, vRL, vFL, vPL, vOUT, vRD, vCV, vPR, vFV, vCAS = 244, 248, 252, 253, 254, 228, 232, 234, 237, 236
sPO, sCO, sREG, sFULL, sFLO, sPLO, sRLO, sOUO = 55, 60, 5, 7, 98, 99, 100, 101
sFCO, sPCO = 33, 63
vB, vPL2 = 243, 255
SDBG, SOUT = 20, 16
BSTRIDE, FLOFF = 3670528, 3670016
def RING8(n): return 192 + 4 * ((n + 4) % 8)
vWA0, vWA1, vWA80, vWA81, vXA, vDWq, vDX = 244, 245, 246, 247, 248, 249, 250
def O(db, qb): return 4 * (db * 4 + qb)
def ACC(ds, qb, T):
    if ds < 7: return vr(8 * (ds * 4 + qb) + 4 * T)
    return ar(8 * qb + 4 * T)
def XF(j, T, qb): return (32 if j % 6 == 0 else 48 + 32 * j) + 16 * T + 4 * qb
sWX, sXP = 91, 84
def ARING(n): return 64 + 4 * (n % 4)

nstamp = [0]
def stamp(out):
    if OPT['stamps'] in (0, 2): return
    k = nstamp[0]; nstamp[0] += 1
    out.append(I('s_waitcnt lgkmcnt(0)'))
    out.append(I('%s %s' % ('s_memrealtime' if OPT['stamps'] == 3 else 's_memtime', sr(sST + 2 * k, 2))))
    out.append(I('s_waitcnt lgkmcnt(0)'))

LEAD, PEEL, CH = OPT['lead'], OPT['peel'], OPT['chain']
NCL = OPT['ncl'] or 4 + (PEEL + 1) // 2
assert PEEL >= 1
def kslot(n): return 4 + n % 5
WOB = [7, 0, 4, 2]
sKS, sVS, sKE, sVE, sMK, sKBEG, sKEND, sCD, sCI, sKD = 38, 40, 42, 44, 46, 48, 49, 84, 86, 88
def mk_sched():
    avail = {('V', 0): 6, ('V', 1): 6, ('V', 2): 7, ('V', 3): 7, ('K', 4): 15, ('K', 0): 10, ('K', 1): 11, ('K', 2): 12, ('K', 3): 13}
    order = [('K', 0), ('K', 1), ('V', 0), ('K', 2), ('V', 1), ('K', 3), ('V', 2), ('K', 4), ('V', 3)]
    done = {k: 0 for k in order}; F = {}
    for per, c in zip(range(5, 16), OPT['fill']):
        F[per] = []
        for _ in range(int(c, 36)):
            k = [k for k in order if avail[k] <= per and done[k] < 4][0]
            F[per].append((k[0], k[1], done[k])); done[k] += 1
    assert all(v == 4 for v in done.values())
    return F
FILL = mk_sched()
def fill_dmas(per):
    r = []; prev = None
    for w, n, p in FILL.get(per, []):
        r.append(dma_kv_imm(w, n, p, sT0, prev != (w, n))); prev = (w, n)
    return r
if LEAD == 4: WOS = {(28, 0): (0, 0), (29, 0): (0, 1), (30, 0): (1, 0), (31, 0): (1, 1), (29, 1): (2, 0), (30, 1): (2, 1), (31, 1): (3, 0), 0: (3, 1), 2: (4, 0), 3: (4, 1), 4: (5, 0), 5: (5, 1), 6: (6, 0), 7: (6, 1)}
else: WOS = dict(zip([(29, 0), (30, 0), (30, 1), (31, 0), (31, 1)] + list(range(9)), [(c, h) for c in range(7) for h in range(2)]))
def dma_kv(which, tile, slot, p, soff):
    srd, vo = (SK, vDK) if which == 'K' else (SV, vDV)
    pre = [I('s_add_u32 m0, s%d, %d' % (sWL, slot * SLOT + p * 64))]
    pol = OPT['pol2'] if (which, p) in [('K', 3), ('V', 3), ('K', 1), ('V', 1), ('K', 2), ('V', 2)][:OPT['mix']] else OPT['kvpol']
    d = I('buffer_load_dwordx4 v%d, %s, s%d offen offset:%d %s lds' % (vo, sr(srd), soff, p * 1024, pol.replace('+', ' ')), tag=(which, tile, p))
    return pre, d
PM = OPT['pm']; sWK = 89 if PM else sWL
kpar = [0]
sXR = 90
def ktoggle(which, p):
    if which != 'K' or kpar[0] == p & 1: return []
    kpar[0] ^= 1
    return [I('v_xor_b32 v%d, 32, v%d' % (vDK, vDK))]
def dma_dyn(which, tile, p):
    srd, vo, e = (SK, vDK, sKE) if which == 'K' else (SV, vDV, sVE)
    if PM:
        pre = ktoggle(which, p) + ([I('s_add_u32 s%d, s%d, 4096' % (e + 1, e + 1))] if p else []) + [I('s_add_u32 m0, s%d, %d' % (e, p * 4352) if p else 's_mov_b32 m0, s%d' % e)]
        return pre, I('buffer_load_dwordx4 v%d, %s, s%d offen %s lds' % (vo, sr(srd), e + 1, OPT['kvpol'].replace('+', ' ')), tag=(which, tile, p))
    pre = [I('s_add_u32 m0, s%d, %d' % (e, p * 64) if p else 's_mov_b32 m0, s%d' % e)]
    return pre, I('buffer_load_dwordx4 v%d, %s, s%d offen offset:%d %s lds' % (vo, sr(srd), e + 1, p * 1024, OPT['kvpol'].replace('+', ' ')), tag=(which, tile, p))
def dyn_next(which, k):
    st, e, m, beg, end = (sKS, sKE, sMK, sKBEG, sKEND) if which == 'K' else (sVS, sVE, sMK + 1, sWK, sKBEG)
    return [['s_bitcmp1_b32 s%d, %d' % (m, k), 's_cselect_b64 %s, %s, %s' % (sr(e, 2), sr(sCD, 2), sr(st, 2)), 's_cselect_b64 %s, 0, %s' % (sr(sT0, 2), sr(sCI, 2))],
            ['s_add_u32 s%d, s%d, s%d' % (st + 1, st + 1, sT1)]] + ([['s_xor_b32 s%d, s%d, s%d' % (e + 1, e + 1, sXR)]] if OPT['xr'] else []) + [['s_add_u32 s%d, s%d, s%d' % (st, st, sT0)],
            ['s_cmp_eq_u32 s%d, s%d' % (st, end), 's_cmov_b32 s%d, s%d' % (st, beg)]]
NOSCC = ('s_mov_b32', 's_movk_i32', 's_mul_i32', 's_cselect_b32', 's_cselect_b64', 's_cmov_b32')
def place_groups(G, groups, lo, hi):
    cur = lo
    for grp in groups:
        grp = [I(c) for c in grp]
        for extra in (0, 1, 2):
            ok = None
            for st in range(cur, hi + 1):
                gp = st; pl = []; use = {}
                for k, ins in enumerate(grp):
                    while gp <= hi and G.used[gp] + use.get(gp, 0) + ins.cost > G.cap + extra: gp += 1
                    if gp > hi: pl = None; break
                    pl.append(gp); use[gp] = use.get(gp, 0) + ins.cost
                if pl and pl[0] == st and not any(x.kind == 'branch' or (x.kind == 'salu' and x.mn not in NOSCC) for q in range(pl[0] + 1, pl[-1] + 1) for x in G.g[q]):
                    ok = pl; break
            if ok: break
        assert ok, ('no room for group', grp)
        for gp, ins in zip(ok, grp): G.put(gp, ins, force=True)
        cur = ok[-1]
    return cur
def kswitch(n):
    if 4 * PEEL + 2 <= n < 30:
        return [['s_add_u32 s%d, s%d, s%d' % (sVO, sVO, sCI)], ['s_cmp_eq_u32 s%d, %d' % (sVO, 5 * SLOT), 's_cselect_b32 s%d, %d, s%d' % (sKD, -4 * SLOT, sCI), 's_cmov_b32 s%d, 0' % sVO],
                ['v_add_u32 v%d, s%d, v%d' % (vKA, sKD, vKA)]]
    return [['v_add_u32 v%d, %d, v%d' % (vKA, SLOT, vKA) if n % 5 else 'v_subrev_u32 v%d, %d, v%d' % (vKA, 4 * SLOT, vKA)]]
def dma_wq(tile, p, st):
    slot = 4 + (tile + 1) % 5
    pre = [I('s_add_u32 m0, s%d, %d' % (sWL8, slot * SLOT + p * 1088)), I('s_mov_b32 s%d, %d' % (st, tile * 32 * 8192 + p * 16384))]
    d = I('buffer_load_dwordx4 v%d, %s, s%d offen %s lds' % (vDWq, sr(SWQ), st, OPT['wpol'].replace('+', ' ')), tag=('Wq', tile, p))
    return pre, d
XB = lambda j: 34816 * (1 - (j & 1))
def dma_x(j, p, st=None):
    pre = [I('s_add_u32 m0, s%d, %d' % (sWX, XB(j) + p * 1088))]
    if p == 0 and j: pre = pre + [I('v_add_u32 v%d, 128, v%d' % (vDX, vDX))]
    d = I('buffer_load_dwordx4 v%d, %s, %s offen %s lds' % (vDX, sr(SX), 's%d' % (sXP + p - 1) if p else '0', OPT['xpol'].replace('+', ' ')), tag=('X', j, p))
    return pre, d
def dma_wo(chunk, half, p, st):
    slot = WOB[chunk % 4] + half
    pre = [I('s_add_u32 m0, s%d, %d' % (sWL, slot * SLOT + p * 1088)), I('s_mov_b32 s%d, %d' % (st, half * 128 * 896 + p * 7168 + chunk * 128))]
    d = I('buffer_load_dwordx4 v%d, %s, s%d offen %s lds' % (vDWo, sr(SWO), st, OPT['wopol'].replace('+', ' ')), tag=('Wo', chunk, half, p))
    return pre, d
def dma_kv_imm(which, tile, p, st, first=None):
    slot = kslot(tile) if which == 'K' else tile % 4
    if PM:
        pre = ktoggle(which, p) + [I('s_mov_b32 s%d, %d' % (st, tile * 16384 + p * 4096)), I('s_add_u32 m0, s%d, %d' % (sWK, slot * SLOT + p * 4352))]
        return pre, I('buffer_load_dwordx4 v%d, %s, s%d offen %s lds' % (vDK if which == 'K' else vDV, sr(SK if which == 'K' else SV), st, OPT['kvpol'].replace('+', ' ')), tag=(which, tile, p))
    pre, d = dma_kv(which, tile, slot, p, st)
    if first is None: first = p == 0
    if first: pre += [I('s_xor_b32 s%d, s%d, %d' % (st, sXR, tile * 16384) if OPT['xr'] else 's_mov_b32 s%d, %d' % (st, tile * 16384))]
    return pre, d
def adv(so):
    return [I('s_add_u32 s%d, s%d, 16384' % (so, so))]

def rd_wq(tile, n):
    ds, T = n >> 1, n & 1
    slot = 4 + (tile + 1) % 5
    if slot == 8: a = (vWA80, vWA81)[(ds >> 1) & 1]; base = 0
    else: a = (vWA0, vWA1)[(ds >> 1) & 1]; base = (slot - 4) * SLOT
    r = ARING(n)
    return [I('ds_read_b64_tr_b16 %s, v%d offset:%d' % (ar(r + 2 * rho, 2), a, base + rho * 2176 + ds * 64 + T * 8), tag=('fWq', tile, n, rho)) for rho in (0, 1)]
def rd_x(j, qb, T):
    return I('ds_read_b128 %s, v%d offset:%d' % (ar(XF(j, T, qb)), vXA, XB(j) + qb * 2176 + T * 64), tag=('fX', j, qb, T))
def rd_k(t, n):
    T, ds = n >> 3, n & 7
    return [I('ds_read_b128 %s, v%d offset:%d' % (vr(RING(n)), vKA, T * 8704 + ds * 64), tag=('fK', t, n, 1))]
def rd_v(t, db):
    a = vVAo if db & 1 else vVAe
    r = RING(db)
    return [I('ds_read_b64_tr_b16 %s, v%d offset:%d' % (vr(r + 2 * rho, 2), a, (t % 4) * SLOT + rho * 8704 + db * 32), tag=('fV', t, db, rho)) for rho in (0, 1)]
def rd_wo(hc, n):
    ds, T = n >> 1, n & 1
    nt = 2 * (hc & 1) + T
    r = RING(n)
    return [I('ds_read_b64_tr_b16 %s, v%d offset:%d' % (vr(r + 2 * rho, 2), vOA + nt, (4 * ds + 2 * rho) * 1088), tag=('fWo', hc, n, rho)) for rho in (0, 1)]

def put_dmas(G, dmas, groups):
    prev = 0
    for (pre, d), g in zip(dmas, groups):
        gp = 4 * g + 1
        G.put(gp, d)
    for (pre, d), g in zip(dmas, groups):
        gp = 4 * g + 1
        hi = gp - 1; got = []
        for ins in reversed(pre):
            for cand in range(hi, prev - 1, -1):
                if G.used[cand] + ins.cost <= G.cap:
                    G.used[cand] += ins.cost; got.append((cand, ins)); hi = cand; break
            else: G.used[hi] += ins.cost; got.append((hi, ins))
        for cand, ins in reversed(got): G.g[cand].append(ins)
        prev = gp + 1

def setup():
    o = []
    A = lambda s: o.append(I(s))
    A('s_cmp_ge_u32 s2, 256'); A('s_cbranch_scc1 L_END')
    A('s_load_dwordx16 s[36:51], s[0:1], 0')
    A('v_lshrrev_b32 v1, 6, v0'); A('v_and_b32 v0, 63, v0')
    A('v_readfirstlane_b32 s3, v1')
    A('s_and_b32 s4, s2, 7'); A('s_lshr_b32 s5, s2, 3')
    if OPT['cpf']:
        A('s_getpc_b64 s[8:9]'); A('s_lshl_b32 s6, s5, 2'); A('s_add_u32 s6, s6, s3'); A('s_mul_i32 s6, s6, %d' % (128 * NCL))
        A('s_mov_b32 s10, %d' % (16384 * NCL)); A('s_mov_b32 s11, 0x20000')
        A('v_min_u32 v201, %d, v0' % (NCL - 1)); A('v_lshlrev_b32 v201, 7, v201')
        o.append(I('buffer_load_dword v200, v201, s[8:11], s6 offen', tag=('CPF',)))
    if OPT['map'] == 0:
        A('s_and_b32 s6, s4, 3'); A('s_lshl_b32 s6, s6, 2'); A('s_and_b32 s7, s5, 3'); A('s_add_u32 s6, s6, s7')
        A('s_lshr_b32 s4, s4, 2'); A('s_lshl_b32 s4, s4, 3'); A('s_lshr_b32 s5, s5, 2'); A('s_add_u32 s4, s4, s5')
    else:
        A('s_lshr_b32 s6, s5, 1'); A('s_and_b32 s5, s5, 1'); A('s_lshl_b32 s4, s4, 1'); A('s_add_u32 s4, s4, s5')
    A('s_lshl_b32 s5, s4, 4'); A('s_add_u32 s%d, s5, s6' % sBH)
    A('s_mul_i32 s%d, s3, 4352' % sWL)
    A('s_and_b32 s7, s3, 1')
    if OPT['wq8']: A('s_lshl_b32 s7, s7, 3'); A('s_add_u32 s%d, s%d, s7' % (sWL8, sWL)); A('s_lshr_b32 s7, s7, 3')
    else: A('s_mov_b32 s%d, s%d' % (sWL8, sWL))
    A('v_and_b32 v1, 15, v0'); A('v_lshrrev_b32 v2, 4, v0'); A('v_bfe_u32 v3, v0, 2, 2'); A('v_and_b32 v4, 3, v0')
    A('v_lshrrev_b32 v5, 5, v0'); A('v_and_b32 v6, 31, v0')
    A('s_lshl_b32 s34, s3, 6'); A('v_lshrrev_b32 v7, 3, v0'); A('v_and_b32 v8, 2, v7'); A('v_add_u32 v7, s34, v7'); A('s_movk_i32 s35, 896')
    A('v_mul_lo_u32 v7, v7, s35'); A('v_and_b32 v9, 7, v0'); A('v_xor_b32 v8, v8, v9'); A('v_lshl_add_u32 v%d, v8, 4, v7' % vDX)
    A('s_lshl_b32 s%d, s%d, 1' % (sWX, sWL))
    for p in range(1, 8): A('s_movk_i32 s%d, %d' % (sXP + p - 1, p * 7168) if p < 5 else 's_mov_b32 s%d, %d' % (sXP + p - 1, p * 7168))
    A('s_lshl_b32 s34, s3, 3'); A('v_add_u32 v7, s34, v5'); A('v_lshlrev_b32 v7, 13, v7'); A('v_lshlrev_b32 v8, 3, v5')
    A('v_xor_b32 v8, v8, v6'); A('v_lshl_add_u32 v%d, v8, 4, v7' % vDWq)
    A('s_waitcnt lgkmcnt(0)')
    def srd(d, p, off, size):
        A('s_add_u32 s%d, s%d, %s' % (d, p, off)); A('s_addc_u32 s%d, s%d, 0' % (d + 1, p + 1))
        A('s_mov_b32 s%d, %s' % (d + 2, size)); A('s_mov_b32 s%d, 0x20000' % (d + 3))
    A('s_mul_i32 s34, s4, 229376'); srd(SX, 36, 's34', '229376')
    A('s_lshl_b32 s34, s6, 9'); A('s_sub_u32 s35, 3670016, s34'); srd(SWQ, 42, 's34', 's35')
    return o

def setup2():
    o = []
    A = lambda s: o.append(I(s))
    def srd(d, p, off, size):
        A('s_add_u32 s%d, s%d, %s' % (d, p, off)); A('s_addc_u32 s%d, s%d, 0' % (d + 1, p + 1))
        A('s_mov_b32 s%d, %s' % (d + 2, size)); A('s_mov_b32 s%d, 0x20000' % (d + 3))
    A('s_lshl_b32 s34, s%d, 19' % sBH); srd(SK, 38, 's34', '524288'); srd(SV, 40, 's34', '524288')
    A('s_mul_i32 s34, s6, 229376'); srd(SWO, 44, 's34', '229376')
    A('s_mul_i32 s34, s4, %d' % BSTRIDE)
    if OPT['wsoff']: A('s_add_u32 s34, s34, %d' % (OPT['wsoff'] << 20))
    srd(SWS, 50, 's34', str(BSTRIDE))
    tw = OPT['tlbw']
    if tw:
        A('s_mov_b32 m0, %d' % (9 * SLOT)); A('v_lshlrev_b32 v255, %d, v0' % OPT['tlbs'])
        if tw & 8: A('s_mul_i32 s34, s4, 229376'); srd(40, 46, 's34', '229376')
        for bit, r in ((1, SK), (1, SV), (16, SWQ), (16, SX), (2, SWO), (4, SWS), (8, 40)):
            if tw & bit: o.append(I('buffer_load_dword v255, %s, 0 offen nt lds' % sr(r), tag=('PF',)))
    A('s_mov_b32 s%d, 0x%x' % (sTHR, OPT['thr']))
    A('s_mov_b32 s%d, 0x3db8aa3b' % sSC); A('s_mov_b32 s%d, 0x3db8aa3b' % (sSC + 1))
    if OPT['rot'] == 0: A('s_mov_b32 s%d, 0' % sKO)
    elif OPT['rot'] == 1: A('s_and_b32 s%d, s%d, 31' % (sKO, sBH))
    elif OPT['rot'] == 2: A('s_lshr_b32 s%d, s2, 3' % sKO)
    elif OPT['rot'] == 3: A('s_mul_i32 s%d, s2, 11' % sKO); A('s_lshr_b32 s34, s2, 5'); A('s_add_u32 s%d, s%d, s34' % (sKO, sKO)); A('s_and_b32 s%d, s%d, 31' % (sKO, sKO))
    elif OPT['rot'] == 4: A('s_and_b32 s%d, s2, 7' % sKO); A('s_lshl_b32 s%d, s%d, 2' % (sKO, sKO))
    A('s_lshl_b32 s%d, s%d, 14' % (sKO, sKO)); A('s_mov_b32 s%d, s%d' % (sVO, sKO)); A('s_mov_b32 s%d, %d' % (sLC, PEEL))
    A('s_movk_i32 s35, 1088')
    A('v_lshrrev_b32 v7, 3, v1'); A('v_and_b32 v8, 2, v1'); A('v_xor_b32 v8, v8, v2'); A('v_lshlrev_b32 v8, 4, v8')
    A('v_and_b32 v9, 7, v1'); A('v_lshl_add_u32 v8, v9, 7, v8'); A('v_mad_u32_u24 v8, v7, s35, v8'); A('v_lshl_add_u32 v%d, s%d, 1, v8' % (vXA, sWL))
    A('v_lshrrev_b32 v9, 1, v3'); A('v_and_b32 v10, 1, v3')
    A('v_lshl_add_u32 v8, v2, 2, v9'); A('v_mul_lo_u32 v8, v8, s35'); A('v_lshl_add_u32 v8, v4, 4, v8')
    if OPT['wq8']: A('v_and_b32 v11, 1, v2'); A('v_lshl_add_u32 v8, v11, 3, v8')
    A('v_add_u32 v8, %d, v8' % (4 * SLOT))
    A('v_mul_u32_u24 v11, 640, v10'); A('v_add_u32 v%d, v8, v11' % vWA0)
    A('v_mul_u32_u24 v11, 384, v10'); A('v_add_u32 v%d, v8, v11' % vWA1)
    A('v_add_u32 v%d, %d, v%d' % (vWA80, 4 * SLOT, vWA0)); A('v_add_u32 v%d, %d, v%d' % (vWA81, 4 * SLOT, vWA1))
    A('v_lshrrev_b32 v8, 1, v1'); A('v_mul_lo_u32 v8, v8, s35'); A('v_and_b32 v11, 1, v1'); A('v_lshl_add_u32 v8, v11, 9, v8')
    A('v_lshl_or_b32 v11, v7, 1, v11'); A('v_xor_b32 v11, v11, v2'); A('v_add_u32 v8, %d, v8' % (4 * SLOT)); A('v_lshl_add_u32 v%d, v11, 4, v8' % vKA)
    A('v_lshl_add_u32 v8, v2, 1, v9'); A('v_mul_lo_u32 v8, v8, s35'); A('v_lshl_add_u32 v8, v4, 3, v8')
    A('v_mul_u32_u24 v11, 544, v10'); A('v_add_u32 v%d, v8, v11' % vVAe)
    A('v_mul_u32_u24 v11, 480, v10'); A('v_add_u32 v%d, v8, v11' % vVAo)
    A('s_lshl_b32 s34, s3, 12'); A('v_lshlrev_b32 v8, 9, v5'); A('v_add_u32 v8, s34, v8')
    if PM: A('s_lshl_b32 s5, s3, 10'); A('v_lshlrev_b32 v8, 9, v5'); A('v_add_u32 v8, s5, v8'); A('v_xor_b32 v11, v5, v6'); A('v_lshl_add_u32 v%d, v11, 4, v8' % vDK)
    else: A('s_lshl_b32 s5, s7, 1'); A('v_or_b32 v11, s5, v5'); A('v_xor_b32 v11, v11, v6'); A('v_lshl_add_u32 v%d, v11, 4, v8' % vDK)
    A('v_lshlrev_b32 v11, 1, v5'); A('v_xor_b32 v11, v11, v6'); A('v_lshl_add_u32 v%d, v11, 4, v8' % vDV)
    A('v_lshlrev_b32 v8, 8, v3'); A('v_lshl_add_u32 v8, v2, 6, v8'); A('v_lshl_add_u32 v8, v4, 4, v8'); A('v_add_u32 v%d, s34, v8' % vST)
    A('s_lshl_b32 s34, s3, 5'); A('v_lshrrev_b32 v8, 3, v0'); A('v_add_u32 v8, s34, v8'); A('s_movk_i32 s5, 896'); A('v_mul_lo_u32 v8, v8, s5')
    A('v_and_b32 v11, 7, v0'); A('v_lshlrev_b32 v12, 1, v2'); A('v_xor_b32 v11, v11, v12'); A('v_lshl_add_u32 v%d, v11, 4, v8' % vDWo)
    A('v_lshrrev_b32 v8, 1, v2'); A('v_mul_lo_u32 v8, v8, s35'); A('v_and_b32 v11, 1, v2'); A('v_lshl_add_u32 v11, v11, 2, v3')
    A('v_lshl_add_u32 v8, v11, 7, v8'); A('v_lshl_add_u32 v8, v4, 3, v8'); A('v_lshrrev_b32 v11, 1, v11'); A('v_add_u32 v8, %d, v8' % (WOB[0] * SLOT))
    for nt in range(4):
        A('v_xor_b32 v12, %d, v11' % nt); A('v_lshl_add_u32 v%d, v12, 5, v8' % (vOA + nt))
    for qb in range(4): A('v_mov_b32 v%d, 0' % (L0 + qb))
    A('s_mul_i32 s%d, s6, 229376' % sPO)
    A('s_lshl_b32 s34, s3, 7'); A('s_lshl_b32 s35, s6, 2'); A('s_add_u32 s34, s34, s35'); A('s_add_u32 s%d, s34, %d' % (sFLO, FLOFF))
    A('s_lshr_b32 s34, s6, 2'); A('s_lshl_b32 s34, s34, 7'); A('s_add_u32 s%d, s34, %d' % (sPLO, FLOFF))
    A('s_lshl_b32 s34, s6, 10'); A('s_lshl_b32 s35, s3, 8'); A('s_add_u32 s%d, s34, s35' % sRLO)
    A('s_mul_i32 s34, s6, 14336'); A('s_mul_i32 s35, s3, 3584'); A('s_add_u32 s%d, s34, s35' % sOUO)
    A('s_lshl_b32 s%d, s4, 4' % sCO)
    A('s_getreg_b32 s34, hwreg(HW_REG_XCC_ID, 0, 4)')
    if OPT['forceslow'] == 1: A('s_and_b32 s34, s6, 1')
    A('s_or_b32 s%d, s34, 0x80' % sREG); A('s_mul_i32 s%d, s%d, 0x01010101' % (sFULL, sREG))
    A('s_and_b32 s34, s6, 3'); A('s_lshl_b32 s34, s34, 2'); A('s_add_u32 s34, s34, s3'); A('s_lshl_b32 s34, s34, 2'); A('s_add_u32 s34, s34, s%d' % sPLO); A('s_add_u32 s34, s34, 64')
    A('v_lshl_add_u32 v8, v0, 9, s%d' % sFLO); A('v_writelane_b32 v8, s34, 1')
    A('v_mul_u32_u24 v9, %d, v0' % (OPT['ring'] - OPT['lag'] + 1))
    o.append(I('buffer_store_dword v9, v8, %s, 0 offen' % sr(SWS), tag=('Fz',)))
    return o

sPF, sPFt, vPA, vPL128, vPD = 36, 37, 254, 255, 231
pfstate = dict(n=None)
def pf_items(n):
    pre = []
    if pfstate['n'] != n:
        pre += ['v_min_u32 v%d, %d, v%d' % (vPA, (n - 1) * 128, vPL128)]
        pfstate['n'] = n
    pre += ['s_mul_i32 s%d, s3, %d' % (sPFt, n * 128), 's_add_u32 s%d, s%d, s%d' % (sPFt, sPFt, sPF), 's_add_u32 s%d, s%d, %d' % (sPF, sPF, n * 512)]
    pol = OPT['pfpol'].replace('+', ' ').replace('none', '')
    lds = [I('buffer_load_dword v%d, %s, s%d offen %s lds' % (vPA, sr(r), sPFt, pol), tag=('PF',)) for r in (SK, SV)]
    return [([I(p) for p in pre] + [I('s_mov_b32 m0, %d' % (9 * SLOT))], lds[0]), ([], lds[1])]
l2state = dict(n=None)
def l2_items(k):
    its = [i for i, c in enumerate(OPT['l2pf']) if c != '0']
    it, st = its[k // 2], k & 1
    n = 4 * int(OPT['l2pf'][it], 36)
    pre = []
    if l2state['n'] != n:
        pre += ['v_min_u32 v254, %d, v251' % ((n - 1) * 128), 'v_add_u32 v254, v254, v255']; l2state['n'] = n
    pre += ['s_mov_b32 s%d, %d' % (sPFt, (4 * it + LEAD - st) * 16384), 's_mov_b32 m0, %d' % (9 * SLOT)]
    pol = OPT['l2pol'].replace('+', ' ').replace('none', '')
    return ([I(p) for p in pre], I('buffer_load_dword v254, %s, s%d offen %s lds' % (sr(SV if st else SK), sPFt, pol), tag=('PF',)))
def pflist(x): return [int(c, 36) for c in x]

def phase1():
    o = []
    k = 0
    for f, t, n in ((dma_x, 0, 8), (dma_wq, 0, 4), (dma_wq, 1, 4), (dma_x, 1, 8), (dma_wq, 2, 4), (dma_wq, 3, 4)):
        for p in range(n):
            pre, d = f(t, p, sT0 + (k & 1)); k += 1
            o += pre + ([I('s_nop 0')] if len(pre) < 2 else []); o.append(d)
    o += setup2()
    wp = OPT['warmpol'].replace('+', ' ').replace('none', '')
    if OPT['warm']: o.append(I('s_mov_b32 m0, %d' % (9 * SLOT)))
    if OPT['warm'] & 2:
        o += [I(c) for c in ['v_bfe_u32 v251, v0, 3, 2', 'v_and_b32 v252, 7, v0', 'v_min_u32 v252, 4, v252', 'v_mul_u32_u24 v251, 896, v251', 'v_lshl_add_u32 v251, v252, 7, v251',
              's_lshl_b32 s36, s6, 2', 's_add_u32 s36, s36, s3', 's_mul_i32 s36, s36, 3584', 's_add_u32 s36, s36, 256']]
        o.append(I('buffer_load_dword v251, %s, s36 offen %s lds' % (sr(SX), wp), tag=('PF',)))
    if OPT['warm'] & 1:
        o += [I(c) for c in ['v_min_u32 v252, 19, v0', 'v_lshrrev_b32 v252, 2, v252', 'v_lshlrev_b32 v252, 13, v252', 'v_lshl_add_u32 v252, v4, 7, v252',
              's_lshl_b32 s37, s4, 2', 's_add_u32 s37, s37, s3', 's_mul_i32 s37, s37, 40960', 's_add_u32 s37, s37, %d' % (128 * 8192)]]
        o.append(I('buffer_load_dword v252, %s, s37 offen %s lds' % (sr(SWQ), wp), tag=('PF',)))
    if OPT['warm'] & 4 and OPT['woat'] < 14:
        o += [I(c) for c in ['v_bfe_u32 v253, v0, 3, 2', 'v_and_b32 v254, 7, v0', 'v_min_u32 v254, 6, v254', 'v_mul_u32_u24 v253, 896, v253', 'v_lshl_add_u32 v253, v254, 7, v253']]
    if OPT['l2pf']:
        o += [I('v_and_b32 v251, 15, v0'), I('v_lshlrev_b32 v251, 7, v251'), I('v_lshrrev_b32 v255, 4, v0'), I('v_lshlrev_b32 v255, 14, v255'),
              I('s_lshl_b32 s%d, s3, 12' % sPFt), I('v_add_u32 v255, s%d, v255' % sPFt)]
    o.append(W(vm=('Wq', 0, 3))); o.append(I('s_barrier'))
    for qb in range(4): o.append(rd_x(0, qb, 0))
    o += rd_wq(0, 0) + [rd_x(0, 0, 1), rd_x(0, 1, 1)] + rd_wq(0, 1) + [rd_x(0, 2, 1), rd_x(0, 3, 1)] + rd_wq(0, 2) + rd_wq(0, 3)
    o.append(W(lg=('fWq', 0, 0, 1)))
    stamp(o)
    for i in range(14):
        mf = []
        for n in range(16):
            ds, T = n >> 1, n & 1
            for qb in range(4):
                d = ACC(ds, qb, T)
                mf.append(I('%s %s, %s, %s, %s' % (MF, d, ar(ARING(n)), ar(XF(i >> 1, i & 1, qb)), '0' if i == 0 else d)))
        G = Gaps(mf)
        for g in range(16):
            nx = g + 4
            if nx < 16:
                for r in rd_wq(i, nx): G.put(4 * g + 3, r)
            elif i < 13:
                for r in rd_wq(i + 1, nx - 16): G.put(4 * g + 3, r)
            if g < 15:
                if g == 12 and i < 13:
                    G.put(4 * g + 2, W(lg=('fWq', i, g + 1, 1), vm=[('Wq', i + 1, 3)] + ([('X', i + 1, 7)] if i < 6 else []))); G.put(4 * g + 2, 's_barrier')
                else: G.put(4 * g + 2, W(lg=('fWq', i, g + 1, 1)))
            elif i < 13: G.put(4 * g + 2, W(lg=('fWq', i + 1, 0, 1)))
        if i < 6:
            for qb in range(4):
                for T in range(2): G.put((52, 53, 56, 57)[qb], rd_x(i + 1, qb, T))
        dm = []
        if i < 5: dm = [dma_x(i + 2, p) for p in range(8)]
        fl = fill_dmas(i)
        wq = [dma_wq(i + 4, p, sT1) for p in range(4)] if i <= 9 else []
        if wq and fl:
            while wq or fl:
                if wq: dm.append(wq.pop(0))
                if fl: dm.append(fl.pop(0))
        else: dm += wq + fl
        n = len(dm)
        grp = list(range(1, 13)) if n == 12 else [1 + (k * 12) // n for k in range(n)]
        if OPT['l2pf']:
            ks = [k for k, c in enumerate(OPT['l2at']) if int(c, 36) == i]
            cand = (14, 15) if i >= 6 else ((12, 15) if i == 5 else (15,))
            assert len(ks) <= len(cand)
            for k, g in zip(ks, cand): dm.append(l2_items(k)); grp = grp + [g]
            if OPT['l2two'] and ks:
                assert len(ks) == 1
                d = dm[-1][1]
                dm.append(([], I(d.text.split(' offen')[0] + ' offen %s lds' % OPT['l2two'].replace('+', ' ').replace('none', ''), tag=('PF',)))); grp = grp + [15]
            assert len(ks) <= 2
        if OPT['warm'] & 4 and i == OPT['woat']:
            assert len(grp) == len([g for g in grp if g < 14])
            dm.append(([I(c) for c in ['s_lshl_b32 s37, s4, 2', 's_add_u32 s37, s37, s3', 's_mul_i32 s37, s37, 3584', 's_mov_b32 m0, %d' % (9 * SLOT)]],
                       I('buffer_load_dword v253, %s, s37 offen %s lds' % (sr(SWO), wp), tag=('PF',)))); grp = grp + [15]
        put_dmas(G, dm, grp)
        if i == 5 and PM: G.place('s_mul_i32 s%d, s3, 1088' % sWK)
        if i == 5 and OPT['xr']: G.chain(['s_lshr_b32 s%d, s2, %d' % (sXR, OPT['xs']), 's_and_b32 s%d, s%d, %d' % (sXR, sXR, OPT['xr']), 's_lshl_b32 s%d, s%d, 14' % (sXR, sXR)])
        if i == 12:
            G.chain(['s_mov_b32 s%d, s48' % SDBG, 's_mov_b32 s%d, s49' % (SDBG + 1), 's_movk_i32 s%d, 256' % (SDBG + 2),
                     's_mul_i32 s%d, s4, 229376' % sT1, 's_add_u32 s%d, s46, s%d' % (SOUT, sT1), 's_addc_u32 s%d, s47, 0' % (SOUT + 1), 's_mov_b32 s%d, 229376' % (SOUT + 2)], 8)
        if i == 13:
            G.chain(['s_and_b32 s%d, s6, 3' % sFCO, 's_lshl_b32 s%d, s%d, 2' % (sFCO, sFCO), 's_add_u32 s%d, s%d, s3' % (sFCO, sFCO), 's_lshl_b32 s%d, s%d, 2' % (sFCO, sFCO),
                     's_add_u32 s%d, s%d, s%d' % (sFCO, sFCO, sPLO), 's_add_u32 s%d, s%d, 64' % (sFCO, sFCO),
                     's_lshl_b32 s%d, s3, 7' % sPCO, 's_add_u32 s%d, s%d, %d' % (sPCO, sPCO, FLOFF + 64), 's_sub_u32 s%d, s%d, s%d' % (sPCO, sPCO, sPLO)], 30)
        if i == 13:
            k0, kn, v0, vn, k1, km = [int(c) for c in OPT['skip'].split(',')]
            ch = ['s_mov_b32 s%d, %d' % (sCD, 9 * SLOT), 's_mov_b32 s%d, 0x80000' % (sCD + 1), 's_movk_i32 s%d, %d' % (sCI, SLOT), 's_movk_i32 s%d, 16384' % (sCI + 1),
                  's_add_u32 s%d, s%d, %d' % (sKBEG, sWK, 4 * SLOT), 's_add_u32 s%d, s%d, %d' % (sKEND, sWK, 9 * SLOT),
                  's_mov_b32 s%d, s%d' % (sKS, sKBEG), 's_mov_b32 s%d, %d' % (sKS + 1, 5 * 16384), 's_mov_b32 s%d, s%d' % (sVS, sWK), 's_mov_b32 s%d, %d' % (sVS + 1, 4 * 16384),
                  's_mul_i32 s%d, s2, 79' % sKD, 's_and_b32 s%d, s%d, 0xff' % (sKD, sKD)]
            def pos(d, base, n): return ['s_mul_i32 s%d, s%d, %d' % (d, sKD, n), 's_lshr_b32 s%d, s%d, 8' % (d, d), 's_add_u32 s%d, s%d, %d' % (d, d, base)]
            ch += ['s_mov_b32 s%d, 0' % sMK, 's_mov_b32 s%d, 1' % (sMK + 1)]
            ch += pos(sKE, k0, kn) + ['s_bitset1_b32 s%d, s%d' % (sMK, sKE)] + pos(sKE, k1, km) + ['s_bitset1_b32 s%d, s%d' % (sMK, sKE)] + pos(sKE, v0, vn) + ['s_bitset1_b32 s%d, s%d' % (sMK + 1, sKE)]
            assert k0 + kn <= k1 and k1 + km <= 28 and 1 <= v0 and v0 + vn <= 28
            G.chain(ch, 0)
        o += G.flat()
    stamp(o)
    o.append(I('s_nop 3'))
    def conv(src, dst):
        r = []
        for k in range(4): r.append(I('v_pk_mul_f32 %s, %s, %s' % (vr(src + 2 * k, 2), vr(src + 2 * k, 2), sr(sSC, 2))))
        for k in range(4): r.append(I('v_cvt_pk_bf16_f32 v%d, v%d, v%d' % (dst + k, src + 2 * k, src + 2 * k + 1)))
        return r
    fl = fill_dmas(14)
    for f in range(28):
        o += conv(8 * f, 4 * f)
        if f % 6 == 2 and fl:
            pre, d = fl.pop(0); o += pre + [I('s_nop 0'), d]
    assert not fl
    o.append(W(vm=('K', 0, 3))); o.append(I('s_barrier'))
    for n in range(4): o += rd_k(0, n)
    for k in range(32): o.append(I('v_accvgpr_read_b32 v%d, a%d' % (128 + k, k)))
    for qb in range(4): o += conv(128 + 8 * qb, Q(7, qb))
    o.append(W(lg=('fK', 0, CH & 1, 1)))
    return o

def softmax_items(buf, qb):
    b = S(buf, qb); lt = LT0 + qb
    it = []
    for k in range(8):
        it.append(('e', k, I('v_exp_f32 v%d, v%d' % (b + k, b + k))))
        if k == 1: it.append(('v', k, I('v_add_f32 v%d, v%d, v%d' % (lt, b, b + 1))))
        elif k > 1: it.append(('v', k, I('v_add_f32 v%d, v%d, v%d' % (lt, lt, b + k))))
        if k & 1: it.append(('v', k, I('v_cvt_pk_bf16_f32 v%d, v%d, v%d' % (b + k // 2, b + k - 1, b + k))))
    return it

def place_softmax(G, buf, qbs, expgaps):
    eg = list(expgaps); pend = []
    for qb in qbs:
        for kind, k, ins in softmax_items(buf, qb):
            if kind == 'e':
                gp = eg.pop(0); G.put(gp, ins); last = gp
            else: pend.append((ins, last + 1))
    return pend

def place_chain(G, pend):
    cur = 0
    for ins, lo in pend: cur = G.place(ins, max(cur, lo))
    return cur

stubs = []
def check_items(t):
    lab = 'RS_%d' % (t % 4 if 4 * PEEL <= t < 28 else 100 + t)
    if lab not in [s[0] for s in stubs]: stubs.append((lab, t & 1))
    return [I('v_max_f32 v%d, v%d, v%d' % (vTM, vTM, LT0 + 3)), I('v_cmp_lt_f32 vcc, s%d, v%d' % (sTHR, vTM)),
            I('s_cbranch_vccnz %s' % lab), I('%s_RET:' % lab)]

def qk_mfmas(t1, first):
    mf = []
    for n, qb in ([(2 * G + k, qb) for G in range(8) for qb in range(4) for k in range(2)] if CH & 1 else [(n, qb) for n in range(16) for qb in range(4)]):
        T, ds = n >> 3, n & 7
        d = vr(S(t1 & 1, qb, T))
        c = d if ds else ('0' if first else vr(NEGM(qb)))
        mf.append(I('%s %s, %s, %s, %s' % (MF, d, vr(RING(n)), vr(Q(ds, qb)), c)))
    return mf
def qk_reads(G, t1, nxt, nxt_tag):
    for g in range(8):
        if OPT['w2'] and g: G.put(8 * g, W(lg=('fK', t1, 2 * g + 1, 1)))
        rs = [rd_k(t1, nx) if nx < 16 else nxt(nx - 16) for nx in (2 * g + 4, 2 * g + 5)]
        for r in rs[0]: G.put(8 * g + 6, r)
        G.put(8 * g + 7, W(lg=('fK', t1, 2 * g + 3 - OPT['w2'], 1) if g < 7 else nxt_tag))
        for k, r in enumerate(rs[1]): G.put(8 * g + 7 + (k if g < 7 else 0), r, force=True)
def pv_mfmas(t):
    mf = []
    for db in range(16):
        for qb in (range(3, -1, -1) if CH & 2 and db & 1 else range(4)):
            d = ar(O(db, qb))
            mf.append(I('%s %s, %s, %s, %s' % (MF, d, vr(RING(db)), vr(S(t & 1, qb)), d if t else '0')))
    return mf

def prologue():
    o = []
    G = Gaps(qk_mfmas(0, True))
    if CH & 1:
        G.put(50, W(vm=[('K', 1, 3), ('V', 0, 3)])); G.put(50, 's_barrier')
        qk_reads(G, 0, lambda n: rd_k(1, n), ('fK', 1, 1, 1))
    for g in range(0 if CH & 1 else 16):
        nx = g + 4
        for r in (rd_k(0, nx) if nx < 16 else rd_k(1, nx - 16)): G.put(4 * g + 3, r)
        if g == 12:
            G.put(4 * g + 2, W(lg=('fK', 0, g + 1, 1), vm=[('K', 1, 3), ('V', 0, 3)])); G.put(4 * g + 2, 's_barrier')
        elif g < 15: G.put(4 * g + 2, W(lg=('fK', 0, g + 1, 1)))
        else: G.put(4 * g + 2, W(lg=('fK', 1, 0, 1)))
    G.chain(['s_mov_b32 s%d, %d' % (sKO, LEAD * 16384), 's_mov_b32 s%d, %d' % (sVO, ((4 * PEEL + 1) % 5) * SLOT)])
    place_groups(G, kswitch(1), 48, 53)
    dm = fill_dmas(15)
    put_dmas(G, dm, [1 + (k * 14) // len(dm) for k in range(len(dm))])
    if OPT['prel']: o.insert(0, I('buffer_load_dword v254, off, %s, s%d sc1' % (sr(SDBG), sCO), tag=('Prel',)))
    o += G.flat()
    A = lambda s: o.append(I(s))
    if OPT['prel'] == 2: o.append(W(vm=('Prel',)))
    A('v_mbcnt_lo_u32_b32 v252, -1, 0'); A('v_mov_b32 v253, s%d' % sREG)
    A('v_or_b32 v252, s3, v252'); A('v_lshl_add_u32 v252, v252, 8, s6')
    if OPT['forceslow'] == 2:
        A('s_and_b32 s%d, s4, 1' % sT0); A('s_lshl_b32 s%d, s%d, 8' % (sT0, sT0)); A('s_cmp_eq_u32 s6, 0'); A('s_cselect_b32 s%d, s%d, 0' % (sT0, sT0)); A('v_add_u32 v252, s%d, v252' % sT0)
    o.append(I('buffer_store_byte v253, v252, %s, s%d offen' % (sr(SDBG), sCO), tag=('Reg',)))
    A('s_nop 1')
    tm = [244, 245, 246, 247]; tc = [248, 249, 250, 251]
    for st in range(4):
        for qb in range(4):
            b = S(0, qb)
            if st == 0: A('v_max3_f32 v%d, v%d, v%d, v%d' % (tm[qb], b, b + 1, b + 2))
            elif st < 3: A('v_max3_f32 v%d, v%d, v%d, v%d' % (tm[qb], tm[qb], b + 2 * st + 1, b + 2 * st + 2))
            else: A('v_max_f32 v%d, v%d, v%d' % (tm[qb], tm[qb], b + 7))
    for sw in ('v_permlane32_swap_b32', 'v_permlane16_swap_b32'):
        for qb in range(4): A('v_mov_b32 v%d, v%d' % (tc[qb], tm[qb]))
        for qb in range(4): A('%s v%d, v%d' % (sw, tm[qb], tc[qb]))
        for qb in range(4): A('v_max_f32 v%d, v%d, v%d' % (tm[qb], tm[qb], tc[qb]))
    for qb in range(4):
        for r in range(4): A('v_sub_f32 v%d, 0, v%d' % (NEGM(qb) + r, tm[qb]))
    for qb in range(4):
        for k in range(8): A('v_sub_f32 v%d, v%d, v%d' % (S(0, qb) + k, S(0, qb) + k, tm[qb]))
    i0 = softmax_items(0, 0); i1 = softmax_items(0, 1)
    for x, y in zip(i0, i1): o.append(x[2]); o.append(y[2])
    return o

def padput(G, n, t, half):
    if OPT['padp']:
        prof = [int(c, 36) for c in OPT['padp']]
        mx = max(prof)
        for k in range(half, mx, 2):
            gp = 6 + 10 * (k // 2)
            if t >= 28:
                if prof[7] > k: G.put(gp, 's_nop 15', force=True)
                continue
            N = sum(1 for p in prof[:7] if p > k)
            if N == 0: continue
            lab = 'PAD_%d_%d' % (t % 4, k)
            if N < 7:
                G.put(gp, 's_cmp_lt_u32 s%d, %d' % (sLC, N), force=True); G.put(gp, 's_cbranch_scc0 %s' % lab, force=True)
            G.put(gp, 's_nop 15', force=True)
            if N < 7: G.put(gp, I(lab + ':'), force=True)
        return
    cond = OPT['padit'] or OPT['padfrom']
    if cond and t >= 28:
        if OPT['padit']: return
        cond = False
    for k in range(n):
        gp = 10 + 12 * k
        if cond:
            lab = 'PAD_%d_%d_%d' % (t % 4, half, k)
            G.put(gp, ('s_cmp_lt_u32 s%d, %d' % (sLC, OPT['padit'])) if OPT['padit'] else ('s_cmp_ge_u32 s%d, %d' % (sLC, OPT['padfrom'])), force=True)
            G.put(gp, 's_cbranch_scc0 %s' % lab, force=True)
        G.put(gp, 's_nop 15', force=True)
        if cond: G.put(gp, I(lab + ':'), force=True)

def step(t):
    o = []
    cur = t & 1
    max3 = I('v_max3_f32 v%d, v%d, v%d, v%d' % (vTM, LT0, LT0 + 1, LT0 + 2))
    ladd = [I('v_add_f32 v%d, v%d, v%d' % (L0 + q, L0 + q, LT0 + q)) for q in range(4)]
    if t < 28: dK = [dma_dyn('K', t + LEAD, p) for p in range(4)]; dV = [dma_dyn('V', t + LEAD - 1, p) for p in range(4)]
    else:
        dK = [dma_kv_imm('K', t + LEAD, p, sT0) if t + LEAD < 32 else dma_wo(*WOS[t, 0], p, sT0) for p in range(4)]
        dV = [dma_kv_imm('V', t + LEAD - 1, p, sT0) if t + LEAD < 33 else dma_wo(*WOS[t, 1], p, sT0) for p in range(4)]
    if t < 31:
        G = Gaps(qk_mfmas(t + 1, False))
        eg = [0, 4, 5, 8, 12, 13] + [4 * g for g in range(4, 14)]
        if CH & 1:
            qk_reads(G, t + 1, lambda n: rd_v(t, n), ('fV', t, 0, 1))
            eg = [8 * g + k for g in range(7) for k in ((1, 3) if OPT['w2'] else (0, 2, 4) if g < 2 else (0, 3))][:16]
            if OPT['w2']: eg = sorted(eg + [5, 13])
        for g in range(0 if CH & 1 else 16):
            nx = g + 4
            for r in (rd_k(t + 1, nx) if nx < 16 else rd_v(t, nx - 16)): G.put(4 * g + 3, r)
            G.put(4 * g + 2, W(lg=('fK', t + 1, g + 1, 1) if g < 15 else ('fV', t, 0, 1)))
        pend = place_softmax(G, cur, (2, 3), eg)
        put_dmas(G, dK, {4: [5, 7, 9, 11], 3: [5, 8, 11], 2: [6, 10], 1: [8], 0: []}[len(dK)])
        if t == 28 and LEAD == 4:
            cz = G.chain(['v_mbcnt_lo_u32_b32 v%d, -1, 0' % vTM, 'v_and_b32 v%d, 3, v%d' % (vTM, vTM), 'v_lshlrev_b32 v%d, 2, v%d' % (vTM, vTM)], 1, 20)
            softplace(G, I('buffer_load_dword v%d, v%d, %s, s%d offen sc1' % (vCAS, vTM, sr(SDBG), sCO), tag=('Chk',)), cz + 1, 20)
        idx = [k for k, (ins, lo) in enumerate(pend) if ins.mn == 'v_add_f32' and ins.ops[0] == 'v%d' % (LT0 + 2)][-1]
        pend.insert(idx + 1, (max3, pend[idx][1]))
        cg = place_chain(G, pend)
        ck = check_items(t)
        cg = G.place(ck[0], cg); cg = G.place(ck[1], cg); cg = G.place(ck[2], cg + 1); G.put(cg, ck[3])
        assert cg >= 40
        G.chain(ladd, cg)
        if t < 28:
            cz = place_groups(G, dyn_next('K', t % 4), 0, 19)
            place_groups(G, dyn_next('V', t % 4) + ([['s_lshr_b64 %s, %s, 4' % (sr(sMK, 2), sr(sMK, 2))]] if t % 4 == 3 else []), cz + 1, 63)
        if t < 30: place_groups(G, kswitch(t + 2), 48, 63)
        place_groups(G, [[adv(sKO)[0].text]], cg + 1, 63)
        padput(G, (OPT['pad'] + 1) // 2, t, 0)
        o += G.flat()
    else:
        for pre, d in dK: o += pre; o.append(I('s_nop 0')); o.append(d)
        i0 = softmax_items(cur, 2); i1 = softmax_items(cur, 3)
        for x, y in zip(i0, i1): o.append(x[2]); o.append(y[2])
        o.append(max3); o += check_items(t); o += ladd
    G = Gaps(pv_mfmas(t))
    if t < 30: nxt_rd = lambda n: rd_k(t + 2, n); nxt_tag = ('fK', t + 2, CH & 1, 1); vmw = [('K', t + 2, 3), ('V', t + 1, 3)] + ([('Chk',)] if t == 29 else [])
    elif t == 30: nxt_rd = lambda n: rd_v(31, n); nxt_tag = ('fV', 31, 0, 1); vmw = [('V', 31, 3)]
    else: nxt_rd = lambda n: rd_wo(0, n); nxt_tag = ('fWo', 0, 0, 1); vmw = [('Wo', 0, 1, 3)]
    for g in range(16):
        nx = g + 4
        if g == 15 and CH & 1 and t < 30: G.put(63, W(lg=nxt_tag))
        for r in (rd_v(t, nx) if nx < 16 else nxt_rd(nx - 16)): G.put(4 * g + 3, r)
        if g == 15 and CH & 1 and t < 30: pass
        elif g == 12:
            G.put(4 * g + 2, W(lg=('fV', t, g + 1, 1), vm=vmw)); G.put(4 * g + 2, 's_barrier')
        else: G.put(4 * g + 2, W(lg=('fV', t, g + 1, 1) if g < 15 else nxt_tag))
    pend = []
    if t < 31: pend = place_softmax(G, cur ^ 1, (0, 1), [4 * g for g in range(16)])
    grp = {4: [1, 3, 5, 7], 3: [1, 4, 7], 2: [2, 6], 1: [4], 0: []}[len(dV)]
    if OPT['pfl'] and t < 28:
        if t == 0 and pfstate['n'] != OPT['pfl']: raise SystemExit('last pfq must equal pfl')
        dV = dV + pf_items(OPT['pfl']); grp = grp + [10, 11]
    if t >= 28:
        for k, r in enumerate(pt_at(2 * (t - 28) + 1)): dV = dV + [pt_items(r)]; grp = grp + [(11 if t < 31 else 14) + k]
    put_dmas(G, dV, grp)
    place_chain(G, pend)
    if t < 31:
        pass
    if OPT['warm'] & 4 and OPT['woat'] == 100 + t:
        cz = 0
        for c in ['v_mbcnt_lo_u32_b32 v244, -1, 0', 's_lshl_b32 s37, s4, 2', 'v_bfe_u32 v%d, v244, 3, 2' % vTM, 's_add_u32 s37, s37, s3', 'v_and_b32 v244, 7, v244', 's_mul_i32 s37, s37, 3584',
                  'v_min_u32 v244, 6, v244', 'v_mul_u32_u24 v%d, 896, v%d' % (vTM, vTM), 'v_lshl_add_u32 v%d, v244, 7, v%d' % (vTM, vTM)]: cz = softplace(G, c, cz, cz + 4)
        softplace(G, I('buffer_load_dword v244, v%d, %s, s37 offen %s' % (vTM, sr(SWO), OPT['warmpol'].replace('+', ' ').replace('none', '')), tag=('PF',)), cz + 1, cz + 8)
    padput(G, OPT['pad'] // 2, t, 1)
    if t == 28 and LEAD < 4:
        cz = 34
        for c in ['v_mbcnt_lo_u32_b32 v%d, -1, 0' % vTM, 'v_and_b32 v%d, 3, v%d' % (vTM, vTM), 'v_lshlrev_b32 v%d, 2, v%d' % (vTM, vTM)]: cz = softplace(G, c, cz, cz + 3)
        softplace(G, I('buffer_load_dword v%d, v%d, %s, s%d offen sc1' % (vCAS, vTM, sr(SDBG), sCO), tag=('Chk',)), cz + 1, cz + 6)
    if OPT['ptl'] and 4 * PEEL <= t < 28:
        cz = softplace(G, I('buffer_load_dword v245, v246, %s, s36 offen %s' % (sr(SWS), OPT['ptpol'].replace('+', ' ')), tag=('PT', t)), 37, 45)
        softplace(G, 's_add_u32 s36, s36, %d' % (128 * OPT['ptl']), cz + 1, cz + 6)
    if OPT['ptl'] and t == 4 * PEEL - 1:
        cz = 30
        for c in ['v_mbcnt_lo_u32_b32 v246, -1, 0', 's_mul_i32 s36, s3, %d' % (OPT['ring'] * 4096), 'v_min_u32 v246, %d, v246' % (OPT['ptl'] - 1),
                  's_add_u32 s36, s36, s%d' % sPO, 'v_lshlrev_b32 v246, 7, v246']: cz = softplace(G, c, cz, cz + 4)
    if t == 30 and OPT['ptouch'] and not OPT['ptl'] and not OPT['ptat']:
        sh = OPT['ptouch']; R = OPT['ring']
        cz = 32
        for c in ['v_mbcnt_lo_u32_b32 v%d, -1, 0' % vTM, 's_mul_i32 s%d, s3, %d' % (sVO, R * 4096), 'v_mbcnt_hi_u32_b32 v%d, -1, v%d' % (vTM, vTM),
                  's_add_u32 s%d, s%d, s%d' % (sVO, sVO, sPO), 'v_lshlrev_b32 v%d, %d, v%d' % (vTM, sh, vTM)]: cz = softplace(G, c, cz, cz + 3)
        n = -(-R * 4096 // (64 << sh))
        for k in range(n):
            cz = softplace(G, I('buffer_load_dword v%d, v%d, %s, s%d offen' % (vFV, vTM, sr(SWS), sVO), tag=('PT', k)), cz + 1, min(63, cz + 4))
            if k < n - 1: cz = softplace(G, 's_add_u32 s%d, s%d, %d' % (sVO, sVO, 64 << sh), cz + 1, cz + 4) + 4
    if t == 29:
        ch = ['v_cmp_ne_u32 vcc, s%d, v%d' % (sFULL, vCAS), 'v_mbcnt_lo_u32_b32 v%d, -1, 0' % vTM, 's_or_b32 s%d, s6, s3' % sVO, 'v_or_b32 v%d, s%d, v%d' % (vTM, sVO, vTM),
              's_cmp_eq_u64 vcc, 0', 's_cselect_b32 s%d, 32, 64' % sVO, 'v_lshlrev_b32 v%d, 8, v%d' % (vTM, vTM), 's_or_b32 s%d, s%d, s%d' % (sVO, sVO, sREG), 'v_mov_b32 v%d, s%d' % (vCAS, sVO),
              I('buffer_store_byte v%d, v%d, %s, s%d offen' % (vCAS, vTM, sr(SDBG), sCO), tag=('Dec',))]
        cz = 52
        for k, c in enumerate(ch): cz = softplace(G, c, min(63, cz + (k in (4, 9))), min(63, cz + 2))
    if 4 * PEEL <= t < 28 and t % 4 == 3:
        gp = G.place('s_add_u32 s%d, s%d, 1' % (sLC, sLC), 44); G.place('s_cmp_lt_u32 s%d, 7' % sLC, max(gp + 1, 52))
        G.put(63, 's_cbranch_scc1 L_LOOP', force=True)
    if t == 31:
        ch = []
        for sw in ('v_permlane32_swap_b32', 'v_permlane16_swap_b32'):
            ch += ['v_mov_b32 v%d, v%d' % (LT0 + q, L0 + q) for q in range(4)]
            ch += ['%s v%d, v%d' % (sw, L0 + q, LT0 + q) for q in range(4)]
            ch += ['v_add_f32 v%d, v%d, v%d' % (L0 + q, L0 + q, LT0 + q) for q in range(4)]
        ch += ['v_rcp_f32 v%d, v%d' % (L0 + q, L0 + q) for q in range(4)]
        G.chain(ch, 0)
        ch = ['v_mbcnt_lo_u32_b32 v255, -1, 0', 'v_mbcnt_hi_u32_b32 v255, -1, v255', 's_mov_b32 s%d, 229376' % sVO,
              'v_and_b32 v243, 15, v255', 'v_lshrrev_b32 v254, 4, v255',
              'v_lshl_add_u32 v%d, v255, 9, s%d' % (vFL, sFLO), 'v_lshl_add_u32 v%d, v243, 4, s%d' % (vRL, sRLO),
              'v_writelane_b32 v%d, s%d, 1' % (vFL, sFCO), 'v_mad_u32_u24 v%d, v254, s%d, v%d' % (vRL, sVO, vRL)]
        ch += ['v_add_u32 v%d, %d, v%d' % (vRL + j, j * 917504, vRL) for j in (1, 2, 3)]
        ch += ['v_and_b32 v255, 1, v254', 'v_mul_lo_u32 v255, v255, s%d' % sPCO, 'v_lshl_add_u32 v%d, v243, 2, s%d' % (vPL, sPLO), 'v_add_u32 v%d, v255, v%d' % (vPL, vPL)]
        ch += ['v_lshrrev_b32 v255, 1, v254', 'v_lshlrev_b32 v254, 5, v254', 'v_lshl_add_u32 v254, v255, 20, v254', 'v_add_u32 v254, s%d, v254' % sOUO,
               'v_lshrrev_b32 v255, 2, v243', 'v_lshl_add_u32 v254, v255, 3, v254', 'v_and_b32 v255, 3, v243', 'v_mul_u32_u24 v255, 896, v255', 'v_add_u32 v%d, v255, v254' % vOUT]
        ch += ['v_and_b32 v255, 1, v243', 'v_lshlrev_b32 v255, 4, v255', 'v_lshlrev_b32 v255, v255, v%d' % vSEL, 'v_lshrrev_b32 v%d, 1, v243' % (vSEL + 3), 'v_lshlrev_b32 v%d, v%d, 1' % (vSEL + 3, vSEL + 3)]
        ch.insert(0, 'v_mov_b32 v%d, 0x3f80' % vSEL)
        for r in range(4): ch += ['v_bfe_i32 v%d, v%d, %d, 1' % (vSEL + r, vSEL + 3, r), 'v_and_b32 v%d, v255, v%d' % (vSEL + r, vSEL + r)]
        ch += ['v_lshl_add_u32 v%d, v243, 2, s%d' % (vPL2, sPLO), 'v_mul_i32_i24 v%d, %d, v243' % (vB, OPT['ring'] - 2 * OPT['lag'] + 2)]
        G.cap = 3
        G.chain(ch, 0)
    o += G.flat()
    return o

def pt_items(r):
    pre = ['v_mbcnt_lo_u32_b32 v%d, -1, 0' % vPT, 'v_min_u32 v%d, 31, v%d' % (vPT, vPT), 'v_lshlrev_b32 v%d, 7, v%d' % (vPT, vPT)]
    if r == 0: pre += ['s_lshl_b32 s36, s3, 12', 's_add_u32 s36, s36, s%d' % sPO]
    else: pre += ['s_add_u32 s36, s36, 16384']
    return [I(c) for c in pre] + [I('s_mov_b32 m0, %d' % (9 * SLOT))], I('buffer_load_dword v%d, %s, s36 offen %s lds' % (vPT, sr(SWS), OPT['ptpol'].replace('+', ' ')), tag=('PF',))
vPT = 231
def pt_at(code): return [r for r, c in enumerate(OPT['ptat']) if int(c, 36) == code]
def oconv():
    o = []
    A = lambda s: o.append(I(s))
    k = 0
    for ds in range(8):
        for qb in range(4):
            tmp = 128 + 8 * (k % 4); k += 1
            if k in (2, 12, 22) and (k - 2) // 10 < len(pt_at(8)):
                pre, d = pt_items(pt_at(8)[(k - 2) // 10]); o += pre + [I('s_nop 0'), d]
            for T in range(2):
                for r in range(4): A('v_accvgpr_read_b32 v%d, a%d' % (tmp + 4 * T + r, O(2 * ds + T, qb) + r))
            for j in range(4): A('v_cvt_pk_bf16_f32 v%d, v%d, v%d' % (Q(ds, qb) + j, tmp + 2 * j, tmp + 2 * j + 1))
    return o

def ringadv(reg, hc, R):
    return 's_add_u32 s%d, s%d, 16384' % (reg, reg) if (hc + 1) % R else 's_sub_u32 s%d, s%d, %d' % (reg, reg, (R - 1) * 16384)
def epi_items(hc, pol, R=14):
    buf = hc & 1; it = []
    if R != 14 and hc < R and OPT['st0pol']: pol = OPT['st0pol'].replace('+', ' ')
    if R != 14 and hc >= 14 - OPT['stlast']: pol = OPT['stpol2'].replace('+', ' ')
    for qb in range(4):
        b = S(buf, qb)
        for j in range(4):
            it.append(I('v_mul_f32 v%d, v%d, v%d' % (b + 2 * j, b + 2 * j, L0 + qb)))
            it.append(I('v_mul_f32 v%d, v%d, v%d' % (b + 2 * j + 1, b + 2 * j + 1, L0 + qb)))
            it.append(I('v_cvt_pk_bf16_f32 v%d, v%d, v%d' % (b + j, b + 2 * j, b + 2 * j + 1)))
        it.append(I('buffer_store_dwordx4 %s, v%d, %s, s%d offen offset:%d %s' % (vr(b), vST, sr(SWS), sPO, qb * 1024, pol), tag=('St', hc, qb)))
    it.append(I(ringadv(sPO, hc, R)))
    return it

def rd_wo8(hc, n):
    ds, T = n >> 1, n & 1
    nt = 2 * (hc & 1) + T
    r = RING8(n)
    return [I('ds_read_b64_tr_b16 %s, v%d offset:%d' % (vr(r + 2 * rho, 2), vOA + nt, (4 * ds + 2 * rho) * 1088), tag=('fWo', hc, n, rho)) for rho in (0, 1)]
def red_loads(hc, rb): return [I('buffer_load_dwordx4 %s, v%d, %s, s%d offen %s' % (ar(rb + 4 * j), vRL + j, sr(SWS), sCO, 'sc1' if hc == 99 else OPT['rlpol'].replace('+', ' ').replace('none', '')), tag=('RL', hc, j)) for j in range(4)]
def red_mfmas(rb, d=vRD): return [I('%s %s, %s, %s, %s' % (MF, vr(d), vr(vSEL), ar(rb + 4 * j), vr(d) if j else '0')) for j in range(4)]
def red_out(hc, d=vRD, cv=vCV):
    return [I('v_cvt_pk_bf16_f32 v%d, v%d, v%d' % (cv, d, d + 1)), I('v_cvt_pk_bf16_f32 v%d, v%d, v%d' % (cv + 1, d + 2, d + 3)),
            I('buffer_store_dwordx2 %s, v%d, %s, 0 offen offset:%d %s' % (vr(cv, 2), vOUT, sr(SOUT), hc * 64, OPT['outpol'].replace('+', ' ')), tag=('Out', hc))]
def poll(tag, a=vPL): return I('buffer_load_dword v%d, v%d, %s, 0 offen sc1' % (vPR, a, sr(SWS)), tag=tag)
def flag(val):
    R, LAG = OPT['ring'], OPT['lag']
    if val + 1 - LAG >= 0: r = [I('v_add_u32 v%d, %d, v%d' % (vFV, val, vB))]
    else: r = [I('v_mov_b32 v%d, %d' % (vFV, R - LAG + 1)), I('v_writelane_b32 v%d, %d, 0' % (vFV, val))]
    return r + [I('buffer_store_dword v%d, v%d, %s, 0 offen' % (vFV, vFL, sr(SWS)), tag=('Fl', val))]
spins = []
def spin_stub(lab, thr, a):
    o = []
    A = lambda s: o.append(I(s))
    A('%s:' % lab); A('s_movk_i32 s%d, 0x7fff' % sT1)
    A('%s_L:' % lab); o.append(poll(None, a)); A('s_waitcnt vmcnt(0)'); A('v_cmp_gt_u32 vcc, %d, v%d' % (thr, vPR))
    A('s_sub_u32 s%d, s%d, 1' % (sT1, sT1)); A('s_cbranch_scc1 %s_RET' % lab); A('s_cbranch_vccnz %s_L' % lab); A('s_branch %s_RET' % lab)
    return o

def softplace(G, ins, lo, hi=None):
    if isinstance(ins, str): ins = I(ins)
    hi = G.n - 1 if hi is None else hi
    for gp in range(lo, hi + 1):
        if G.fits(gp, ins): return G.put(gp, ins)
    for extra in (1, 2, 3, 4):
        for gp in range(lo, hi + 1):
            if G.used[gp] + ins.cost <= G.cap + extra and not (ins.kind == 'ds' and any(x.kind == 'valu' for x in G.g[gp])):
                return G.put(gp, ins, force=True)
    raise AssertionError(('no room', ins.text))

def phase3(fast):
    o = []
    LAG = OPT['lag']
    pol = OPT['stpol'].replace('+', ' ') if fast else 'sc1'
    R = OPT['ring'] if fast else 14
    for hc in range(14):
        p = hc
        mf = []
        consume = fast and p - LAG - 1 >= 0
        red = red_mfmas(0) if consume else []
        rpos = {40: 0, 42: 1, 44: 2, 46: 3}
        gi = {}
        for n in range(16):
            ds, T = n >> 1, n & 1
            for qb in range(4):
                d = vr(S(hc & 1, qb, T))
                k = 4 * n + qb
                if red and k in rpos: mf.append(red[rpos[k]])
                gi[k] = len(mf)
                mf.append(I('%s %s, %s, %s, %s' % (MF, d, vr(RING8(n)), vr(Q(ds, qb)), d if ds else '0')))
        G = Gaps(mf)
        ch = hc >> 1
        dopoll = fast and p >= LAG
        if consume:
            rl = red_loads(p - LAG - 1, 0)
            G.put(0, rl[2]); G.put(5, rl[3]); G.put(6, ringadv(sCO, p - LAG - 1, R))
        if dopoll: G.put(OPT['ppos'], poll(('Poll', p)))
        for g in range(16):
            nx = g + 7
            if nx < 16 or hc < 13:
                for r in (rd_wo8(hc, nx) if nx < 16 else rd_wo8(hc + 1, nx - 16)): G.put(gi[4 * g + 3], r)
            if g & 1:
                if g < 15: lg = ('fWo', hc, g + 2 if g < 14 else 15, 1)
                else: lg = ('fWo', hc + 1, 1, 1) if hc < 13 else None
                vm = []
                if g == 9:
                    if (hc & 1) and hc < 13: vm.append(('Wo', ch + 1, 1, 3))
                    if dopoll: vm.append(('Poll', p))
                    elif fast and p >= 2: vm.append(('St', p - 2, 3))
                if lg or vm: G.put(gi[4 * g + 2], W(lg=lg, vm=vm or None))
                if g == 9 and (hc & 1) and hc < 13: G.put(gi[4 * g + 2], 's_barrier')
        dm = []
        if hc in WOS: dm = [dma_wo(*WOS[hc], q, sT0) for q in range(4)]
        grp = ([4, 5, 7, 8] if fast else [1, 2, 3, 4])[:len(dm)]
        if fast:
            for r in pt_at(9 + hc): dm = [pt_items(r)] + dm; grp = [2] + grp
        put_dmas(G, dm, grp)
        after = gi[38] + 1
        stlo = 0
        if fast and p >= 2:
            f = flag(p - 1)
            cg = G.chain(f[:-1], 30); softplace(G, f[-1], max(after, cg + 1))
        if dopoll:
            lab = 'SP_%d' % p
            spins.append((lab, p - LAG + 1, vPL))
            cg = G.place('v_cmp_gt_u32 vcc, %d, v%d' % (p - LAG + 1, vPR), after)
            cg = G.place('s_cbranch_vccnz %s' % lab, cg + 1); G.put(cg, I('%s_RET:' % lab))
            stlo = cg + 1
            rl = red_loads(p - LAG, 0)
            softplace(G, rl[0], gi[53]); softplace(G, rl[1], gi[61])
        og = 0
        if fast and p - LAG - 2 >= 0: og = softplace(G, red_out(p - LAG - 2)[2], gi[44])
        if consume:
            ro = red_out(p - LAG - 1)
            cg = softplace(G, ro[0], max(gi[46] + 6, og + 1)); cg = softplace(G, ro[1], cg)
        if hc < 12:
            delta = (WOB[(ch + 1) % 4] - WOB[ch % 4]) * SLOT
            pair = (0, 1) if hc % 2 == 0 else (2, 3)
            for nt in pair:
                softplace(G, ('v_add_u32 v%d, %d, v%d' % (vOA + nt, delta, vOA + nt)) if delta > 0 else ('v_subrev_u32 v%d, %d, v%d' % (vOA + nt, -delta, vOA + nt)), gi[36])
        if hc > 0:
            cur = 0; last = stlo
            ep = epi_items(hc - 1, pol, R)
            if stlo:
                pre = {}
                for ins, tg in zip([x for x in ep if x.kind == 'vst'][:3], (stlo, gi[46], gi[50])): last = pre[ins.tag] = softplace(G, ins, tg)
            for ins in ep:
                if ins.kind == 'vst':
                    if stlo and ins.tag in pre: assert cur < pre[ins.tag], (hc, ins.tag, cur, pre)
                    else: last = softplace(G, ins, max(cur + 1, last))
                elif ins.kind == 'salu': softplace(G, ins, last)
                else: cur = softplace(G, ins, cur)
        o += G.flat()
    if not fast:
        o.append(I('s_nop 7'))
        o += epi_items(13, pol, R)
    return o

def fast_tail():
    o = []
    A = lambda s: o.append(I(s))
    LAG = OPT['lag']; R = OPT['ring']
    h0 = 13 - LAG
    ep = epi_items(13, OPT['stpol'].replace('+', ' '), R)
    rl = red_loads(h0, 0)
    o += rl[2:]; A(ringadv(sCO, h0, R))
    o.append(poll(('Poll', 14)))
    f = flag(13); o += f[:-1]
    A('s_nop 2')
    o += ep[:12]
    o.append(W(vm=('Poll', 14))); o.append(f[-1])
    spins.append(('SP_14', 15 - LAG, vPL))
    A('v_cmp_gt_u32 vcc, %d, v%d' % (15 - LAG, vPR)); o += ep[13:15]; A('s_cbranch_vccnz SP_14'); A('SP_14_RET:')
    o.append(ep[12]); o += ep[15:-1]
    o += red_loads(h0 + 1, 16); A(ringadv(sCO, h0 + 1, R))
    o.append(red_out(h0 - 1)[2])
    o += red_mfmas(0)
    A('v_mov_b32 v%d, 14' % vFV)
    o.append(W(vm=('St', 13, 3)))
    o.append(I('buffer_store_dword v%d, v%d, %s, 0 offen' % (vFV, vFL, sr(SWS)), tag=('Fl', 14)))
    o.append(poll(('Poll', 15), vPL2))
    o.append(W(vm=('RL', h0 + 1, 3)))
    o += red_mfmas(16, 128)
    ro0 = red_out(h0); o += ro0[:2]
    o.append(W(vm=('Poll', 15)))
    spins.append(('SP_15', 14, vPL2))
    A('v_cmp_gt_u32 vcc, 14, v%d' % vPR); A('s_nop 0'); A('s_cbranch_vccnz SP_15'); A('SP_15_RET:')
    rest = list(range(h0 + 2, 14))
    for k, hc in enumerate(rest):
        o += red_loads(hc, 16 * k + 32); A(ringadv(sCO, hc, R))
    o.append(ro0[2])
    o += red_out(h0 + 1, 128, 132)
    mm = [red_mfmas(16 * k + 32, 136 + 8 * k) for k in range(len(rest))]
    o.append(W(vm=('RL', 13, 3)))
    for j in range(4):
        for m in mm: o.append(m[j])
    A('s_nop 7')
    for k, hc in enumerate(rest): o += red_out(hc, 136 + 8 * k, 140 + 8 * k)
    return o

def dec_load(tag=None): return I('buffer_load_dword v%d, off, %s, s%d sc1' % (vCAS, sr(SDBG), sCO), tag=tag)
def decide():
    o = []
    A = lambda s: o.append(I(s))
    o.append(W(vm=('DecL',)))
    A('v_readfirstlane_b32 s%d, v%d' % (sT0, vCAS))
    A('s_bitcmp1_b32 s%d, 5' % sT0); A('s_cbranch_scc0 L_DECIDE'); A('L_FAST:'); A('s_mov_b32 s%d, 0' % sCO)
    return o

def slow_path(pro):
    o = []
    A = lambda s: o.append(I(s))
    A('L_DECIDE:')
    A('v_mbcnt_lo_u32_b32 v237, -1, 0'); A('v_lshl_add_u32 v237, v237, 8, s6')
    A('s_mov_b32 s%d, 0x40000' % sLC)
    A('L_DEC_A:')
    o.append(dec_load()); A('s_waitcnt vmcnt(0)'); A('v_readfirstlane_b32 s%d, v%d' % (sT0, vCAS))
    A('s_bitcmp1_b32 s%d, 5' % sT0); A('s_cbranch_scc1 L_FAST')
    A('s_bitcmp1_b32 s%d, 6' % sT0); A('s_cbranch_scc1 L_SLOW')
    A('s_bitcmp1_b32 s%d, 7' % sT0); A('s_cbranch_scc0 L_DEC_V')
    A('s_xor_b32 s%d, s%d, s%d' % (sT0, sT0, sREG)); A('s_and_b32 s%d, s%d, 15' % (sT0, sT0)); A('s_cbranch_scc1 L_SLOW')
    A('s_sub_u32 s%d, s%d, 1' % (sLC, sLC)); A('s_cbranch_scc0 L_DEC_A'); A('s_branch L_SLOW')
    A('L_DEC_V:')
    A('s_or_b32 s%d, s%d, 64' % (sT0, sREG)); A('v_mov_b32 v%d, s%d' % (vCAS, sT0))
    A('buffer_store_byte v%d, v237, %s, s%d offen' % (vCAS, sr(SDBG), sCO)); A('s_waitcnt vmcnt(0)')
    o.append(dec_load()); A('s_waitcnt vmcnt(0)'); A('v_readfirstlane_b32 s%d, v%d' % (sT0, vCAS))
    A('s_bitcmp1_b32 s%d, 7' % sT0); A('s_cbranch_scc1 L_DEC_A')
    A('L_SLOW:')
    o += phase3(False)
    A('s_waitcnt vmcnt(0)'); A('buffer_wbl2 sc1'); A('s_waitcnt vmcnt(0)')
    A('s_barrier'); A('s_cmp_eq_u32 s3, 0'); A('s_cbranch_scc0 L_END')
    A('s_and_b32 s%d, s6, 3' % sT0); A('s_lshl_b32 s%d, s%d, 3' % (sT0, sT0)); A('s_lshl_b32 s%d, 16, s%d' % (sT0, sT0)); A('v_mov_b32 v%d, s%d' % (vCAS, sT0))
    A('v_and_b32 v255, -4, v237')
    A('buffer_atomic_or v%d, v255, %s, s%d offen sc0 sc1' % (vCAS, sr(SDBG), sCO)); A('s_waitcnt vmcnt(0)')
    A('v_mbcnt_lo_u32_b32 v255, -1, 0'); A('v_lshrrev_b32 v%d, 2, v255' % vCAS); A('v_lshlrev_b32 v255, 2, v255'); A('v_lshl_add_u32 v255, v%d, 8, v255' % vCAS)
    A('v_mov_b32 v%d, 0' % vCAS)
    A('buffer_atomic_or v%d, v255, %s, s%d offen sc0 sc1' % (vCAS, sr(SDBG), sCO)); A('s_waitcnt vmcnt(0)')
    A('s_mov_b32 s%d, 0x10101010' % sT0); A('v_and_b32 v%d, s%d, v%d' % (vCAS, sT0, vCAS)); A('v_cmp_eq_u32 vcc, s%d, v%d' % (sT0, vCAS))
    A('s_nop 1'); A('s_and_b32 s%d, vcc_lo, 15' % sT0); A('s_cmp_eq_u32 s%d, 15' % sT0); A('s_cbranch_scc0 L_END')
    A('buffer_inv sc1'); A('s_waitcnt vmcnt(0)')
    for j in range(4): A('v_subrev_u32 v%d, s%d, v%d' % (vRL + j, sRLO, vRL + j))
    A('v_subrev_u32 v%d, s%d, v%d' % (vOUT, sOUO, vOUT))
    A('s_mov_b32 s%d, 0' % sLC)
    A('L_SLOOP:')
    A('s_lshl_b32 s%d, s%d, 8' % (sCO, sLC))
    o += red_loads(99, 0)
    A('s_bfe_u32 s%d, s%d, 0x40002' % (sT0, sLC)); A('s_mul_i32 s%d, s%d, 14336' % (sT0, sT0))
    A('s_and_b32 s%d, s%d, 3' % (sT1, sLC)); A('s_mul_i32 s%d, s%d, 3584' % (sT1, sT1)); A('s_add_u32 s%d, s%d, s%d' % (sT0, sT0, sT1))
    A('s_andn2_b32 s%d, s%d, 63' % (sT1, sLC)); A('s_add_u32 s%d, s%d, s%d' % (sT0, sT0, sT1))
    A('s_waitcnt vmcnt(0)')
    o += red_mfmas(0); A('s_nop 7')
    ro = red_out(0); o += ro[:2]
    A('buffer_store_dwordx2 %s, v%d, %s, s%d offen' % (vr(vCV, 2), vOUT, sr(SOUT), sT0))
    A('s_add_u32 s%d, s%d, 1' % (sLC, sLC)); A('s_cmp_lt_u32 s%d, 896' % sLC); A('s_cbranch_scc1 L_SLOOP')
    A('s_waitcnt vmcnt(0)'); A('s_endpgm')
    return o

def rare(par):
    o = []
    A = lambda s: o.append(I(s))
    A('RARE_%d:' % par)
    A('s_nop 7'); A('s_nop 7')
    A('v_mbcnt_lo_u32_b32 v252, -1, 0'); A('v_mbcnt_hi_u32_b32 v252, -1, v252')
    A('v_and_b32 v253, 15, v252'); A('v_lshlrev_b32 v253, 9, v253'); A('v_lshrrev_b32 v252, 4, v252'); A('v_lshl_add_u32 v252, v252, 4, v253')
    A('s_sub_u32 s%d, s%d, %d' % (sR0, sKO, LEAD * 16384))
    if OPT['xr']: A('s_xor_b32 s%d, s%d, s%d' % (sR0, sR0, sXR))
    for T in range(2):
        if T: A('s_add_u32 s%d, s%d, 8192' % (sR0, sR0))
        for ds in range(0, 8, 2):
            A('buffer_load_dwordx4 v[244:247], v252, %s, s%d offen offset:%d' % (sr(SK), sR0, ds * 64))
            A('buffer_load_dwordx4 v[248:251], v252, %s, s%d offen offset:%d' % (sr(SK), sR0, ds * 64 + 64))
            A('s_waitcnt vmcnt(0)')
            for d2 in range(2):
                for qb in range(4):
                    d = vr(S(par, qb, T))
                    A('%s %s, %s, %s, %s' % (MF, d, vr(244 + 4 * d2), vr(Q(ds + d2, qb)), d if ds + d2 else vr(NEGM(qb))))
            A('s_nop 7')
    A('s_nop 7')
    for qb in range(4):
        b = S(par, qb); y = S(par ^ 1, qb)
        A('v_max3_f32 v253, v%d, v%d, v%d' % (b, b + 1, b + 2)); A('v_max3_f32 v253, v253, v%d, v%d' % (b + 3, b + 4))
        A('v_max3_f32 v253, v253, v%d, v%d' % (b + 5, b + 6)); A('v_max_f32 v253, v253, v%d' % (b + 7))
        for sw in ('v_permlane32_swap_b32', 'v_permlane16_swap_b32'):
            A('v_mov_b32 v254, v253'); A('s_nop 1'); A('%s v253, v254' % sw); A('v_max_f32 v253, v253, v254')
        A('v_max_f32 v253, 0, v253')
        A('v_exp_f32 v255, -v253')
        for r in range(4): A('v_sub_f32 v%d, v%d, v253' % (NEGM(qb) + r, NEGM(qb) + r))
        for k in range(8): A('v_sub_f32 v%d, v%d, v253' % (y + k, y + k))
        for k in range(8): A('v_sub_f32 v%d, v%d, v253' % (b + k, b + k))
        for kind, k, ins in softmax_items(par, qb):
            o.append(ins)
            if kind == 'e': A('s_nop 0')
        A('v_mul_f32 v%d, v%d, v255' % (L0 + qb, L0 + qb))
        for db in range(0, 16, 2):
            regs = [O(db + d, qb) + r for d in range(2) for r in range(4)]
            for k, a in enumerate(regs): A('v_accvgpr_read_b32 v%d, a%d' % (244 + k, a))
            for k, a in enumerate(regs): A('v_mul_f32 v%d, v%d, v255' % (244 + k, 244 + k))
            for k, a in enumerate(regs): A('v_accvgpr_write_b32 a%d, v%d' % (a, 244 + k))
    A('s_nop 1')
    A('s_setpc_b64 %s' % sr(sRET, 2))
    return o

def dump_v(first, nfrag):
    o = []
    A = lambda s: o.append(I(s))
    A('s_nop 7'); A('s_nop 7'); A('s_waitcnt vmcnt(0) lgkmcnt(0)')
    A('s_lshl_b32 s34, s%d, 17' % sBH); A('s_add_u32 s28, s50, s34'); A('s_addc_u32 s29, s51, 0'); A('s_mov_b32 s30, 131072')
    for f in range(nfrag):
        A('s_mov_b32 s35, %d' % ((f // 4) * 16384 + (f % 4) * 1024))
        A('buffer_store_dwordx4 %s, v%d, %s, s35 offen' % (vr(first + 4 * f), vST, sr(SWS)))
    A('s_waitcnt vmcnt(0)'); A('s_endpgm')
    return o

def stamps_out():
    o = []
    if not OPT['stamps']: return o
    A = lambda s: o.append(I(s))
    A('s_waitcnt vmcnt(0)')
    A('s_memrealtime s[94:95]'); A('s_waitcnt lgkmcnt(0)')
    A('s_add_u32 s28, s50, 0x4000000'); A('s_addc_u32 s29, s51, 0'); A('s_mov_b32 s30, 0x100000')
    A('s_lshl_b32 s34, s2, 2'); A('s_add_u32 s34, s34, s3'); A('s_lshl_b32 s34, s34, 7')
    A('v_mov_b32 v1, 0')
    for k in range(32):
        A('v_mov_b32 v0, s%d' % (sST + k)); A('buffer_store_dword v0, v1, %s, s34 offen offset:%d' % (sr(SWS), 4 * k)); A('s_nop 1')
    return o

def main_kernel():
    pre = setup()
    if OPT['stamps']: pre = [I('s_memrealtime s[92:93]')] + pre
    stamp(pre)
    p1 = phase1()
    if OPT['stop'] == 'q':
        body = pre + p1 + dump_v(0, 32); loop = None; post = []; slow = []
        stream = body
    else:
        stamp(p1)
        pro = prologue()
        stamp(pro)
        iters = [sum((step(4 * it + k) for k in range(4)), []) for it in range(7)]
        if OPT['stamps'] == 2:
            for it in iters:
                it[0:0] = [I('s_waitcnt lgkmcnt(0)'), I('s_memrealtime s[96:97]'), I('s_waitcnt lgkmcnt(0)'), ] + [I('s_mov_b32 s%d, s%d' % (64 + k, 65 + k)) for k in range(6)] + [I('s_mov_b32 s70, s96')]
        tail = []
        stamp(tail)
        for t in range(28, 32): tail += step(t)
        stamp(tail)
        for n in (4, 5, 6): tail += rd_wo8(0, n)
        tail.append(dec_load(('DecL',)))
        tail += oconv()
        slow = []
        if OPT['stop'] == 'o': tail += dump_v(0, 32)
        else:
            stamp(tail)
            tail += [W(lg=('fWo', 0, 1, 1))] + decide()
            common = pre + p1 + pro + sum(iters, []) + tail
            slow = slow_path(common)
            resolve_waits(common + slow); finalize_waits(slow)
            tail += phase3(True)
            stamp(tail)
            tail += fast_tail()
            stamp(tail)
            tail += stamps_out()
            tail += [I('s_waitcnt vmcnt(0)')]
        stream = pre + p1 + pro + sum(iters, []) + tail
    resolve_waits(stream)
    if OPT['stop'] != 'q' and PEEL < 7: unify_iters(iters[PEEL:])
    finalize_waits(stream)
    errs = check_hazards(stream, 'main')
    lastw = None
    for ins in stream:
        if ins.mn.startswith(('s_cselect', 's_cmov', 's_cbranch_scc')) and not lastw.startswith(('s_cmp', 's_bitcmp')): errs.append('SCC from %s at %s' % (lastw, ins.text))
        if ins.mn == 's_addc_u32' and lastw != 's_add_u32': errs.append('SCC from %s at %s' % (lastw, ins.text))
        if ins.kind == 'branch' and ins.mn.startswith('s_cbranch_vcc'): lastw = 'call'
        if ins.kind == 'salu' and ins.mn not in NOSCC + ('s_bitset1_b32', 's_getreg_b32', 's_getpc_b64'): lastw = ins.mn
    if slow: errs += check_hazards(common + slow, 'slow')
    out = []
    if OPT['stop'] == 'q': out = stream
    else: out = pre + p1 + pro + sum(iters[:PEEL], []) + ([I('L_LOOP:')] + iters[PEEL] if PEEL < 7 else []) + tail
    out += [I('L_END:'), I('s_endpgm')]
    if OPT['stop'] != 'q':
        for lab, par in stubs:
            out += [I('%s:' % lab), I('s_call_b64 %s, RARE_%d' % (sr(sRET, 2), par)), I('s_branch %s_RET' % lab)]
        for lab, thr, a in spins: out += spin_stub(lab, thr, a)
        for par in (0, 1):
            r = rare(par); errs += check_hazards(r, 'rare'); out += r
        out += slow
    for e in errs[:40]: print('; ERROR', e, file=sys.stderr)
    if errs: raise SystemExit('hazard errors: %d' % len(errs))
    return out

def desc(name, vg, acc, y=False):
    return '''.amdhsa_kernel %s
  .amdhsa_next_free_vgpr %d
  .amdhsa_next_free_sgpr 102
  .amdhsa_accum_offset %d
  .amdhsa_group_segment_fixed_size 0
  .amdhsa_kernarg_size 64
  .amdhsa_user_sgpr_count 2
  .amdhsa_user_sgpr_kernarg_segment_ptr 1
  .amdhsa_system_sgpr_workgroup_id_x 1
%s.end_amdhsa_kernel''' % (name, vg, acc, '  .amdhsa_system_sgpr_workgroup_id_y 1\n' if y else '')

def fmt(ins):
    if ins.kind == 'dma' and ins.tag and OPT['nodma'] & {'X': 1, 'Wq': 2, 'K': 4, 'V': 4, 'Wo': 8, 'PF': 16}[ins.tag[0]]: return '    s_nop 0'
    if ins.kind == 'vst' and ins.tag and ins.tag[0] == 'St' and OPT['nost']: return '    s_nop 0'
    if OPT['noexp'] and ins.mn == 'v_exp_f32': return '    ' + ins.text.replace('v_exp_f32', 'v_mov_b32')
    k = OPT['kill']
    if ins.tag and ins.kind in ('vst', 'vld') and k & {'RL': 1, 'Out': 2, 'Poll': 4, 'Fl': 8, 'Reg': 32, 'Fz': 64, 'Dec': 128, 'Chk': 128}.get(ins.tag[0], 0): return '    s_nop 0'
    if k & 16 and ins.text.startswith('s_cbranch_vccnz SP_'): return '    s_nop 0'
    if k & 32 and ins.text.startswith('s_cbranch_scc0 L_DECIDE'): return '    s_nop 0'
    return ins.text if ins.kind == 'label' else '    ' + ins.text

if __name__ == '__main__':
    K1 = OPT['name'] + '_kernel'; K2 = 'mha_reduce_kernel'
    hdr = open('standalone__mha_block_cached__near_ridge.s.ref').read().split('; Override launch')[0]
    t = hdr
    t += '; @launch grid=(256,1,1) block=(256,1,1) lds=163840\n'
    t += '.amdgcn_target "amdgcn-amd-amdhsa--gfx950"\n.text\n'
    for K, body in ((K1, main_kernel()),):
        t += '.globl %s\n.p2align 8\n.type %s,@function\n%s:\n' % (K, K, K)
        t += '\n'.join((fmt(i).strip().replace(', ', ',') if OPT['tight'] else fmt(i)) for i in body) + '\n'
    t += '.section .rodata,"a"\n.p2align 6\n' + desc(K1, 512, 256) + '\n'
    sys.stdout.write(t)
```

```python
import sys, os
sys.path.insert(0, os.path.dirname(os.path.abspath(__file__)))
from asmlib import *

OPT = dict(na=0, ka=1, km=0, sw=0, odbl=0, orot=0, ov=0, ovp=0, oc=3, decg=2, xr=0, xs=0, pm=0, skip='1,9,10,9,19,9', tight=0, ncl=0, chain=0, w2=0, fill='04444444404', st0pol='', wsoff=0, ptat='', ptl=0, ptpol='', peel=0, lead=4, pre9=0, kp='', vp='', cpf=0, stlast=0, stpol2='sc1', outpol='', l2two='', tlbw=0, tlbs=16, warm=0, woat=6, warmpol='none', l2pf='', l2at='', l2pol='none', xpol='', wopol='', mix=0, pol2='', drop='', padp='', pad1='', padit=0, padfrom=0, pad=0, noexp=0, pf='', pfq='', pfl=0, pfpol='nt', ppos=12, prel=0, rlpol='sc1', kill=0, fuse=1, lag=3, ptouch=7, forceslow=0, map=1, ring=4, stpol='', wpol='', rot=0, kvpol='nt', nodma=0, nost=0, wq8=1, stop='', stamps=0, thr=0x47800000, name='standalone__mha_block_cached__near_ridge')
for a in sys.argv[1:]:
    k, v = a.split('=')
    OPT[k] = v if k in ('stop', 'name', 'kvpol', 'stpol', 'wpol', 'rlpol', 'pf', 'pfq', 'pfpol', 'padp', 'pad1', 'drop', 'pol2', 'l2pf', 'l2at', 'l2pol', 'xpol', 'wopol', 'warmpol', 'l2two', 'stpol2', 'outpol', 'kp', 'vp', 'ptpol', 'st0pol', 'ptat', 'fill', 'skip') else int(v, 0)

SLOT = 17408
MF = 'v_mfma_f32_16x16x32_bf16'
def vr(b, n=4): return 'v[%d:%d]' % (b, b + n - 1) if n > 1 else 'v%d' % b
def ar(b, n=4): return 'a[%d:%d]' % (b, b + n - 1) if n > 1 else 'a%d' % b
def sr(b, n=4): return 's[%d:%d]' % (b, b + n - 1)

SK, SV, SWQ, SX, SWO, SWS = 8, 12, 16, 20, 24, 28
sWL, sWL8, sT0, sT1 = 32, 33, 34, 35
sKO, sLC, sTHR, sSC, sRET, sR0, sVO = 52, 53, 54, 56, 58, 61, 62
sBH = 63
sST = 64
def Q(ds, qb): return 4 * (ds * 4 + qb)
def S(buf, qb, T=0): return 128 + 32 * buf + 8 * qb + 4 * T
def NEGM(qb): return 192 + 4 * qb
def RING(n): return 208 + 4 * (n % 4)
L0, LT0 = 224, 228
vKA, vVAe, vVAo, vDK, vDV, vDWo, vOA, vST, vTM = 232, 233, 234, 236, 237, 235, 238, 242, 243
vSEL, vRL, vFL, vPL, vOUT, vRD, vCV, vPR, vFV, vCAS = 244, 248, 252, 253, 254, 228, 232, 234, 237, 236
sPO, sCO, sREG, sFULL, sFLO, sPLO, sRLO, sOUO = 55, 60, 5, 7, 98, 99, 100, 101
sFCO, sPCO = 33, 63
vB, vPL2 = 243, 255
SDBG, SOUT = 20, 16
BSTRIDE, FLOFF = 3670528, 3670016
def RING8(n): return 192 + 4 * ((n + 4) % 8)
vWA0, vWA1, vWA80, vWA81, vXA, vDWq, vDX = 244, 245, 246, 247, 248, 249, 250
def O(db, qb): return 4 * (db * 4 + qb)
def ACC(ds, qb, T):
    if ds < 7: return vr(8 * (ds * 4 + qb) + 4 * T)
    return ar(8 * qb + 4 * T)
def XF(j, T, qb): return (32 if j % 6 == 0 else 48 + 32 * j) + 16 * T + 4 * qb
sWX, sXP = 91, 84
def ARING(n): return 64 + 4 * (n % 4)

nstamp = [0]
def stamp(out):
    if OPT['stamps'] in (0, 2): return
    k = nstamp[0]; nstamp[0] += 1
    out.append(I('s_waitcnt lgkmcnt(0)'))
    out.append(I('%s %s' % ('s_memrealtime' if OPT['stamps'] == 3 else 's_memtime', sr(sST + 2 * k, 2))))
    out.append(I('s_waitcnt lgkmcnt(0)'))

LEAD, PEEL, CH = OPT['lead'], OPT['peel'], OPT['chain']
NCL = OPT['ncl'] or 4 + (PEEL + 1) // 2
TS = {0: 16384, 1: 4096, 2: 8192}[OPT['km']]
NA = OPT['na']
assert not (NA and PEEL)
zq = []
def put_zeros(G, soft=False, lo=0):
    while zq and (soft or fit_chain(G, zq[:1], lo, G.n - 1)): lo = softplace(G, 'v_accvgpr_write_b32 a%d, 0' % zq.pop(0), lo)
def kslot(n): return 4 + n % 5
WOB = [7, 0, 4, 2]
sKS, sVS, sKE, sVE, sMK, sKBEG, sKEND, sCD, sCI, sKD = 38, 40, 42, 44, 46, 48, 49, 84, 86, 88
def mk_sched():
    avail = {('V', 0): 6, ('V', 1): 6, ('V', 2): 7, ('V', 3): 7, ('K', 4): 15, ('K', 0): 10, ('K', 1): 11, ('K', 2): 12, ('K', 3): 13}
    order = [('K', 0), ('K', 1), ('V', 0), ('K', 2), ('V', 1), ('K', 3), ('V', 2), ('K', 4), ('V', 3)]
    done = {k: 0 for k in order}; F = {}
    for per, c in zip(range(5, 16), OPT['fill']):
        F[per] = []
        for _ in range(int(c, 36)):
            k = [k for k in order if avail[k] <= per and done[k] < 4][0]
            F[per].append((k[0], k[1], done[k])); done[k] += 1
    assert all(v == 4 for v in done.values())
    return F
FILL = mk_sched()
def fill_dmas(per):
    r = []; prev = None
    for w, n, p in FILL.get(per, []):
        r.append(dma_kv_imm(w, n, p, sT0, prev != (w, n))); prev = (w, n)
    return r
if LEAD == 4: WOS = {(28, 0): (0, 0), (29, 0): (0, 1), (30, 0): (1, 0), (31, 0): (1, 1), (29, 1): (2, 0), (30, 1): (2, 1), (31, 1): (3, 0), 0: (3, 1), 2: (4, 0), 3: (4, 1), 4: (5, 0), 5: (5, 1), 6: (6, 0), 7: (6, 1)}
else: WOS = dict(zip([(29, 0), (30, 0), (30, 1), (31, 0), (31, 1)] + list(range(9)), [(c, h) for c in range(7) for h in range(2)]))
def dma_kv(which, tile, slot, p, soff):
    srd, vo = (SK, vDK) if which == 'K' else (SV, vDV)
    pre = [I('s_add_u32 m0, s%d, %d' % (sWL, slot * SLOT + p * 64))]
    pol = OPT['pol2'] if (which, p) in [('K', 3), ('V', 3), ('K', 1), ('V', 1), ('K', 2), ('V', 2)][:OPT['mix']] else OPT['kvpol']
    d = I('buffer_load_dwordx4 v%d, %s, s%d offen offset:%d %s lds' % (vo, sr(srd), soff, p * 1024, pol.replace('+', ' ')), tag=(which, tile, p))
    return pre, d
PM = OPT['pm']; sWK = 89 if PM else sWL
kpar = [0]
sXR = 90
def ktoggle(which, p):
    if which != 'K' or kpar[0] == p & 1: return []
    kpar[0] ^= 1
    return [I('v_xor_b32 v%d, 32, v%d' % (vDK, vDK))]
def dma_dyn(which, tile, p):
    srd, vo, e = (SK, vDK, sKE) if which == 'K' else (SV, vDV, sVE)
    if PM:
        pre = ktoggle(which, p) + ([I('s_add_u32 s%d, s%d, 4096' % (e + 1, e + 1))] if p else []) + [I('s_add_u32 m0, s%d, %d' % (e, p * 4352) if p else 's_mov_b32 m0, s%d' % e)]
        return pre, I('buffer_load_dwordx4 v%d, %s, s%d offen %s lds' % (vo, sr(srd), e + 1, OPT['kvpol'].replace('+', ' ')), tag=(which, tile, p))
    pre = [I('s_add_u32 m0, s%d, %d' % (e, p * 64) if p else 's_mov_b32 m0, s%d' % e)]
    return pre, I('buffer_load_dwordx4 v%d, %s, s%d offen offset:%d %s lds' % (vo, sr(srd), e + 1, p * 1024, OPT['kvpol'].replace('+', ' ')), tag=(which, tile, p))
def dyn_next(which, k):
    st, e, m, beg, end = (sKS, sKE, sMK, sKBEG, sKEND) if which == 'K' else (sVS, sVE, sMK + 1, sWK, sKBEG)
    return [['s_bitcmp1_b32 s%d, %d' % (m, k), 's_cselect_b64 %s, %s, %s' % (sr(e, 2), sr(sCD, 2), sr(st, 2)), 's_cselect_b64 %s, 0, %s' % (sr(sT0, 2), sr(sCI, 2))],
            ['s_add_u32 s%d, s%d, s%d' % (st + 1, st + 1, sT1)]] + ([['s_xor_b32 s%d, s%d, s%d' % (e + 1, e + 1, sXR)]] if OPT['xr'] else []) + [['s_add_u32 s%d, s%d, s%d' % (st, st, sT0)],
            ['s_cmp_eq_u32 s%d, s%d' % (st, end), 's_cmov_b32 s%d, s%d' % (st, beg)]]
NOSCC = ('s_mov_b32', 's_movk_i32', 's_mul_i32', 's_cselect_b32', 's_cselect_b64', 's_cmov_b32')
def place_groups(G, groups, lo, hi):
    cur = lo
    for grp in groups:
        grp = [I(c) for c in grp]
        for extra in (0, 1, 2):
            ok = None
            for st in range(cur, hi + 1):
                gp = st; pl = []; use = {}
                for k, ins in enumerate(grp):
                    while gp <= hi and G.used[gp] + use.get(gp, 0) + ins.cost > G.cap + extra: gp += 1
                    if gp > hi: pl = None; break
                    pl.append(gp); use[gp] = use.get(gp, 0) + ins.cost
                if pl and pl[0] == st and not any(x.kind == 'branch' or (x.kind == 'salu' and x.mn not in NOSCC) for q in range(pl[0] + 1, pl[-1] + 1) for x in G.g[q]):
                    ok = pl; break
            if ok: break
        assert ok, ('no room for group', grp)
        for gp, ins in zip(ok, grp): G.put(gp, ins, force=True)
        cur = ok[-1]
    return cur
def kswitch(n):
    if 4 * PEEL + 2 <= n < 30:
        return [['s_add_u32 s%d, s%d, s%d' % (sVO, sVO, sCI)], ['s_cmp_eq_u32 s%d, %d' % (sVO, 5 * SLOT), 's_cselect_b32 s%d, %d, s%d' % (sKD, -4 * SLOT, sCI), 's_cmov_b32 s%d, 0' % sVO],
                ['v_add_u32 v%d, s%d, v%d' % (vKA, sKD, vKA)]]
    return [['v_add_u32 v%d, %d, v%d' % (vKA, SLOT, vKA) if n % 5 else 'v_subrev_u32 v%d, %d, v%d' % (vKA, 4 * SLOT, vKA)]]
def dma_wq(tile, p, st):
    slot = 4 + (tile + 1) % 5
    pre = [I('s_add_u32 m0, s%d, %d' % (sWL8, slot * SLOT + p * 1088)), I('s_mov_b32 s%d, %d' % (st, tile * 32 * 8192 + p * 16384))]
    d = I('buffer_load_dwordx4 v%d, %s, s%d offen %s lds' % (vDWq, sr(SWQ), st, OPT['wpol'].replace('+', ' ')), tag=('Wq', tile, p))
    return pre, d
XB = lambda j: 34816 * (1 - (j & 1))
def dma_x(j, p, st=None):
    pre = [I('s_add_u32 m0, s%d, %d' % (sWX, XB(j) + p * 1088))]
    if p == 0 and j: pre = pre + [I('v_add_u32 v%d, 128, v%d' % (vDX, vDX))]
    d = I('buffer_load_dwordx4 v%d, %s, %s offen %s lds' % (vDX, sr(SX), 's%d' % (sXP + p - 1) if p else '0', OPT['xpol'].replace('+', ' ')), tag=('X', j, p))
    return pre, d
def dma_wo(chunk, half, p, st):
    slot = WOB[chunk % 4] + half
    pre = [I('s_add_u32 m0, s%d, %d' % (sWL, slot * SLOT + p * 1088)), I('s_mov_b32 s%d, %d' % (st, half * 128 * 896 + p * 7168 + chunk * 128))]
    d = I('buffer_load_dwordx4 v%d, %s, s%d offen %s lds' % (vDWo, sr(SWO), st, OPT['wopol'].replace('+', ' ')), tag=('Wo', chunk, half, p))
    return pre, d
def dma_kv_imm(which, tile, p, st, first=None):
    slot = kslot(tile) if which == 'K' else tile % 4
    if PM:
        pre = ktoggle(which, p) + [I('s_mov_b32 s%d, %d' % (st, tile * 16384 + p * 4096)), I('s_add_u32 m0, s%d, %d' % (sWK, slot * SLOT + p * 4352))]
        return pre, I('buffer_load_dwordx4 v%d, %s, s%d offen %s lds' % (vDK if which == 'K' else vDV, sr(SK if which == 'K' else SV), st, OPT['kvpol'].replace('+', ' ')), tag=(which, tile, p))
    pre, d = dma_kv(which, tile, slot, p, st)
    if first is None: first = p == 0
    if first: pre += [I('s_xor_b32 s%d, s%d, %d' % (st, sXR, tile * 16384) if OPT['xr'] else 's_mov_b32 s%d, %d' % (st, tile * TS))]
    return pre, d
def adv(so):
    return [I('s_add_u32 s%d, s%d, %d' % (so, so, TS))]

def rd_wq(tile, n):
    ds, T = n >> 1, n & 1
    slot = 4 + (tile + 1) % 5
    if slot == 8: a = (vWA80, vWA81)[(ds >> 1) & 1]; base = 0
    else: a = (vWA0, vWA1)[(ds >> 1) & 1]; base = (slot - 4) * SLOT
    r = ARING(n)
    return [I('ds_read_b64_tr_b16 %s, v%d offset:%d' % (ar(r + 2 * rho, 2), a, base + rho * 2176 + ds * 64 + T * 8), tag=('fWq', tile, n, rho)) for rho in (0, 1)]
def rd_x(j, qb, T):
    return I('ds_read_b128 %s, v%d offset:%d' % (ar(XF(j, T, qb)), vXA, XB(j) + qb * 2176 + T * 64), tag=('fX', j, qb, T))
def rd_k(t, n):
    T, ds = n >> 3, n & 7
    return [I('ds_read_b128 %s, v%d offset:%d' % (vr(RING(n)), vKA, T * 8704 + ds * 64), tag=('fK', t, n, 1))]
def rd_v(t, db):
    a = vVAo if db & 1 else vVAe
    r = RING(db)
    return [I('ds_read_b64_tr_b16 %s, v%d offset:%d' % (vr(r + 2 * rho, 2), a, (t % 4) * SLOT + rho * 8704 + db * 32), tag=('fV', t, db, rho)) for rho in (0, 1)]
def rd_wo(hc, n):
    ds, T = wo_frag(hc, n)
    nt = 2 * (hc & 1) + T
    r = RING(n)
    return [I('ds_read_b64_tr_b16 %s, v%d offset:%d' % (vr(r + 2 * rho, 2), vOA + nt, (4 * ds + 2 * rho) * 1088), tag=('fWo', hc, n, rho)) for rho in (0, 1)]

def put_dmas(G, dmas, groups):
    prev = 0
    for (pre, d), g in zip(dmas, groups):
        gp = 4 * g + 1
        G.put(gp, d)
    for (pre, d), g in zip(dmas, groups):
        gp = 4 * g + 1
        hi = gp - 1; got = []
        for ins in reversed(pre):
            for cand in range(hi, prev - 1, -1):
                if G.used[cand] + ins.cost <= G.cap:
                    G.used[cand] += ins.cost; got.append((cand, ins)); hi = cand; break
            else: G.used[hi] += ins.cost; got.append((hi, ins))
        for cand, ins in reversed(got): G.g[cand].append(ins)
        prev = gp + 1

def setup():
    o = []
    A = lambda s: o.append(I(s))
    A('s_cmp_ge_u32 s2, 256'); A('s_cbranch_scc1 L_END')
    A('s_load_dwordx16 s[36:51], s[0:1], 0')
    A('v_lshrrev_b32 v1, 6, v0'); A('v_and_b32 v0, 63, v0')
    A('v_readfirstlane_b32 s3, v1')
    A('s_and_b32 s4, s2, 7'); A('s_lshr_b32 s5, s2, 3')
    if OPT['cpf']:
        A('s_getpc_b64 s[8:9]'); A('s_lshl_b32 s6, s5, 2'); A('s_add_u32 s6, s6, s3'); A('s_mul_i32 s6, s6, %d' % (128 * NCL))
        A('s_mov_b32 s10, %d' % (16384 * NCL)); A('s_mov_b32 s11, 0x20000')
        A('v_min_u32 v201, %d, v0' % (NCL - 1)); A('v_lshlrev_b32 v201, 7, v201')
        o.append(I('buffer_load_dword v200, v201, s[8:11], s6 offen', tag=('CPF',)))
    if OPT['map'] == 0:
        A('s_and_b32 s6, s4, 3'); A('s_lshl_b32 s6, s6, 2'); A('s_and_b32 s7, s5, 3'); A('s_add_u32 s6, s6, s7')
        A('s_lshr_b32 s4, s4, 2'); A('s_lshl_b32 s4, s4, 3'); A('s_lshr_b32 s5, s5, 2'); A('s_add_u32 s4, s4, s5')
    else:
        A('s_lshr_b32 s6, s5, 1'); A('s_and_b32 s5, s5, 1'); A('s_lshl_b32 s4, s4, 1'); A('s_add_u32 s4, s4, s5')
    A('s_lshl_b32 s5, s4, 4'); A('s_add_u32 s%d, s5, s6' % sBH)
    A('s_mul_i32 s%d, s3, 4352' % sWL)
    A('s_and_b32 s7, s3, 1')
    if OPT['wq8']: A('s_lshl_b32 s7, s7, 3'); A('s_add_u32 s%d, s%d, s7' % (sWL8, sWL)); A('s_lshr_b32 s7, s7, 3')
    else: A('s_mov_b32 s%d, s%d' % (sWL8, sWL))
    A('v_and_b32 v1, 15, v0'); A('v_lshrrev_b32 v2, 4, v0'); A('v_bfe_u32 v3, v0, 2, 2'); A('v_and_b32 v4, 3, v0')
    A('v_lshrrev_b32 v5, 5, v0'); A('v_and_b32 v6, 31, v0')
    A('s_lshl_b32 s34, s3, 6'); A('v_lshrrev_b32 v7, 3, v0'); A('v_and_b32 v8, 2, v7'); A('v_add_u32 v7, s34, v7'); A('s_movk_i32 s35, 896')
    A('v_mul_lo_u32 v7, v7, s35'); A('v_and_b32 v9, 7, v0'); A('v_xor_b32 v8, v8, v9'); A('v_lshl_add_u32 v%d, v8, 4, v7' % vDX)
    A('s_lshl_b32 s%d, s%d, 1' % (sWX, sWL))
    for p in range(1, 8): A('s_movk_i32 s%d, %d' % (sXP + p - 1, p * 7168) if p < 5 else 's_mov_b32 s%d, %d' % (sXP + p - 1, p * 7168))
    A('s_lshl_b32 s34, s3, 3'); A('v_add_u32 v7, s34, v5'); A('v_lshlrev_b32 v7, 13, v7'); A('v_lshlrev_b32 v8, 3, v5')
    A('v_xor_b32 v8, v8, v6'); A('v_lshl_add_u32 v%d, v8, 4, v7' % vDWq)
    A('s_waitcnt lgkmcnt(0)')
    def srd(d, p, off, size):
        A('s_add_u32 s%d, s%d, %s' % (d, p, off)); A('s_addc_u32 s%d, s%d, 0' % (d + 1, p + 1))
        A('s_mov_b32 s%d, %s' % (d + 2, size)); A('s_mov_b32 s%d, 0x20000' % (d + 3))
    A('s_mul_i32 s34, s4, 229376'); srd(SX, 36, 's34', '229376')
    A('s_lshl_b32 s34, s6, 9'); A('s_sub_u32 s35, 3670016, s34'); srd(SWQ, 42, 's34', 's35')
    return o

def setup2():
    o = []
    A = lambda s: o.append(I(s))
    def srd(d, p, off, size):
        A('s_add_u32 s%d, s%d, %s' % (d, p, off)); A('s_addc_u32 s%d, s%d, 0' % (d + 1, p + 1))
        A('s_mov_b32 s%d, %s' % (d + 2, size)); A('s_mov_b32 s%d, 0x20000' % (d + 3))
    A('s_lshl_b32 s34, s%d, 19' % sBH); srd(SK, 38, 's34', '524288'); srd(SV, 40, 's34', '524288')
    A('s_mul_i32 s34, s6, 229376'); srd(SWO, 44, 's34', '229376')
    A('s_mul_i32 s34, s4, %d' % BSTRIDE)
    if OPT['wsoff']: A('s_add_u32 s34, s34, %d' % (OPT['wsoff'] << 20))
    srd(SWS, 50, 's34', str(BSTRIDE))
    tw = OPT['tlbw']
    if tw:
        A('s_mov_b32 m0, %d' % (9 * SLOT)); A('v_lshlrev_b32 v255, %d, v0' % OPT['tlbs'])
        if tw & 8: A('s_mul_i32 s34, s4, 229376'); srd(40, 46, 's34', '229376')
        for bit, r in ((1, SK), (1, SV), (16, SWQ), (16, SX), (2, SWO), (4, SWS), (8, 40)):
            if tw & bit: o.append(I('buffer_load_dword v255, %s, 0 offen nt lds' % sr(r), tag=('PF',)))
    A('s_mov_b32 s%d, 0x%x' % (sTHR, OPT['thr']))
    A('s_mov_b32 s%d, 0x3db8aa3b' % sSC); A('s_mov_b32 s%d, 0x3db8aa3b' % (sSC + 1))
    if OPT['rot'] == 0: A('s_mov_b32 s%d, 0' % sKO)
    elif OPT['rot'] == 1: A('s_and_b32 s%d, s%d, 31' % (sKO, sBH))
    elif OPT['rot'] == 2: A('s_lshr_b32 s%d, s2, 3' % sKO)
    elif OPT['rot'] == 3: A('s_mul_i32 s%d, s2, 11' % sKO); A('s_lshr_b32 s34, s2, 5'); A('s_add_u32 s%d, s%d, s34' % (sKO, sKO)); A('s_and_b32 s%d, s%d, 31' % (sKO, sKO))
    elif OPT['rot'] == 4: A('s_and_b32 s%d, s2, 7' % sKO); A('s_lshl_b32 s%d, s%d, 2' % (sKO, sKO))
    A('s_lshl_b32 s%d, s%d, 14' % (sKO, sKO)); A('s_mov_b32 s%d, s%d' % (sVO, sKO)); A('s_mov_b32 s%d, %d' % (sLC, PEEL))
    A('s_movk_i32 s35, 1088')
    A('v_lshrrev_b32 v7, 3, v1'); A('v_and_b32 v8, 2, v1'); A('v_xor_b32 v8, v8, v2'); A('v_lshlrev_b32 v8, 4, v8')
    A('v_and_b32 v9, 7, v1'); A('v_lshl_add_u32 v8, v9, 7, v8'); A('v_mad_u32_u24 v8, v7, s35, v8'); A('v_lshl_add_u32 v%d, s%d, 1, v8' % (vXA, sWL))
    A('v_lshrrev_b32 v9, 1, v3'); A('v_and_b32 v10, 1, v3')
    A('v_lshl_add_u32 v8, v2, 2, v9'); A('v_mul_lo_u32 v8, v8, s35'); A('v_lshl_add_u32 v8, v4, 4, v8')
    if OPT['wq8']: A('v_and_b32 v11, 1, v2'); A('v_lshl_add_u32 v8, v11, 3, v8')
    A('v_add_u32 v8, %d, v8' % (4 * SLOT))
    A('v_mul_u32_u24 v11, 640, v10'); A('v_add_u32 v%d, v8, v11' % vWA0)
    A('v_mul_u32_u24 v11, 384, v10'); A('v_add_u32 v%d, v8, v11' % vWA1)
    A('v_add_u32 v%d, %d, v%d' % (vWA80, 4 * SLOT, vWA0)); A('v_add_u32 v%d, %d, v%d' % (vWA81, 4 * SLOT, vWA1))
    A('v_lshrrev_b32 v8, 1, v1'); A('v_mul_lo_u32 v8, v8, s35'); A('v_and_b32 v11, 1, v1'); A('v_lshl_add_u32 v8, v11, 9, v8')
    A('v_lshl_or_b32 v11, v7, 1, v11'); A('v_xor_b32 v11, v11, v2'); A('v_add_u32 v8, %d, v8' % (4 * SLOT)); A('v_lshl_add_u32 v%d, v11, 4, v8' % vKA)
    A('v_lshl_add_u32 v8, v2, 1, v9'); A('v_mul_lo_u32 v8, v8, s35'); A('v_lshl_add_u32 v8, v4, 3, v8')
    A('v_mul_u32_u24 v11, 544, v10'); A('v_add_u32 v%d, v8, v11' % vVAe)
    A('v_mul_u32_u24 v11, 480, v10'); A('v_add_u32 v%d, v8, v11' % vVAo)
    A('s_lshl_b32 s34, s3, 12'); A('v_lshlrev_b32 v8, 9, v5'); A('v_add_u32 v8, s34, v8')
    if OPT['km'] == 1: A('s_mul_i32 s5, s3, %d' % (131072 - 4096)); A('v_add_u32 v8, s5, v8')
    if OPT['km'] == 2: A('s_lshr_b32 s5, s3, 1'); A('s_mul_i32 s5, s5, %d' % (262144 - 8192)); A('v_add_u32 v8, s5, v8')
    if PM: A('s_lshl_b32 s5, s3, 10'); A('v_lshlrev_b32 v8, 9, v5'); A('v_add_u32 v8, s5, v8'); A('v_xor_b32 v11, v5, v6'); A('v_lshl_add_u32 v%d, v11, 4, v8' % vDK)
    else: A('s_lshl_b32 s5, s7, 1'); A('v_or_b32 v11, s5, v5'); A('v_xor_b32 v11, v11, v6'); A('v_lshl_add_u32 v%d, v11, 4, v8' % vDK)
    A('v_lshlrev_b32 v11, 1, v5'); A('v_xor_b32 v11, v11, v6'); A('v_lshl_add_u32 v%d, v11, 4, v8' % vDV)
    A('v_lshlrev_b32 v8, 8, v3'); A('v_lshl_add_u32 v8, v2, 6, v8'); A('v_lshl_add_u32 v8, v4, 4, v8'); A('v_add_u32 v%d, s34, v8' % vST)
    A('s_lshl_b32 s34, s3, 5'); A('v_lshrrev_b32 v8, 3, v0'); A('v_add_u32 v8, s34, v8'); A('s_movk_i32 s5, 896'); A('v_mul_lo_u32 v8, v8, s5')
    A('v_and_b32 v11, 7, v0'); A('v_lshlrev_b32 v12, 1, v2'); A('v_xor_b32 v11, v11, v12'); A('v_lshl_add_u32 v%d, v11, 4, v8' % vDWo)
    A('v_lshrrev_b32 v8, 1, v2'); A('v_mul_lo_u32 v8, v8, s35'); A('v_and_b32 v11, 1, v2'); A('v_lshl_add_u32 v11, v11, 2, v3')
    A('v_lshl_add_u32 v8, v11, 7, v8'); A('v_lshl_add_u32 v8, v4, 3, v8'); A('v_lshrrev_b32 v11, 1, v11'); A('v_add_u32 v8, %d, v8' % (WOB[0] * SLOT))
    for nt in range(4):
        A('v_xor_b32 v12, %d, v11' % nt); A('v_lshl_add_u32 v%d, v12, 5, v8' % (vOA + nt))
    for qb in range(4): A('v_mov_b32 v%d, 0' % (L0 + qb))
    A('s_mul_i32 s%d, s6, 229376' % sPO)
    A('s_lshl_b32 s34, s3, 7'); A('s_lshl_b32 s35, s6, 2'); A('s_add_u32 s34, s34, s35'); A('s_add_u32 s%d, s34, %d' % (sFLO, FLOFF))
    A('s_lshr_b32 s34, s6, 2'); A('s_lshl_b32 s34, s34, 7'); A('s_add_u32 s%d, s34, %d' % (sPLO, FLOFF))
    A('s_lshl_b32 s34, s6, 10'); A('s_lshl_b32 s35, s3, 8'); A('s_add_u32 s%d, s34, s35' % sRLO)
    A('s_mul_i32 s34, s6, 14336'); A('s_mul_i32 s35, s3, 3584'); A('s_add_u32 s%d, s34, s35' % sOUO)
    A('s_lshl_b32 s%d, s4, 4' % sCO)
    A('s_getreg_b32 s34, hwreg(HW_REG_XCC_ID, 0, 4)')
    if OPT['forceslow'] == 1: A('s_and_b32 s34, s6, 1')
    A('s_or_b32 s%d, s34, 0x80' % sREG); A('s_mul_i32 s%d, s%d, 0x01010101' % (sFULL, sREG))
    A('s_and_b32 s34, s6, 3'); A('s_lshl_b32 s34, s34, 2'); A('s_add_u32 s34, s34, s3'); A('s_lshl_b32 s34, s34, 2'); A('s_add_u32 s34, s34, s%d' % sPLO); A('s_add_u32 s34, s34, 64')
    A('v_lshl_add_u32 v8, v0, 9, s%d' % sFLO); A('v_writelane_b32 v8, s34, 1')
    A('v_mul_u32_u24 v9, %d, v0' % (OPT['ring'] - OPT['lag'] + 1))
    o.append(I('buffer_store_dword v9, v8, %s, 0 offen' % sr(SWS), tag=('Fz',)))
    return o

sPF, sPFt, vPA, vPL128, vPD = 36, 37, 254, 255, 231
pfstate = dict(n=None)
def pf_items(n):
    pre = []
    if pfstate['n'] != n:
        pre += ['v_min_u32 v%d, %d, v%d' % (vPA, (n - 1) * 128, vPL128)]
        pfstate['n'] = n
    pre += ['s_mul_i32 s%d, s3, %d' % (sPFt, n * 128), 's_add_u32 s%d, s%d, s%d' % (sPFt, sPFt, sPF), 's_add_u32 s%d, s%d, %d' % (sPF, sPF, n * 512)]
    pol = OPT['pfpol'].replace('+', ' ').replace('none', '')
    lds = [I('buffer_load_dword v%d, %s, s%d offen %s lds' % (vPA, sr(r), sPFt, pol), tag=('PF',)) for r in (SK, SV)]
    return [([I(p) for p in pre] + [I('s_mov_b32 m0, %d' % (9 * SLOT))], lds[0]), ([], lds[1])]
l2state = dict(n=None)
def l2_items(k):
    its = [i for i, c in enumerate(OPT['l2pf']) if c != '0']
    it, st = its[k // 2], k & 1
    n = 4 * int(OPT['l2pf'][it], 36)
    pre = []
    if l2state['n'] != n:
        pre += ['v_min_u32 v254, %d, v251' % ((n - 1) * 128), 'v_add_u32 v254, v254, v255']; l2state['n'] = n
    pre += ['s_mov_b32 s%d, %d' % (sPFt, (4 * it + LEAD - st) * 16384), 's_mov_b32 m0, %d' % (9 * SLOT)]
    pol = OPT['l2pol'].replace('+', ' ').replace('none', '')
    return ([I(p) for p in pre], I('buffer_load_dword v254, %s, s%d offen %s lds' % (sr(SV if st else SK), sPFt, pol), tag=('PF',)))
def pflist(x): return [int(c, 36) for c in x]

def phase1():
    o = []
    k = 0
    for f, t, n in ((dma_x, 0, 8), (dma_wq, 0, 4), (dma_wq, 1, 4), (dma_x, 1, 8), (dma_wq, 2, 4), (dma_wq, 3, 4)):
        for p in range(n):
            pre, d = f(t, p, sT0 + (k & 1)); k += 1
            o += pre + ([I('s_nop 0')] if len(pre) < 2 else []); o.append(d)
    o += setup2()
    wp = OPT['warmpol'].replace('+', ' ').replace('none', '')
    if OPT['warm']: o.append(I('s_mov_b32 m0, %d' % (9 * SLOT)))
    if OPT['warm'] & 2:
        o += [I(c) for c in ['v_bfe_u32 v251, v0, 3, 2', 'v_and_b32 v252, 7, v0', 'v_min_u32 v252, 4, v252', 'v_mul_u32_u24 v251, 896, v251', 'v_lshl_add_u32 v251, v252, 7, v251',
              's_lshl_b32 s36, s6, 2', 's_add_u32 s36, s36, s3', 's_mul_i32 s36, s36, 3584', 's_add_u32 s36, s36, 256']]
        o.append(I('buffer_load_dword v251, %s, s36 offen %s lds' % (sr(SX), wp), tag=('PF',)))
    if OPT['warm'] & 1:
        o += [I(c) for c in ['v_min_u32 v252, 19, v0', 'v_lshrrev_b32 v252, 2, v252', 'v_lshlrev_b32 v252, 13, v252', 'v_lshl_add_u32 v252, v4, 7, v252',
              's_lshl_b32 s37, s4, 2', 's_add_u32 s37, s37, s3', 's_mul_i32 s37, s37, 40960', 's_add_u32 s37, s37, %d' % (128 * 8192)]]
        o.append(I('buffer_load_dword v252, %s, s37 offen %s lds' % (sr(SWQ), wp), tag=('PF',)))
    if OPT['warm'] & 4 and OPT['woat'] <= 14:
        o += [I(c) for c in ['v_bfe_u32 v253, v0, 3, 2', 'v_and_b32 v254, 7, v0', 'v_min_u32 v254, 6, v254', 'v_mul_u32_u24 v253, 896, v253', 'v_lshl_add_u32 v253, v254, 7, v253']]
    if OPT['l2pf']:
        o += [I('v_and_b32 v251, 15, v0'), I('v_lshlrev_b32 v251, 7, v251'), I('v_lshrrev_b32 v255, 4, v0'), I('v_lshlrev_b32 v255, 14, v255'),
              I('s_lshl_b32 s%d, s3, 12' % sPFt), I('v_add_u32 v255, s%d, v255' % sPFt)]
    o.append(W(vm=('Wq', 0, 3))); o.append(I('s_barrier'))
    for qb in range(4): o.append(rd_x(0, qb, 0))
    o += rd_wq(0, 0) + [rd_x(0, 0, 1), rd_x(0, 1, 1)] + rd_wq(0, 1) + [rd_x(0, 2, 1), rd_x(0, 3, 1)] + rd_wq(0, 2) + rd_wq(0, 3)
    o.append(W(lg=('fWq', 0, 0, 1)))
    stamp(o)
    for i in range(14):
        mf = []
        for n in range(16):
            ds, T = n >> 1, n & 1
            for qb in (range(3, -1, -1) if CH & 16 and n & 1 else range(4)):
                d = ACC(ds, qb, T)
                mf.append(I('%s %s, %s, %s, %s' % (MF, d, ar(ARING(n)), ar(XF(i >> 1, i & 1, qb)), '0' if i == 0 else d)))
        G = Gaps(mf)
        for g in range(16):
            nx = g + 4
            if nx < 16:
                for r in rd_wq(i, nx): G.put(4 * g + 3, r)
            elif i < 13:
                for r in rd_wq(i + 1, nx - 16): G.put(4 * g + 3, r)
            if g < 15:
                if g == 12 and i < 13:
                    G.put(4 * g + 2, W(lg=('fWq', i, g + 1, 1), vm=[('Wq', i + 1, 3)] + ([('X', i + 1, 7)] if i < 6 else []))); G.put(4 * g + 2, 's_barrier')
                else: G.put(4 * g + 2, W(lg=('fWq', i, g + 1, 1)))
            elif i < 13: G.put(4 * g + 2, W(lg=('fWq', i + 1, 0, 1)))
        if i < 6:
            for qb in range(4):
                for T in range(2): G.put((52, 53, 56, 57)[qb], rd_x(i + 1, qb, T))
        dm = []
        if i < 5: dm = [dma_x(i + 2, p) for p in range(8)]
        fl = fill_dmas(i)
        wq = [dma_wq(i + 4, p, sT1) for p in range(4)] if i <= 9 else []
        if wq and fl:
            while wq or fl:
                if wq: dm.append(wq.pop(0))
                if fl: dm.append(fl.pop(0))
        else: dm += wq + fl
        n = len(dm)
        grp = list(range(1, 13)) if n == 12 else [1 + (k * 12) // n for k in range(n)]
        if OPT['l2pf']:
            ks = [k for k, c in enumerate(OPT['l2at']) if int(c, 36) == i]
            cand = (14, 15) if i >= 6 else ((12, 15) if i == 5 else (15,))
            assert len(ks) <= len(cand)
            for k, g in zip(ks, cand): dm.append(l2_items(k)); grp = grp + [g]
            if OPT['l2two'] and ks:
                assert len(ks) == 1
                d = dm[-1][1]
                dm.append(([], I(d.text.split(' offen')[0] + ' offen %s lds' % OPT['l2two'].replace('+', ' ').replace('none', ''), tag=('PF',)))); grp = grp + [15]
            assert len(ks) <= 2
        if OPT['warm'] & 4 and i == OPT['woat']:
            assert len(grp) == len([g for g in grp if g < 14])
            dm.append(([I(c) for c in ['s_lshl_b32 s37, s4, 2', 's_add_u32 s37, s37, s3', 's_mul_i32 s37, s37, 3584', 's_mov_b32 m0, %d' % (9 * SLOT)]],
                       I('buffer_load_dword v253, %s, s37 offen %s lds' % (sr(SWO), wp), tag=('PF',)))); grp = grp + [15]
        put_dmas(G, dm, grp)
        if i == 5 and PM: G.place('s_mul_i32 s%d, s3, 1088' % sWK)
        if i == 5 and OPT['xr']: G.chain(['s_lshr_b32 s%d, s2, %d' % (sXR, OPT['xs']), 's_and_b32 s%d, s%d, %d' % (sXR, sXR, OPT['xr']), 's_lshl_b32 s%d, s%d, 14' % (sXR, sXR)])
        if i == 12:
            G.chain(['s_mov_b32 s%d, s48' % SDBG, 's_mov_b32 s%d, s49' % (SDBG + 1), 's_movk_i32 s%d, 256' % (SDBG + 2),
                     's_mul_i32 s%d, s4, 229376' % sT1, 's_add_u32 s%d, s46, s%d' % (SOUT, sT1), 's_addc_u32 s%d, s47, 0' % (SOUT + 1), 's_mov_b32 s%d, 229376' % (SOUT + 2)], 8)
        if i == 13:
            G.chain(['s_and_b32 s%d, s6, 3' % sFCO, 's_lshl_b32 s%d, s%d, 2' % (sFCO, sFCO), 's_add_u32 s%d, s%d, s3' % (sFCO, sFCO), 's_lshl_b32 s%d, s%d, 2' % (sFCO, sFCO),
                     's_add_u32 s%d, s%d, s%d' % (sFCO, sFCO, sPLO), 's_add_u32 s%d, s%d, 64' % (sFCO, sFCO),
                     's_lshl_b32 s%d, s3, 7' % sPCO, 's_add_u32 s%d, s%d, %d' % (sPCO, sPCO, FLOFF + 64), 's_sub_u32 s%d, s%d, s%d' % (sPCO, sPCO, sPLO)], 30)
        if i == 13:
            k0, kn, v0, vn, k1, km = [int(c) for c in OPT['skip'].split(',')]
            ch = ['s_mov_b32 s%d, %d' % (sCD, 9 * SLOT), 's_mov_b32 s%d, 0x80000' % (sCD + 1), 's_movk_i32 s%d, %d' % (sCI, SLOT), 's_movk_i32 s%d, %d' % (sCI + 1, TS),
                  's_add_u32 s%d, s%d, %d' % (sKBEG, sWK, 4 * SLOT), 's_add_u32 s%d, s%d, %d' % (sKEND, sWK, 9 * SLOT),
                  's_mov_b32 s%d, s%d' % (sKS, sKBEG), 's_mov_b32 s%d, %d' % (sKS + 1, 5 * TS), 's_mov_b32 s%d, s%d' % (sVS, sWK), 's_mov_b32 s%d, %d' % (sVS + 1, 4 * TS),
                  's_mul_i32 s%d, s2, 79' % sKD, 's_and_b32 s%d, s%d, 0xff' % (sKD, sKD)]
            if OPT['sw']: ch[-2:] = ['s_lshl_b32 s%d, s3, 6' % sKD]
            def pos(d, base, n): return ['s_mul_i32 s%d, s%d, %d' % (d, sKD, n), 's_lshr_b32 s%d, s%d, 8' % (d, d), 's_add_u32 s%d, s%d, %d' % (d, d, base)]
            ch += ['s_mov_b32 s%d, 0' % sMK, 's_mov_b32 s%d, 1' % (sMK + 1)]
            ch += pos(sKE, k0, kn) + ['s_bitset1_b32 s%d, s%d' % (sMK, sKE)] + pos(sKE, k1, km) + ['s_bitset1_b32 s%d, s%d' % (sMK, sKE)] + pos(sKE, v0, vn) + ['s_bitset1_b32 s%d, s%d' % (sMK + 1, sKE)]
            assert v0 >= 4 * NA - 2 + (NA == 6) and (k1 >= 4 * NA - 2 + (NA == 6) or not OPT['ka'])
            assert k0 + kn <= k1 and k1 + km <= 28 and 1 <= v0 and v0 + vn <= 28
            G.chain(ch, 0)
        if PEEL == 0:
            if i == 5: zq.extend(range(240, 256))
            if 5 <= i < 13 and i & 1: zq.extend(range(48 + 32 * ((i - 3) // 2), 80 + 32 * ((i - 3) // 2)))
            if i == 12: zq.extend(range(208, 240))
            if i == 13: zq.extend(range(32, 48))
            if i >= 5: put_zeros(G)
        o += G.flat()
    stamp(o)
    o.append(I('s_nop 3'))
    def conv(src, dst):
        r = []
        for k in range(4): r.append(I('v_pk_mul_f32 %s, %s, %s' % (vr(src + 2 * k, 2), vr(src + 2 * k, 2), sr(sSC, 2))))
        for k in range(4): r.append(I('v_cvt_pk_bf16_f32 v%d, v%d, v%d' % (dst + k, src + 2 * k, src + 2 * k + 1)))
        return r
    fl = fill_dmas(14)
    for f in range(28):
        o += conv(8 * f, 4 * f)
        if f % 6 == 2 and fl:
            pre, d = fl.pop(0); o += pre + [I('s_nop 0'), d]
    assert not fl
    o.append(W(vm=('K', 0, 3))); o.append(I('s_barrier'))
    for n in range(4): o += rd_k(0, n)
    for k in range(32): o.append(I('v_accvgpr_read_b32 v%d, a%d' % (128 + k, k)))
    for qb in range(4): o += conv(128 + 8 * qb, Q(7, qb))
    o.append(W(lg=('fK', 0, CH & 1, 1)))
    return o

def softmax_items(buf, qb):
    b = S(buf, qb); lt = LT0 + qb
    it = []
    for k in range(8):
        it.append(('e', k, I('v_exp_f32 v%d, v%d' % (b + k, b + k))))
        if k == 1: it.append(('v', k, I('v_add_f32 v%d, v%d, v%d' % (lt, b, b + 1))))
        elif k > 1: it.append(('v', k, I('v_add_f32 v%d, v%d, v%d' % (lt, lt, b + k))))
        if k & 1: it.append(('v', k, I('v_cvt_pk_bf16_f32 v%d, v%d, v%d' % (b + k // 2, b + k - 1, b + k))))
    return it

def place_softmax(G, buf, qbs, expgaps):
    eg = list(expgaps); pend = []
    for qb in qbs:
        for kind, k, ins in softmax_items(buf, qb):
            if kind == 'e':
                gp = eg.pop(0); G.put(gp, ins); last = gp
            else: pend.append((ins, last + 1))
    return pend

def place_chain(G, pend):
    cur = 0
    for ins, lo in pend: cur = G.place(ins, max(cur, lo))
    return cur

stubs = []
def check_items(t):
    lab = 'RS_%d' % (t % 4 + 4 * (t < 4 * NA) if 4 * PEEL <= t < 28 else 100 + t)
    if lab not in [s[0] for s in stubs]: stubs.append((lab, t & 1))
    return [I('v_max_f32 v%d, v%d, v%d' % (vTM, vTM, LT0 + 3)), I('v_cmp_lt_f32 vcc, s%d, v%d' % (sTHR, vTM)),
            I('s_cbranch_vccnz %s' % lab), I('%s_RET:' % lab)]

def qk_mfmas(t1, first):
    mf = []
    for n, qb in ([(2 * G + k, qb) for G in range(8) for qb in range(4) for k in range(2)] if CH & 1 else [(n, qb) for n in range(16) for qb in range(4)]):
        T, ds = n >> 3, n & 7
        d = vr(S(t1 & 1, qb, T))
        c = d if ds else ('0' if first else vr(NEGM(qb)))
        mf.append(I('%s %s, %s, %s, %s' % (MF, d, vr(RING(n)), vr(Q(ds, qb)), c)))
    return mf
def qk_reads(G, t1, nxt, nxt_tag):
    for g in range(8):
        if OPT['w2'] and g: G.put(8 * g, W(lg=('fK', t1, 2 * g + 1, 1)))
        rs = [rd_k(t1, nx) if nx < 16 else nxt(nx - 16) for nx in (2 * g + 4, 2 * g + 5)]
        for r in rs[0]: G.put(8 * g + 6, r)
        G.put(8 * g + 7, W(lg=('fK', t1, 2 * g + 3 - OPT['w2'], 1) if g < 7 else nxt_tag))
        for k, r in enumerate(rs[1]): G.put(8 * g + 7 + (k if g < 7 else 0), r, force=True)
def pv_mfmas(t):
    mf = []
    for db in range(16):
        for qb in (range(3, -1, -1) if CH & 2 and db & 1 else range(4)):
            d = ar(O(db, qb))
            mf.append(I('%s %s, %s, %s, %s' % (MF, d, vr(RING(db)), vr(S(t & 1, qb)), d if t or PEEL == 0 else '0')))
    return mf

def prologue():
    o = []
    G = Gaps(qk_mfmas(0, True))
    if CH & 1:
        G.put(50, W(vm=[('K', 1, 3), ('V', 0, 3)])); G.put(50, 's_barrier')
        qk_reads(G, 0, lambda n: rd_k(1, n), ('fK', 1, 1, 1))
    for g in range(0 if CH & 1 else 16):
        nx = g + 4
        for r in (rd_k(0, nx) if nx < 16 else rd_k(1, nx - 16)): G.put(4 * g + 3, r)
        if g == 12:
            G.put(4 * g + 2, W(lg=('fK', 0, g + 1, 1), vm=[('K', 1, 3), ('V', 0, 3)])); G.put(4 * g + 2, 's_barrier')
        elif g < 15: G.put(4 * g + 2, W(lg=('fK', 0, g + 1, 1)))
        else: G.put(4 * g + 2, W(lg=('fK', 1, 0, 1)))
    G.chain(['s_mov_b32 s%d, %d' % (sKO, LEAD * TS), 's_mov_b32 s%d, %d' % (sVO, ((4 * PEEL + 1) % 5) * SLOT)])
    place_groups(G, kswitch(1), 48, 53)
    dm = fill_dmas(15)
    grp = [1 + (k * 14) // len(dm) for k in range(len(dm))]
    if OPT['warm'] & 4 and OPT['woat'] == 14:
        dm.append(([I(c) for c in ['s_lshl_b32 s37, s4, 2', 's_add_u32 s37, s37, s3', 's_mul_i32 s37, s37, 3584', 's_mov_b32 m0, %d' % (9 * SLOT)]],
                   I('buffer_load_dword v253, %s, s37 offen %s lds' % (sr(SWO), OPT['warmpol'].replace('+', ' ').replace('none', '')), tag=('PF',)))); grp = grp + [14]
    put_dmas(G, dm, grp)
    if PEEL == 0:
        print('; zeros left for the prologue', len(zq), file=sys.stderr)
        zq.extend(list(range(48, 80)) + list(range(32))); put_zeros(G, True)
    if OPT['prel']: o.insert(0, I('buffer_load_dword v254, off, %s, s%d sc1' % (sr(SDBG), sCO), tag=('Prel',)))
    o += G.flat()
    A = lambda s: o.append(I(s))
    if OPT['prel'] == 2: o.append(W(vm=('Prel',)))
    A('v_mbcnt_lo_u32_b32 v252, -1, 0'); A('v_mov_b32 v253, s%d' % sREG)
    A('v_or_b32 v252, s3, v252'); A('v_lshl_add_u32 v252, v252, 8, s6')
    if OPT['forceslow'] == 2:
        A('s_and_b32 s%d, s4, 1' % sT0); A('s_lshl_b32 s%d, s%d, 8' % (sT0, sT0)); A('s_cmp_eq_u32 s6, 0'); A('s_cselect_b32 s%d, s%d, 0' % (sT0, sT0)); A('v_add_u32 v252, s%d, v252' % sT0)
    o.append(I('buffer_store_byte v253, v252, %s, s%d offen' % (sr(SDBG), sCO), tag=('Reg',)))
    A('s_nop 1')
    tm = [244, 245, 246, 247]; tc = [248, 249, 250, 251]
    for st in range(4):
        for qb in range(4):
            b = S(0, qb)
            if st == 0: A('v_max3_f32 v%d, v%d, v%d, v%d' % (tm[qb], b, b + 1, b + 2))
            elif st < 3: A('v_max3_f32 v%d, v%d, v%d, v%d' % (tm[qb], tm[qb], b + 2 * st + 1, b + 2 * st + 2))
            else: A('v_max_f32 v%d, v%d, v%d' % (tm[qb], tm[qb], b + 7))
    for sw in ('v_permlane32_swap_b32', 'v_permlane16_swap_b32'):
        for qb in range(4): A('v_mov_b32 v%d, v%d' % (tc[qb], tm[qb]))
        for qb in range(4): A('%s v%d, v%d' % (sw, tm[qb], tc[qb]))
        for qb in range(4): A('v_max_f32 v%d, v%d, v%d' % (tm[qb], tm[qb], tc[qb]))
    for qb in range(4):
        for r in range(4): A('v_sub_f32 v%d, 0, v%d' % (NEGM(qb) + r, tm[qb]))
    for qb in range(4):
        for k in range(8): A('v_sub_f32 v%d, v%d, v%d' % (S(0, qb) + k, S(0, qb) + k, tm[qb]))
    i0 = softmax_items(0, 0); i1 = softmax_items(0, 1)
    for x, y in zip(i0, i1): o.append(x[2]); o.append(y[2])
    return o

def padput(G, n, t, half):
    if OPT['padp']:
        prof = [int(c, 36) for c in OPT['padp']]
        mx = max(prof)
        for k in range(half, mx, 2):
            gp = 6 + 10 * (k // 2)
            if t >= 28:
                if prof[7] > k: G.put(gp, 's_nop 15', force=True)
                continue
            N = sum(1 for p in prof[:7] if p > k)
            if N == 0: continue
            lab = 'PAD_%d_%d' % (t % 4, k)
            if N < 7:
                G.put(gp, 's_cmp_lt_u32 s%d, %d' % (sLC, N), force=True); G.put(gp, 's_cbranch_scc0 %s' % lab, force=True)
            G.put(gp, 's_nop 15', force=True)
            if N < 7: G.put(gp, I(lab + ':'), force=True)
        return
    cond = OPT['padit'] or OPT['padfrom']
    if cond and t >= 28:
        if OPT['padit']: return
        cond = False
    for k in range(n):
        gp = 10 + 12 * k
        if cond:
            lab = 'PAD_%d_%d_%d' % (t % 4, half, k)
            G.put(gp, ('s_cmp_lt_u32 s%d, %d' % (sLC, OPT['padit'])) if OPT['padit'] else ('s_cmp_ge_u32 s%d, %d' % (sLC, OPT['padfrom'])), force=True)
            G.put(gp, 's_cbranch_scc0 %s' % lab, force=True)
        G.put(gp, 's_nop 15', force=True)
        if cond: G.put(gp, I(lab + ':'), force=True)

def addr_chain(c):
    ch = ['v_mbcnt_lo_u32_b32 v255, -1, 0', 'v_mbcnt_hi_u32_b32 v255, -1, v255', 's_mov_b32 s%d, 229376' % sVO,
          'v_and_b32 vCC, 15, v255', 'v_lshrrev_b32 v254, 4, v255',
          'v_lshl_add_u32 v%d, v255, 9, s%d' % (vFL, sFLO), 'v_lshl_add_u32 v%d, vCC, 4, s%d' % (vRL, sRLO),
          'v_writelane_b32 v%d, s%d, 1' % (vFL, sFCO), 'v_mad_u32_u24 v%d, v254, s%d, v%d' % (vRL, sVO, vRL)]
    ch += ['v_add_u32 v%d, %d, v%d' % (vRL + j, j * 917504, vRL) for j in (1, 2, 3)]
    ch += ['v_and_b32 v255, 1, v254', 'v_mul_lo_u32 v255, v255, s%d' % sPCO, 'v_lshl_add_u32 v%d, vCC, 2, s%d' % (vPL, sPLO), 'v_add_u32 v%d, v255, v%d' % (vPL, vPL)]
    ch += ['v_lshrrev_b32 v255, 1, v254', 'v_lshlrev_b32 v254, 5, v254', 'v_lshl_add_u32 v254, v255, 20, v254', 'v_add_u32 v254, s%d, v254' % sOUO,
           'v_lshrrev_b32 v255, 2, vCC', 'v_lshl_add_u32 v254, v255, 3, v254', 'v_and_b32 v255, 3, vCC', 'v_mul_u32_u24 v255, 896, v255', 'v_add_u32 v%d, v255, v254' % vOUT]
    ch += ['v_and_b32 v255, 1, vCC', 'v_lshlrev_b32 v255, 4, v255', 'v_lshlrev_b32 v255, v255, v%d' % vSEL, 'v_lshrrev_b32 v%d, 1, vCC' % (vSEL + 3), 'v_lshlrev_b32 v%d, v%d, 1' % (vSEL + 3, vSEL + 3)]
    ch.insert(0, 'v_mov_b32 v%d, 0x3f80' % vSEL)
    for r in range(4): ch += ['v_bfe_i32 v%d, v%d, %d, 1' % (vSEL + r, vSEL + 3, r), 'v_and_b32 v%d, v255, v%d' % (vSEL + r, vSEL + r)]
    return [x.replace('vCC', 'v%d' % c) for x in ch]
def addr_fin(re): return (['v_mbcnt_lo_u32_b32 v243, -1, 0', 'v_mbcnt_hi_u32_b32 v243, -1, v243', 'v_and_b32 v243, 15, v243'] if re else []) + ['v_lshl_add_u32 v%d, v243, 2, s%d' % (vPL2, sPLO), 'v_mul_i32_i24 v%d, %d, v243' % (vB, OPT['ring'] - 2 * OPT['lag'] + 2)]
achain = []; adone = []; redo = {}
oblk = [(ds, qb) for ds in range(8) for qb in range(4)]
def oblock(ds, qb, tmp):
    return ['v_accvgpr_read_b32 v%d, a%d' % (tmp + 4 * T + r, O(2 * ds + T, qb) + r) for T in range(2) for r in range(4)] + ['v_cvt_pk_bf16_f32 v%d, v%d, v%d' % (Q(ds, qb) + j, tmp + 2 * j, tmp + 2 * j + 1) for j in range(4)]
def fit_chain(G, items, lo, hi):
    use = {}; pl = []; gp = lo
    for c in items:
        while gp <= hi and G.used[gp] + use.get(gp, 0) + 1 > G.cap: gp += 1
        if gp > hi: return None
        pl.append(gp); use[gp] = use.get(gp, 0) + 1
    return pl
def step(t):
    o = []
    cur = t & 1
    max3 = I('v_max3_f32 v%d, v%d, v%d, v%d' % (vTM, LT0, LT0 + 1, LT0 + 2))
    ladd = [I('v_add_f32 v%d, v%d, v%d' % (L0 + q, L0 + q, LT0 + q)) for q in range(4)]
    if t < 28: dK = [dma_dyn('K', t + LEAD + (t < 4 * NA) * OPT['ka'], p) for p in range(4)]; dV = [dma_dyn('V', t + LEAD - (t >= 4 * NA), p) for p in range(4)]
    else:
        dK = [dma_kv_imm('K', t + LEAD, p, sT0) if t + LEAD < 32 else dma_wo(*WOS[t, 0], p, sT0) for p in range(4)]
        dV = [dma_kv_imm('V', t + LEAD - 1, p, sT0) if t + LEAD < 33 else dma_wo(*WOS[t, 1], p, sT0) for p in range(4)]
    if t < 31:
        G = Gaps(qk_mfmas(t + 1, False))
        eg = [0, 4, 5, 8, 12, 13] + [4 * g for g in range(4, 14)]
        if CH & 1:
            qk_reads(G, t + 1, lambda n: rd_v(t, n), ('fV', t, 0, 1))
            eg = [8 * g + k for g in range(7) for k in ((1, 3) if OPT['w2'] else (0, 2, 4) if g < 2 else (0, 3))][:16]
            if OPT['w2']: eg = sorted(eg + [5, 13])
        for g in range(0 if CH & 1 else 16):
            nx = g + 4
            for r in (rd_k(t + 1, nx) if nx < 16 else rd_v(t, nx - 16)): G.put(4 * g + 3, r)
            G.put(4 * g + 2, W(lg=('fK', t + 1, g + 1, 1) if g < 15 else ('fV', t, 0, 1)))
        pend = place_softmax(G, cur, (2, 3), eg)
        put_dmas(G, dK, {4: [5, 7, 9, 11], 3: [5, 8, 11], 2: [6, 10], 1: [8], 0: []}[len(dK)])
        if t == 28 and LEAD == 4:
            cz = G.chain(['v_mbcnt_lo_u32_b32 v%d, -1, 0' % vTM, 'v_and_b32 v%d, 3, v%d' % (vTM, vTM), 'v_lshlrev_b32 v%d, 2, v%d' % (vTM, vTM)], 1, 20)
            softplace(G, I('buffer_load_dword v%d, v%d, %s, s%d offen sc1' % (vCAS, vTM, sr(SDBG), sCO), tag=('Chk',)), cz + 1, 20)
        idx = [k for k, (ins, lo) in enumerate(pend) if ins.mn == 'v_add_f32' and ins.ops[0] == 'v%d' % (LT0 + 2)][-1]
        pend.insert(idx + 1, (max3, pend[idx][1]))
        cg = place_chain(G, pend)
        ck = check_items(t)
        cg = G.place(ck[0], cg); cg = G.place(ck[1], cg); cg = cgb = G.place(ck[2], cg + 1); G.put(cg, ck[3])
        assert cg >= 40
        G.chain(ladd, cg)
        if t < 28:
            cz = place_groups(G, dyn_next('K', t % 4), 0, 19)
            place_groups(G, dyn_next('V', t % 4) + ([['s_lshr_b64 %s, %s, 4' % (sr(sMK, 2), sr(sMK, 2))]] if t % 4 == 3 else []), cz + 1, 63)
        if t < 30: place_groups(G, kswitch(t + 2), 48, 63)
        place_groups(G, [[adv(sKO)[0].text]], cg + 1, 63)
        if t == 28 and OPT['ovp']: achain[:] = addr_chain(246)
        if t >= 28 and OPT['ovp']:
            cz = 0
            redo['RS_%d' % (100 + t)] = list(adone)
            while achain and fit_chain(G, achain[:1], cz, 63):
                adone.append(achain.pop(0)); cz = G.place(adone[-1], cz)
                if cz < cgb: redo['RS_%d' % (100 + t)].append(adone[-1])
            redo['RS_131'] = list(adone)
        padput(G, (OPT['pad'] + 1) // 2, t, 0)
        o += G.flat()
    else:
        for pre, d in dK: o += pre; o.append(I('s_nop 0')); o.append(d)
        i0 = softmax_items(cur, 2); i1 = softmax_items(cur, 3)
        for x, y in zip(i0, i1): o.append(x[2]); o.append(y[2])
        o.append(max3); o += check_items(t); o += ladd
    G = Gaps(pv_mfmas(t))
    if t < 30: nxt_rd = lambda n: rd_k(t + 2, n); nxt_tag = ('fK', t + 2, CH & 1, 1); vmw = [('K', t + 2, 3), ('V', t + 1, 3)] + ([('Chk',)] if t == 29 else [])
    elif t == 30: nxt_rd = lambda n: rd_v(31, n); nxt_tag = ('fV', 31, 0, 1); vmw = [('V', 31, 3)]
    else: nxt_rd = lambda n: rd_wo(0, n); nxt_tag = ('fWo', 0, 0, 1); vmw = [('Wo', 0, 1, 3)]
    for g in range(16):
        nx = g + 4
        if g == 15 and CH & 1 and t < 30: G.put(63, W(lg=nxt_tag))
        for r in (rd_v(t, nx) if nx < 16 else nxt_rd(nx - 16)): G.put(4 * g + 3, r)
        if g == 15 and CH & 1 and t < 30: pass
        elif g == 12:
            G.put(4 * g + 2, W(lg=('fV', t, g + 1, 1), vm=vmw)); G.put(4 * g + 2, 's_barrier')
        else: G.put(4 * g + 2, W(lg=('fV', t, g + 1, 1) if g < 15 else nxt_tag))
    pend = []
    if t < 31: pend = place_softmax(G, cur ^ 1, (0, 1), [4 * g for g in range(16)])
    grp = {4: [1, 3, 5, 7], 3: [1, 4, 7], 2: [2, 6], 1: [4], 0: []}[len(dV)]
    if OPT['pfl'] and t < 28:
        if t == 0 and pfstate['n'] != OPT['pfl']: raise SystemExit('last pfq must equal pfl')
        dV = dV + pf_items(OPT['pfl']); grp = grp + [10, 11]
    if t >= 28:
        for k, r in enumerate(pt_at(2 * (t - 28) + 1)): dV = dV + [pt_items(r)]; grp = grp + [(11 if t < 31 else 14) + k]
    put_dmas(G, dV, grp)
    place_chain(G, pend)
    if t < 31:
        pass
    if OPT['warm'] & 4 and OPT['woat'] == 100 + t:
        cz = 0
        for c in ['v_mbcnt_lo_u32_b32 v244, -1, 0', 's_lshl_b32 s37, s4, 2', 'v_bfe_u32 v%d, v244, 3, 2' % vTM, 's_add_u32 s37, s37, s3', 'v_and_b32 v244, 7, v244', 's_mul_i32 s37, s37, 3584',
                  'v_min_u32 v244, 6, v244', 'v_mul_u32_u24 v%d, 896, v%d' % (vTM, vTM), 'v_lshl_add_u32 v%d, v244, 7, v%d' % (vTM, vTM)]: cz = softplace(G, c, cz, cz + 4)
        softplace(G, I('buffer_load_dword v244, v%d, %s, s37 offen %s' % (vTM, sr(SWO), OPT['warmpol'].replace('+', ' ').replace('none', '')), tag=('PF',)), cz + 1, cz + 8)
    padput(G, OPT['pad'] // 2, t, 1)
    if t == 28 and LEAD < 4:
        cz = 34
        for c in ['v_mbcnt_lo_u32_b32 v%d, -1, 0' % vTM, 'v_and_b32 v%d, 3, v%d' % (vTM, vTM), 'v_lshlrev_b32 v%d, 2, v%d' % (vTM, vTM)]: cz = softplace(G, c, cz, cz + 3)
        softplace(G, I('buffer_load_dword v%d, v%d, %s, s%d offen sc1' % (vCAS, vTM, sr(SDBG), sCO), tag=('Chk',)), cz + 1, cz + 6)
    if OPT['ptl'] and 4 * PEEL <= t < 28:
        cz = softplace(G, I('buffer_load_dword v245, v246, %s, s36 offen %s' % (sr(SWS), OPT['ptpol'].replace('+', ' ')), tag=('PT', t)), 37, 45)
        softplace(G, 's_add_u32 s36, s36, %d' % (128 * OPT['ptl']), cz + 1, cz + 6)
    if OPT['ptl'] and t == 4 * PEEL - 1:
        cz = 30
        for c in ['v_mbcnt_lo_u32_b32 v246, -1, 0', 's_mul_i32 s36, s3, %d' % (OPT['ring'] * 4096), 'v_min_u32 v246, %d, v246' % (OPT['ptl'] - 1),
                  's_add_u32 s36, s36, s%d' % sPO, 'v_lshlrev_b32 v246, 7, v246']: cz = softplace(G, c, cz, cz + 4)
    if t == 30 and OPT['ptouch'] and not OPT['ptl'] and not OPT['ptat']:
        sh = OPT['ptouch']; R = OPT['ring']
        cz = 32
        for c in ['v_mbcnt_lo_u32_b32 v%d, -1, 0' % vTM, 's_mul_i32 s%d, s3, %d' % (sVO, R * 4096), 'v_mbcnt_hi_u32_b32 v%d, -1, v%d' % (vTM, vTM),
                  's_add_u32 s%d, s%d, s%d' % (sVO, sVO, sPO), 'v_lshlrev_b32 v%d, %d, v%d' % (vTM, sh, vTM)]: cz = softplace(G, c, cz, cz + 3)
        n = -(-R * 4096 // (64 << sh))
        for k in range(n):
            cz = softplace(G, I('buffer_load_dword v%d, v%d, %s, s%d offen' % (vFV, vTM, sr(SWS), sVO), tag=('PT', k)), cz + 1, min(63, cz + 4))
            if k < n - 1: cz = softplace(G, 's_add_u32 s%d, s%d, %d' % (sVO, sVO, 64 << sh), cz + 1, cz + 4) + 4
    if t == 29:
        ch = ['v_cmp_ne_u32 vcc, s%d, v%d' % (sFULL, vCAS), 'v_mbcnt_lo_u32_b32 v%d, -1, 0' % vTM, 's_or_b32 s%d, s6, s3' % sVO, 'v_or_b32 v%d, s%d, v%d' % (vTM, sVO, vTM),
              's_cmp_eq_u64 vcc, 0', 's_cselect_b32 s%d, 32, 64' % sVO, 'v_lshlrev_b32 v%d, 8, v%d' % (vTM, vTM), 's_or_b32 s%d, s%d, s%d' % (sVO, sVO, sREG), 'v_mov_b32 v%d, s%d' % (vCAS, sVO),
              I('buffer_store_byte v%d, v%d, %s, s%d offen' % (vCAS, vTM, sr(SDBG), sCO), tag=('Dec',))]
        cz = 52
        for k, c in enumerate(ch): cz = softplace(G, c, min(63, cz + (k in (4, 9))), min(63, cz + 2))
    if 4 * PEEL <= t < 28 and t % 4 == 3:
        gp = G.place('s_add_u32 s%d, s%d, 1' % (sLC, sLC), 44); G.place('s_cmp_lt_u32 s%d, %d' % (sLC, NA if t < 4 * NA else 7), max(gp + 1, 52))
        G.put(63, 's_cbranch_scc1 L_LOOP%s' % ('A' if t < 4 * NA else ''), force=True)
    if t == 31:
        ch = []
        for sw in ('v_permlane32_swap_b32', 'v_permlane16_swap_b32'):
            ch += ['v_mov_b32 v%d, v%d' % (LT0 + q, L0 + q) for q in range(4)]
            ch += ['%s v%d, v%d' % (sw, L0 + q, LT0 + q) for q in range(4)]
            ch += ['v_add_f32 v%d, v%d, v%d' % (L0 + q, L0 + q, LT0 + q) for q in range(4)]
        ch += ['v_rcp_f32 v%d, v%d' % (L0 + q, L0 + q) for q in range(4)]
        if OPT['ovp']: G.cap = 3; G.put(OPT['decg'], dec_load(('DecL',)), force=True)
        G.chain(ch, 0)
        G.cap = 3
        if OPT['ovp']:
            G.chain(achain + addr_fin(True), 0)
            G.cap = OPT['oc']; cz = 0; k = 0
            pos = {m.ops[0]: j for j, m in enumerate(G.m)}
            while len(oblk) > OPT['ov'] and OPT['ovp'] == 1:
                ds, qb = oblk[0]; blk = oblock(ds, qb, 128 + 8 * (k % 4))
                pl = fit_chain(G, blk, max(cz, pos[ar(O(2 * ds + 1, qb))] + 3), 63)
                if not pl: break
                for gp, c in zip(pl, blk): G.put(gp, c)
                cz = pl[-1]; oblk.pop(0); k += 1
        else: G.chain(addr_chain(243) + addr_fin(False), 0)
    o += G.flat()
    return o

def pt_items(r):
    pre = ['v_mbcnt_lo_u32_b32 v%d, -1, 0' % vPT, 'v_min_u32 v%d, 31, v%d' % (vPT, vPT), 'v_lshlrev_b32 v%d, 7, v%d' % (vPT, vPT)]
    if r == 0: pre += ['s_lshl_b32 s36, s3, 12', 's_add_u32 s36, s36, s%d' % sPO]
    else: pre += ['s_add_u32 s36, s36, 16384']
    return [I(c) for c in pre] + [I('s_mov_b32 m0, %d' % (9 * SLOT))], I('buffer_load_dword v%d, %s, s36 offen %s lds' % (vPT, sr(SWS), OPT['ptpol'].replace('+', ' ')), tag=('PF',))
vPT = 231
def pt_at(code): return [r for r, c in enumerate(OPT['ptat']) if int(c, 36) == code]
def oconv():
    o = []
    assert not pt_at(8)
    k = 0; n = len(oblk) - OPT['ov']
    if OPT['orot']:
        assert n % 4 == 0
        o.append(I('s_mov_b32 s%d, 3' % sT1))
        for w in (1, 2, 3): o += [I('s_cmp_eq_u32 s3, %d' % w), I('s_cbranch_scc1 L_OC%d' % w)]
        o.append(I('L_OC0:'))
    while len(oblk) > OPT['ov']:
        ds, qb = oblk.pop(0); o += [I(c) for c in oblock(ds, qb, 128 + 8 * (k % 4))]; k += 1
        if OPT['orot'] and k % (n // 4) == 0:
            o += [I('s_sub_u32 s%d, s%d, 1' % (sT1, sT1))]
            o += [I('s_cbranch_scc1 L_OCE'), I('L_OC%d:' % (k // (n // 4)))] if k < n else [I('s_cbranch_scc0 L_OC0'), I('L_OCE:')]
    print('; oconv exposed blocks', k, file=sys.stderr)
    return o

def ringadv(reg, hc, R):
    return 's_add_u32 s%d, s%d, 16384' % (reg, reg) if (hc + 1) % R else 's_sub_u32 s%d, s%d, %d' % (reg, reg, (R - 1) * 16384)
def epi_items(hc, pol, R=14):
    buf = hc & 1; it = []
    if R != 14 and hc < R and OPT['st0pol']: pol = OPT['st0pol'].replace('+', ' ')
    if R != 14 and hc >= 14 - OPT['stlast']: pol = OPT['stpol2'].replace('+', ' ')
    for qb in range(4):
        b = S(buf, qb)
        for j in range(4):
            it.append(I('v_mul_f32 v%d, v%d, v%d' % (b + 2 * j, b + 2 * j, L0 + qb)))
            it.append(I('v_mul_f32 v%d, v%d, v%d' % (b + 2 * j + 1, b + 2 * j + 1, L0 + qb)))
            it.append(I('v_cvt_pk_bf16_f32 v%d, v%d, v%d' % (b + j, b + 2 * j, b + 2 * j + 1)))
        it.append(I('buffer_store_dwordx4 %s, v%d, %s, s%d offen offset:%d %s' % (vr(b), vST, sr(SWS), sPO, qb * 1024, pol), tag=('St', hc, qb)))
    it.append(I(ringadv(sPO, hc, R)))
    return it

def wo_frag(hc, n):
    if CH & 4 and (hc or not OPT['ov']): return 2 * (n >> 2) + (n & 1), (n >> 1) & 1
    return n >> 1, n & 1
def rd_wo8(hc, n):
    ds, T = wo_frag(hc, n)
    nt = 2 * (hc & 1) + T
    r = RING8(n)
    return [I('ds_read_b64_tr_b16 %s, v%d offset:%d' % (vr(r + 2 * rho, 2), vOA + nt, (4 * ds + 2 * rho) * 1088), tag=('fWo', hc, n, rho)) for rho in (0, 1)]
def red_loads(hc, rb): return [I('buffer_load_dwordx4 %s, v%d, %s, s%d offen %s' % (ar(rb + 4 * j), vRL + j, sr(SWS), sCO, 'sc1' if hc == 99 else OPT['rlpol'].replace('+', ' ').replace('none', '')), tag=('RL', hc, j)) for j in range(4)]
def red_mfmas(rb, d=vRD): return [I('%s %s, %s, %s, %s' % (MF, vr(d), vr(vSEL), ar(rb + 4 * j), vr(d) if j else '0')) for j in range(4)]
def red_out(hc, d=vRD, cv=vCV):
    return [I('v_cvt_pk_bf16_f32 v%d, v%d, v%d' % (cv, d, d + 1)), I('v_cvt_pk_bf16_f32 v%d, v%d, v%d' % (cv + 1, d + 2, d + 3)),
            I('buffer_store_dwordx2 %s, v%d, %s, 0 offen offset:%d %s' % (vr(cv, 2), vOUT, sr(SOUT), hc * 64, OPT['outpol'].replace('+', ' ')), tag=('Out', hc))]
def poll(tag, a=vPL): return I('buffer_load_dword v%d, v%d, %s, 0 offen sc1' % (vPR, a, sr(SWS)), tag=tag)
def flag(val):
    R, LAG = OPT['ring'], OPT['lag']
    if val + 1 - LAG >= 0: r = [I('v_add_u32 v%d, %d, v%d' % (vFV, val, vB))]
    else: r = [I('v_mov_b32 v%d, %d' % (vFV, R - LAG + 1)), I('v_writelane_b32 v%d, %d, 0' % (vFV, val))]
    return r + [I('buffer_store_dword v%d, v%d, %s, 0 offen' % (vFV, vFL, sr(SWS)), tag=('Fl', val))]
spins = []
def spin_stub(lab, thr, a):
    o = []
    A = lambda s: o.append(I(s))
    A('%s:' % lab); A('s_movk_i32 s%d, 0x7fff' % sT1)
    A('%s_L:' % lab); o.append(poll(None, a)); A('s_waitcnt vmcnt(0)'); A('v_cmp_gt_u32 vcc, %d, v%d' % (thr, vPR))
    A('s_sub_u32 s%d, s%d, 1' % (sT1, sT1)); A('s_cbranch_scc1 %s_RET' % lab); A('s_cbranch_vccnz %s_L' % lab); A('s_branch %s_RET' % lab)
    return o

def softplace(G, ins, lo, hi=None):
    if isinstance(ins, str): ins = I(ins)
    hi = G.n - 1 if hi is None else hi
    for gp in range(lo, hi + 1):
        if G.fits(gp, ins): return G.put(gp, ins)
    for extra in (1, 2, 3, 4):
        for gp in range(lo, hi + 1):
            if G.used[gp] + ins.cost <= G.cap + extra and not (ins.kind == 'ds' and any(x.kind == 'valu' for x in G.g[gp])):
                return G.put(gp, ins, force=True)
    raise AssertionError(('no room', ins.text))

def phase3(fast):
    o = []
    LAG = OPT['lag']
    pol = OPT['stpol'].replace('+', ' ') if fast else 'sc1'
    R = OPT['ring'] if fast else 14
    for hc in range(14):
        p = hc
        mf = []
        consume = fast and p - LAG - 1 >= 0
        red = red_mfmas(0) if consume else []
        rpos = {40: 0, 42: 1, 44: 2, 46: 3}
        gi = {}
        chd = wo_frag(hc, 1) == (1, 0)
        for k in range(64):
            n, qb = (2 * (k >> 3) + (k & 1), (k >> 1) & 3) if chd else (k >> 2, k & 3)
            if CH & 8 and (k >> 3 if chd else k >> 2) & 1: qb = 3 - qb
            ds, T = wo_frag(hc, n)
            d = vr(S(hc & 1, qb, T))
            if red and k in rpos: mf.append(red[rpos[k]])
            gi[k] = len(mf)
            mf.append(I('%s %s, %s, %s, %s' % (MF, d, vr(RING8(n)), vr(Q(ds, qb)), d if ds else '0')))
        G = Gaps(mf)
        ch = hc >> 1
        dopoll = fast and p >= LAG
        if consume:
            rl = red_loads(p - LAG - 1, 0)
            G.put(0, rl[2]); G.put(5, rl[3]); G.put(6, ringadv(sCO, p - LAG - 1, R))
        if dopoll: G.put(OPT['ppos'], poll(('Poll', p)))
        for g in range(16):
            nx = g + 7
            if nx < 16 or hc < 13:
                for r in (rd_wo8(hc, nx) if nx < 16 else rd_wo8(hc + 1, nx - 16)): G.put(gi[4 * g + 3], r)
            if g & 1:
                if g < 15: lg = ('fWo', hc, g + 2 if g < 14 else 15, 1)
                else: lg = ('fWo', hc + 1, 1, 1) if hc < 13 else None
                vm = []
                if g == 9:
                    if (hc & 1) and hc < 13: vm.append(('Wo', ch + 1, 1, 3))
                    if dopoll: vm.append(('Poll', p))
                    elif fast and p >= 2: vm.append(('St', p - 2, 3))
                if lg or vm: G.put(gi[4 * g + 2], W(lg=lg, vm=vm or None))
                if g == 9 and (hc & 1) and hc < 13: G.put(gi[4 * g + 2], 's_barrier')
        dm = []
        if hc in WOS: dm = [dma_wo(*WOS[hc], q, sT0) for q in range(4)]
        grp = ([4, 5, 7, 8] if fast else [1, 2, 3, 4])[:len(dm)]
        if fast:
            for r in pt_at(9 + hc): dm = [pt_items(r)] + dm; grp = [2] + grp
        put_dmas(G, dm, grp)
        after = gi[38] + 1
        stlo = 0
        if fast and p >= 2:
            f = flag(p - 1)
            cg = G.chain(f[:-1], 30); softplace(G, f[-1], max(after, cg + 1))
        if dopoll:
            lab = 'SP_%d' % p
            spins.append((lab, p - LAG + 1, vPL))
            cg = G.place('v_cmp_gt_u32 vcc, %d, v%d' % (p - LAG + 1, vPR), after)
            cg = G.place('s_cbranch_vccnz %s' % lab, cg + 1); G.put(cg, I('%s_RET:' % lab))
            stlo = cg + 1
            rl = red_loads(p - LAG, 0)
            softplace(G, rl[0], gi[53]); softplace(G, rl[1], gi[61])
        og = 0
        if fast and p - LAG - 2 >= 0: og = softplace(G, red_out(p - LAG - 2)[2], gi[44])
        if consume:
            ro = red_out(p - LAG - 1)
            cg = softplace(G, ro[0], max(gi[46] + 6, og + 1)); cg = softplace(G, ro[1], cg)
        if hc < 12:
            delta = (WOB[(ch + 1) % 4] - WOB[ch % 4]) * SLOT
            pair = (0, 1) if hc % 2 == 0 else (2, 3)
            for nt in pair:
                softplace(G, ('v_add_u32 v%d, %d, v%d' % (vOA + nt, delta, vOA + nt)) if delta > 0 else ('v_subrev_u32 v%d, %d, v%d' % (vOA + nt, -delta, vOA + nt)), gi[36])
        if hc == 0:
            G.cap = OPT['oc']; cz = 0
            for k, (ds, qb) in enumerate(oblk):
                for c in oblock(ds, qb, 160 + 8 * (k % 4)): cz = softplace(G, c, cz, gi[8 * ds] - 2)
        if hc > 0:
            cur = 0; last = stlo
            ep = epi_items(hc - 1, pol, R)
            if stlo:
                pre = {}
                for ins, tg in zip([x for x in ep if x.kind == 'vst'][:3], (stlo, gi[46], gi[50])): last = pre[ins.tag] = softplace(G, ins, tg)
            for ins in ep:
                if ins.kind == 'vst':
                    if stlo and ins.tag in pre: assert cur < pre[ins.tag], (hc, ins.tag, cur, pre)
                    else: last = softplace(G, ins, max(cur + 1, last))
                elif ins.kind == 'salu': softplace(G, ins, last)
                else: cur = softplace(G, ins, cur)
        o += G.flat()
    if not fast:
        o.append(I('s_nop 7'))
        o += epi_items(13, pol, R)
    return o

def fast_tail():
    o = []
    A = lambda s: o.append(I(s))
    LAG = OPT['lag']; R = OPT['ring']
    h0 = 13 - LAG
    ep = epi_items(13, OPT['stpol'].replace('+', ' '), R)
    rl = red_loads(h0, 0)
    o += rl[2:]; A(ringadv(sCO, h0, R))
    o.append(poll(('Poll', 14)))
    f = flag(13); o += f[:-1]
    A('s_nop 2')
    o += ep[:12]
    o.append(W(vm=('Poll', 14))); o.append(f[-1])
    spins.append(('SP_14', 15 - LAG, vPL))
    A('v_cmp_gt_u32 vcc, %d, v%d' % (15 - LAG, vPR)); o += ep[13:15]; A('s_cbranch_vccnz SP_14'); A('SP_14_RET:')
    o.append(ep[12]); o += ep[15:-1]
    o += red_loads(h0 + 1, 16); A(ringadv(sCO, h0 + 1, R))
    o.append(red_out(h0 - 1)[2])
    o += red_mfmas(0)
    A('v_mov_b32 v%d, 14' % vFV)
    o.append(W(vm=('St', 13, 3)))
    o.append(I('buffer_store_dword v%d, v%d, %s, 0 offen' % (vFV, vFL, sr(SWS)), tag=('Fl', 14)))
    o.append(poll(('Poll', 15), vPL2))
    o.append(W(vm=('RL', h0 + 1, 3)))
    o += red_mfmas(16, 128)
    ro0 = red_out(h0); o += ro0[:2]
    o.append(W(vm=('Poll', 15)))
    spins.append(('SP_15', 14, vPL2))
    A('v_cmp_gt_u32 vcc, 14, v%d' % vPR); A('s_nop 0'); A('s_cbranch_vccnz SP_15'); A('SP_15_RET:')
    rest = list(range(h0 + 2, 14))
    for k, hc in enumerate(rest):
        o += red_loads(hc, 16 * k + 32); A(ringadv(sCO, hc, R))
    o.append(ro0[2])
    o += red_out(h0 + 1, 128, 132)
    mm = [red_mfmas(16 * k + 32, 136 + 8 * k) for k in range(len(rest))]
    o.append(W(vm=('RL', 13, 3)))
    for j in range(4):
        for m in mm: o.append(m[j])
    A('s_nop 7')
    for k, hc in enumerate(rest): o += red_out(hc, 136 + 8 * k, 140 + 8 * k)
    return o

def dec_load(tag=None): return I('buffer_load_dword v%d, off, %s, s%d sc1' % (vCAS, sr(SDBG), sCO), tag=tag)
def decide():
    o = []
    A = lambda s: o.append(I(s))
    o.append(W(vm=('DecL',)))
    A('v_readfirstlane_b32 s%d, v%d' % (sT0, vCAS))
    A('s_bitcmp1_b32 s%d, 5' % sT0); A('s_cbranch_scc0 L_DECIDE'); A('L_FAST:'); A('s_mov_b32 s%d, 0' % sCO)
    return o

def slow_path(pro):
    o = []
    A = lambda s: o.append(I(s))
    A('L_DECIDE:')
    A('v_mbcnt_lo_u32_b32 v237, -1, 0'); A('v_lshl_add_u32 v237, v237, 8, s6')
    A('s_mov_b32 s%d, 0x40000' % sLC)
    A('L_DEC_A:')
    o.append(dec_load()); A('s_waitcnt vmcnt(0)'); A('v_readfirstlane_b32 s%d, v%d' % (sT0, vCAS))
    A('s_bitcmp1_b32 s%d, 5' % sT0); A('s_cbranch_scc1 L_FAST')
    A('s_bitcmp1_b32 s%d, 6' % sT0); A('s_cbranch_scc1 L_SLOW')
    A('s_bitcmp1_b32 s%d, 7' % sT0); A('s_cbranch_scc0 L_DEC_V')
    A('s_xor_b32 s%d, s%d, s%d' % (sT0, sT0, sREG)); A('s_and_b32 s%d, s%d, 15' % (sT0, sT0)); A('s_cbranch_scc1 L_SLOW')
    A('s_sub_u32 s%d, s%d, 1' % (sLC, sLC)); A('s_cbranch_scc0 L_DEC_A'); A('s_branch L_SLOW')
    A('L_DEC_V:')
    A('s_or_b32 s%d, s%d, 64' % (sT0, sREG)); A('v_mov_b32 v%d, s%d' % (vCAS, sT0))
    A('buffer_store_byte v%d, v237, %s, s%d offen' % (vCAS, sr(SDBG), sCO)); A('s_waitcnt vmcnt(0)')
    o.append(dec_load()); A('s_waitcnt vmcnt(0)'); A('v_readfirstlane_b32 s%d, v%d' % (sT0, vCAS))
    A('s_bitcmp1_b32 s%d, 7' % sT0); A('s_cbranch_scc1 L_DEC_A')
    A('L_SLOW:')
    o += phase3(False)
    A('s_waitcnt vmcnt(0)'); A('buffer_wbl2 sc1'); A('s_waitcnt vmcnt(0)')
    A('s_barrier'); A('s_cmp_eq_u32 s3, 0'); A('s_cbranch_scc0 L_END')
    A('s_and_b32 s%d, s6, 3' % sT0); A('s_lshl_b32 s%d, s%d, 3' % (sT0, sT0)); A('s_lshl_b32 s%d, 16, s%d' % (sT0, sT0)); A('v_mov_b32 v%d, s%d' % (vCAS, sT0))
    A('v_and_b32 v255, -4, v237')
    A('buffer_atomic_or v%d, v255, %s, s%d offen sc0 sc1' % (vCAS, sr(SDBG), sCO)); A('s_waitcnt vmcnt(0)')
    A('v_mbcnt_lo_u32_b32 v255, -1, 0'); A('v_lshrrev_b32 v%d, 2, v255' % vCAS); A('v_lshlrev_b32 v255, 2, v255'); A('v_lshl_add_u32 v255, v%d, 8, v255' % vCAS)
    A('v_mov_b32 v%d, 0' % vCAS)
    A('buffer_atomic_or v%d, v255, %s, s%d offen sc0 sc1' % (vCAS, sr(SDBG), sCO)); A('s_waitcnt vmcnt(0)')
    A('s_mov_b32 s%d, 0x10101010' % sT0); A('v_and_b32 v%d, s%d, v%d' % (vCAS, sT0, vCAS)); A('v_cmp_eq_u32 vcc, s%d, v%d' % (sT0, vCAS))
    A('s_nop 1'); A('s_and_b32 s%d, vcc_lo, 15' % sT0); A('s_cmp_eq_u32 s%d, 15' % sT0); A('s_cbranch_scc0 L_END')
    A('buffer_inv sc1'); A('s_waitcnt vmcnt(0)')
    for j in range(4): A('v_subrev_u32 v%d, s%d, v%d' % (vRL + j, sRLO, vRL + j))
    A('v_subrev_u32 v%d, s%d, v%d' % (vOUT, sOUO, vOUT))
    A('s_mov_b32 s%d, 0' % sLC)
    A('L_SLOOP:')
    A('s_lshl_b32 s%d, s%d, 8' % (sCO, sLC))
    o += red_loads(99, 0)
    A('s_bfe_u32 s%d, s%d, 0x40002' % (sT0, sLC)); A('s_mul_i32 s%d, s%d, 14336' % (sT0, sT0))
    A('s_and_b32 s%d, s%d, 3' % (sT1, sLC)); A('s_mul_i32 s%d, s%d, 3584' % (sT1, sT1)); A('s_add_u32 s%d, s%d, s%d' % (sT0, sT0, sT1))
    A('s_andn2_b32 s%d, s%d, 63' % (sT1, sLC)); A('s_add_u32 s%d, s%d, s%d' % (sT0, sT0, sT1))
    A('s_waitcnt vmcnt(0)')
    o += red_mfmas(0); A('s_nop 7')
    ro = red_out(0); o += ro[:2]
    A('buffer_store_dwordx2 %s, v%d, %s, s%d offen' % (vr(vCV, 2), vOUT, sr(SOUT), sT0))
    A('s_add_u32 s%d, s%d, 1' % (sLC, sLC)); A('s_cmp_lt_u32 s%d, 896' % sLC); A('s_cbranch_scc1 L_SLOOP')
    A('s_waitcnt vmcnt(0)'); A('s_endpgm')
    return o

def rare(par):
    o = []
    A = lambda s: o.append(I(s))
    A('RARE_%d:' % par)
    A('s_nop 7'); A('s_nop 7')
    A('v_mbcnt_lo_u32_b32 v252, -1, 0'); A('v_mbcnt_hi_u32_b32 v252, -1, v252')
    A('v_and_b32 v253, 15, v252'); A('v_lshlrev_b32 v253, 9, v253'); A('v_lshrrev_b32 v252, 4, v252'); A('v_lshl_add_u32 v252, v252, 4, v253')
    A('s_sub_u32 s%d, s%d, %d' % (sR0, sKO, LEAD * TS))
    if OPT['km'] == 1: A('v_and_b32 v253, 0x1000, v252'); A('v_mul_u32_u24 v253, 31, v253'); A('v_add_u32 v252, v253, v252')
    if OPT['xr']: A('s_xor_b32 s%d, s%d, s%d' % (sR0, sR0, sXR))
    for T in range(2):
        if T: A('s_add_u32 s%d, s%d, %d' % (sR0, sR0, 262144 if OPT['km'] else 8192))
        for ds in range(0, 8, 2):
            A('buffer_load_dwordx4 v[244:247], v252, %s, s%d offen offset:%d' % (sr(SK), sR0, ds * 64))
            A('buffer_load_dwordx4 v[248:251], v252, %s, s%d offen offset:%d' % (sr(SK), sR0, ds * 64 + 64))
            A('s_waitcnt vmcnt(0)')
            for d2 in range(2):
                for qb in range(4):
                    d = vr(S(par, qb, T))
                    A('%s %s, %s, %s, %s' % (MF, d, vr(244 + 4 * d2), vr(Q(ds + d2, qb)), d if ds + d2 else vr(NEGM(qb))))
            A('s_nop 7')
    A('s_nop 7')
    for qb in range(4):
        b = S(par, qb); y = S(par ^ 1, qb)
        A('v_max3_f32 v253, v%d, v%d, v%d' % (b, b + 1, b + 2)); A('v_max3_f32 v253, v253, v%d, v%d' % (b + 3, b + 4))
        A('v_max3_f32 v253, v253, v%d, v%d' % (b + 5, b + 6)); A('v_max_f32 v253, v253, v%d' % (b + 7))
        for sw in ('v_permlane32_swap_b32', 'v_permlane16_swap_b32'):
            A('v_mov_b32 v254, v253'); A('s_nop 1'); A('%s v253, v254' % sw); A('v_max_f32 v253, v253, v254')
        A('v_max_f32 v253, 0, v253')
        A('v_exp_f32 v255, -v253')
        for r in range(4): A('v_sub_f32 v%d, v%d, v253' % (NEGM(qb) + r, NEGM(qb) + r))
        for k in range(8): A('v_sub_f32 v%d, v%d, v253' % (y + k, y + k))
        for k in range(8): A('v_sub_f32 v%d, v%d, v253' % (b + k, b + k))
        for kind, k, ins in softmax_items(par, qb):
            o.append(ins)
            if kind == 'e': A('s_nop 0')
        A('v_mul_f32 v%d, v%d, v255' % (L0 + qb, L0 + qb))
        for db in range(0, 16, 2):
            regs = [O(db + d, qb) + r for d in range(2) for r in range(4)]
            for k, a in enumerate(regs): A('v_accvgpr_read_b32 v%d, a%d' % (244 + k, a))
            for k, a in enumerate(regs): A('v_mul_f32 v%d, v%d, v255' % (244 + k, 244 + k))
            for k, a in enumerate(regs): A('v_accvgpr_write_b32 a%d, v%d' % (a, 244 + k))
    A('s_nop 1')
    A('s_setpc_b64 %s' % sr(sRET, 2))
    return o

def dump_v(first, nfrag):
    o = []
    A = lambda s: o.append(I(s))
    A('s_nop 7'); A('s_nop 7'); A('s_waitcnt vmcnt(0) lgkmcnt(0)')
    A('s_lshl_b32 s34, s%d, 17' % sBH); A('s_add_u32 s28, s50, s34'); A('s_addc_u32 s29, s51, 0'); A('s_mov_b32 s30, 131072')
    for f in range(nfrag):
        A('s_mov_b32 s35, %d' % ((f // 4) * 16384 + (f % 4) * 1024))
        A('buffer_store_dwordx4 %s, v%d, %s, s35 offen' % (vr(first + 4 * f), vST, sr(SWS)))
    A('s_waitcnt vmcnt(0)'); A('s_endpgm')
    return o

def stamps_out():
    o = []
    if not OPT['stamps']: return o
    A = lambda s: o.append(I(s))
    A('s_waitcnt vmcnt(0)')
    A('s_memrealtime s[94:95]'); A('s_waitcnt lgkmcnt(0)')
    A('s_add_u32 s28, s50, 0x4000000'); A('s_addc_u32 s29, s51, 0'); A('s_mov_b32 s30, 0x100000')
    A('s_lshl_b32 s34, s2, 2'); A('s_add_u32 s34, s34, s3'); A('s_lshl_b32 s34, s34, 7')
    A('v_mov_b32 v1, 0')
    for k in range(32):
        A('v_mov_b32 v0, s%d' % (sST + k)); A('buffer_store_dword v0, v1, %s, s34 offen offset:%d' % (sr(SWS), 4 * k)); A('s_nop 1')
    return o

def main_kernel():
    pre = setup()
    if OPT['stamps']: pre = [I('s_memrealtime s[92:93]')] + pre
    stamp(pre)
    p1 = phase1()
    if OPT['stop'] == 'q':
        body = pre + p1 + dump_v(0, 32); loop = None; post = []; slow = []
        stream = body
    else:
        stamp(p1)
        pro = prologue()
        stamp(pro)
        iters = [sum((step(4 * it + k) for k in range(4)), []) for it in range(7)]
        if OPT['stamps'] == 2:
            for it in iters:
                it[0:0] = [I('s_waitcnt lgkmcnt(0)'), I('s_memrealtime s[96:97]'), I('s_waitcnt lgkmcnt(0)'), ] + [I('s_mov_b32 s%d, s%d' % (64 + k, 65 + k)) for k in range(6)] + [I('s_mov_b32 s70, s96')]
        tail = []
        stamp(tail)
        for t in range(28, 32): tail += step(t)
        if OPT['odbl']: tail += [I('s_mov_b32 s%d, 0' % sVO), I('L_OD:')]
        stamp(tail)
        for n in (4, 5, 6): tail += rd_wo8(0, n)
        if not OPT['ovp']: tail.append(dec_load(('DecL',)))
        tail += oconv()
        if OPT['odbl']: tail += [I('s_add_u32 s%d, s%d, 1' % (sVO, sVO)), I('s_cmp_lt_u32 s%d, 2' % sVO), I('s_cbranch_scc1 L_OD')]
        slow = []
        if OPT['stop'] == 'o': tail += dump_v(0, 32)
        else:
            stamp(tail)
            tail += [W(lg=('fWo', 0, 1, 1))] + decide()
            common = pre + p1 + pro + sum(iters, []) + tail
            slow = slow_path(common)
            resolve_waits(common + slow); finalize_waits(slow)
            tail += phase3(True)
            stamp(tail)
            tail += fast_tail()
            stamp(tail)
            tail += stamps_out()
            tail += [I('s_waitcnt vmcnt(0)')]
        stream = pre + p1 + pro + sum(iters, []) + tail
    resolve_waits(stream)
    if OPT['stop'] != 'q' and PEEL < 7:
        if NA: unify_iters(iters[:NA])
        unify_iters(iters[PEEL + NA:])
    finalize_waits(stream)
    errs = check_hazards(stream, 'main')
    lastw = None
    for ins in stream:
        if ins.mn.startswith(('s_cselect', 's_cmov', 's_cbranch_scc')) and not lastw.startswith(('s_cmp', 's_bitcmp')) and 'L_OC' not in ins.text: errs.append('SCC from %s at %s' % (lastw, ins.text))
        if ins.mn == 's_addc_u32' and lastw != 's_add_u32': errs.append('SCC from %s at %s' % (lastw, ins.text))
        if ins.kind == 'branch' and ins.mn.startswith('s_cbranch_vcc'): lastw = 'call'
        if ins.kind == 'salu' and ins.mn not in NOSCC + ('s_bitset1_b32', 's_getreg_b32', 's_getpc_b64'): lastw = ins.mn
    if slow: errs += check_hazards(common + slow, 'slow')
    out = []
    if OPT['stop'] == 'q': out = stream
    else: out = pre + p1 + pro + sum(iters[:PEEL], []) + ([I('L_LOOPA:')] + iters[0] if NA else []) + ([I('L_LOOP:')] + iters[PEEL + NA] if PEEL < 7 else []) + tail
    out += [I('L_END:'), I('s_endpgm')]
    if OPT['stop'] != 'q':
        for lab, par in stubs:
            out += [I('%s:' % lab), I('s_call_b64 %s, RARE_%d' % (sr(sRET, 2), par))] + [I(c) for c in redo.get(lab, [])] + [I('s_nop 1'), I('s_branch %s_RET' % lab)]
        for lab, thr, a in spins: out += spin_stub(lab, thr, a)
        for par in (0, 1):
            r = rare(par); errs += check_hazards(r, 'rare'); out += r
        out += slow
    for e in errs[:40]: print('; ERROR', e, file=sys.stderr)
    if errs: raise SystemExit('hazard errors: %d' % len(errs))
    return out

def desc(name, vg, acc, y=False):
    return '''.amdhsa_kernel %s
  .amdhsa_next_free_vgpr %d
  .amdhsa_next_free_sgpr 102
  .amdhsa_accum_offset %d
  .amdhsa_group_segment_fixed_size 0
  .amdhsa_kernarg_size 64
  .amdhsa_user_sgpr_count 2
  .amdhsa_user_sgpr_kernarg_segment_ptr 1
  .amdhsa_system_sgpr_workgroup_id_x 1
%s.end_amdhsa_kernel''' % (name, vg, acc, '  .amdhsa_system_sgpr_workgroup_id_y 1\n' if y else '')

def fmt(ins):
    if ins.kind == 'dma' and ins.tag and OPT['nodma'] & {'X': 1, 'Wq': 2, 'K': 4, 'V': 4, 'Wo': 8, 'PF': 16}[ins.tag[0]]: return '    s_nop 0'
    if ins.kind == 'vst' and ins.tag and ins.tag[0] == 'St' and OPT['nost']: return '    s_nop 0'
    if OPT['noexp'] and ins.mn == 'v_exp_f32': return '    ' + ins.text.replace('v_exp_f32', 'v_mov_b32')
    k = OPT['kill']
    if ins.tag and ins.kind in ('vst', 'vld') and k & {'RL': 1, 'Out': 2, 'Poll': 4, 'Fl': 8, 'Reg': 32, 'Fz': 64, 'Dec': 128, 'Chk': 128}.get(ins.tag[0], 0): return '    s_nop 0'
    if k & 16 and ins.text.startswith('s_cbranch_vccnz SP_'): return '    s_nop 0'
    if k & 32 and ins.text.startswith('s_cbranch_scc0 L_DECIDE'): return '    s_nop 0'
    return ins.text if ins.kind == 'label' else '    ' + ins.text

if __name__ == '__main__':
    K1 = OPT['name'] + '_kernel'; K2 = 'mha_reduce_kernel'
    hdr = open('standalone__mha_block_cached__near_ridge.s.ref').read().split('; Override launch')[0]
    t = hdr
    t += '; @launch grid=(256,1,1) block=(256,1,1) lds=163840\n'
    t += '.amdgcn_target "amdgcn-amd-amdhsa--gfx950"\n.text\n'
    for K, body in ((K1, main_kernel()),):
        t += '.globl %s\n.p2align 8\n.type %s,@function\n%s:\n' % (K, K, K)
        t += '\n'.join((fmt(i).strip().replace(', ', ',') if OPT['tight'] else fmt(i)) for i in body) + '\n'
    t += '.section .rodata,"a"\n.p2align 6\n' + desc(K1, 512, 256) + '\n'
    sys.stdout.write(t)
```

```python
import sys, os
sys.path.insert(0, os.path.dirname(os.path.abspath(__file__)))
from asmlib import *

OPT = dict(cp2=0, dgk='579b', dgv='1357', na=0, ka=1, km=0, sw=0, odbl=0, orot=0, ov=0, ovp=0, oc=3, decg=2, xr=0, xs=0, pm=0, skip='1,9,10,9,19,9', tight=0, ncl=0, chain=0, w2=0, fill='04444444404', st0pol='', wsoff=0, ptat='', ptl=0, ptpol='', peel=0, lead=4, pre9=0, kp='', vp='', cpf=0, stlast=0, stpol2='sc1', outpol='', l2two='', tlbw=0, tlbs=16, warm=0, woat=6, warmpol='none', l2pf='', l2at='', l2pol='none', xpol='', wopol='', mix=0, pol2='', drop='', padp='', pad1='', padit=0, padfrom=0, pad=0, noexp=0, pf='', pfq='', pfl=0, pfpol='nt', ppos=12, prel=0, rlpol='sc1', kill=0, fuse=1, lag=3, ptouch=7, forceslow=0, map=1, ring=4, stpol='', wpol='', rot=0, kvpol='nt', nodma=0, nost=0, wq8=1, stop='', stamps=0, thr=0x47800000, name='standalone__mha_block_cached__near_ridge')
for a in sys.argv[1:]:
    k, v = a.split('=')
    OPT[k] = v if k in ('dgk', 'dgv', 'stop', 'name', 'kvpol', 'stpol', 'wpol', 'rlpol', 'pf', 'pfq', 'pfpol', 'padp', 'pad1', 'drop', 'pol2', 'l2pf', 'l2at', 'l2pol', 'xpol', 'wopol', 'warmpol', 'l2two', 'stpol2', 'outpol', 'kp', 'vp', 'ptpol', 'st0pol', 'ptat', 'fill', 'skip') else int(v, 0)

SLOT = 17408
MF = 'v_mfma_f32_16x16x32_bf16'
def vr(b, n=4): return 'v[%d:%d]' % (b, b + n - 1) if n > 1 else 'v%d' % b
def ar(b, n=4): return 'a[%d:%d]' % (b, b + n - 1) if n > 1 else 'a%d' % b
def sr(b, n=4): return 's[%d:%d]' % (b, b + n - 1)

SK, SV, SWQ, SX, SWO, SWS = 8, 12, 16, 20, 24, 28
sWL, sWL8, sT0, sT1 = 32, 33, 34, 35
sKO, sLC, sTHR, sSC, sRET, sR0, sVO = 52, 53, 54, 56, 58, 61, 62
sBH = 63
sST = 64
def Q(ds, qb): return 4 * (ds * 4 + qb)
def S(buf, qb, T=0): return 128 + 32 * buf + 8 * qb + 4 * T
def NEGM(qb): return 192 + 4 * qb
def RING(n): return 208 + 4 * (n % 4)
L0, LT0 = 224, 228
vKA, vVAe, vVAo, vDK, vDV, vDWo, vOA, vST, vTM = 232, 233, 234, 236, 237, 235, 238, 242, 243
vSEL, vRL, vFL, vPL, vOUT, vRD, vCV, vPR, vFV, vCAS = 244, 248, 252, 253, 254, 228, 232, 234, 237, 236
sPO, sCO, sREG, sFULL, sFLO, sPLO, sRLO, sOUO = 55, 60, 5, 7, 98, 99, 100, 101
sFCO, sPCO = 33, 63
vB, vPL2 = 243, 255
SDBG, SOUT = 20, 16
BSTRIDE, FLOFF = 3670528, 3670016
def RING8(n): return 192 + 4 * ((n + 4) % 8)
vWA0, vWA1, vWA80, vWA81, vXA, vDWq, vDX = 244, 245, 246, 247, 248, 249, 250
def O(db, qb): return 4 * (db * 4 + qb)
def ACC(ds, qb, T):
    if ds < 7: return vr(8 * (ds * 4 + qb) + 4 * T)
    return ar(8 * qb + 4 * T)
def XF(j, T, qb): return (32 if j % 6 == 0 else 48 + 32 * j) + 16 * T + 4 * qb
sWX, sXP = 91, 84
def ARING(n): return 64 + 4 * (n % 4)

nstamp = [0]
def stamp(out):
    if OPT['stamps'] in (0, 2): return
    k = nstamp[0]; nstamp[0] += 1
    out.append(I('s_waitcnt lgkmcnt(0)'))
    out.append(I('%s %s' % ('s_memrealtime' if OPT['stamps'] == 3 else 's_memtime', sr(sST + 2 * k, 2))))
    out.append(I('s_waitcnt lgkmcnt(0)'))

LEAD, PEEL, CH = OPT['lead'], OPT['peel'], OPT['chain']
NCL = OPT['ncl'] or 4 + (PEEL + 1) // 2
TS = {0: 16384, 1: 4096, 2: 8192}[OPT['km']]
NA = OPT['na']
assert not (NA and PEEL)
zq = []
def put_zeros(G, soft=False, lo=0):
    while zq and (soft or fit_chain(G, zq[:1], lo, G.n - 1)): lo = softplace(G, 'v_accvgpr_write_b32 a%d, 0' % zq.pop(0), lo)
def kslot(n): return 4 + n % 5
WOB = [7, 0, 4, 2]
sKS, sVS, sKE, sVE, sMK, sKBEG, sKEND, sCD, sCI, sKD = 38, 40, 42, 44, 46, 48, 49, 84, 86, 88
def mk_sched():
    avail = {('V', 0): 6, ('V', 1): 6, ('V', 2): 7, ('V', 3): 7, ('K', 4): 15, ('K', 0): 10, ('K', 1): 11, ('K', 2): 12, ('K', 3): 13}
    order = [('K', 0), ('K', 1), ('V', 0), ('K', 2), ('V', 1), ('K', 3), ('V', 2), ('K', 4), ('V', 3)]
    done = {k: 0 for k in order}; F = {}
    for per, c in zip(range(5, 16), OPT['fill']):
        F[per] = []
        for _ in range(int(c, 36)):
            k = [k for k in order if avail[k] <= per and done[k] < 4][0]
            F[per].append((k[0], k[1], done[k])); done[k] += 1
    assert all(v == 4 for v in done.values())
    return F
FILL = mk_sched()
def fill_dmas(per):
    r = []; prev = None
    for w, n, p in FILL.get(per, []):
        r.append(dma_kv_imm(w, n, p, sT0, prev != (w, n))); prev = (w, n)
    return r
if LEAD == 4: WOS = {(28, 0): (0, 0), (29, 0): (0, 1), (30, 0): (1, 0), (31, 0): (1, 1), (29, 1): (2, 0), (30, 1): (2, 1), (31, 1): (3, 0), 0: (3, 1), 2: (4, 0), 3: (4, 1), 4: (5, 0), 5: (5, 1), 6: (6, 0), 7: (6, 1)}
else: WOS = dict(zip([(29, 0), (30, 0), (30, 1), (31, 0), (31, 1)] + list(range(9)), [(c, h) for c in range(7) for h in range(2)]))
def dma_kv(which, tile, slot, p, soff):
    srd, vo = (SK, vDK) if which == 'K' else (SV, vDV)
    pre = [I('s_add_u32 m0, s%d, %d' % (sWL, slot * SLOT + p * 64))]
    pol = OPT['pol2'] if (which, p) in [('K', 3), ('V', 3), ('K', 1), ('V', 1), ('K', 2), ('V', 2)][:OPT['mix']] else OPT['kvpol']
    d = I('buffer_load_dwordx4 v%d, %s, s%d offen offset:%d %s lds' % (vo, sr(srd), soff, p * 1024, pol.replace('+', ' ')), tag=(which, tile, p))
    return pre, d
PM = OPT['pm']; sWK = 89 if PM else sWL
kpar = [0]
sXR = 90
def ktoggle(which, p):
    if which != 'K' or kpar[0] == p & 1: return []
    kpar[0] ^= 1
    return [I('v_xor_b32 v%d, 32, v%d' % (vDK, vDK))]
def dma_dyn(which, tile, p):
    srd, vo, e = (SK, vDK, sKE) if which == 'K' else (SV, vDV, sVE)
    if PM:
        pre = ktoggle(which, p) + ([I('s_add_u32 s%d, s%d, 4096' % (e + 1, e + 1))] if p else []) + [I('s_add_u32 m0, s%d, %d' % (e, p * 4352) if p else 's_mov_b32 m0, s%d' % e)]
        return pre, I('buffer_load_dwordx4 v%d, %s, s%d offen %s lds' % (vo, sr(srd), e + 1, OPT['kvpol'].replace('+', ' ')), tag=(which, tile, p))
    pre = [I('s_add_u32 m0, s%d, %d' % (e, p * 64) if p else 's_mov_b32 m0, s%d' % e)]
    return pre, I('buffer_load_dwordx4 v%d, %s, s%d offen offset:%d %s lds' % (vo, sr(srd), e + 1, p * 1024, OPT['kvpol'].replace('+', ' ')), tag=(which, tile, p))
def dyn_next(which, k):
    st, e, m, beg, end = (sKS, sKE, sMK, sKBEG, sKEND) if which == 'K' else (sVS, sVE, sMK + 1, sWK, sKBEG)
    return [['s_bitcmp1_b32 s%d, %d' % (m, k), 's_cselect_b64 %s, %s, %s' % (sr(e, 2), sr(sCD, 2), sr(st, 2)), 's_cselect_b64 %s, 0, %s' % (sr(sT0, 2), sr(sCI, 2))],
            ['s_add_u32 s%d, s%d, s%d' % (st + 1, st + 1, sT1)]] + ([['s_xor_b32 s%d, s%d, s%d' % (e + 1, e + 1, sXR)]] if OPT['xr'] else []) + [['s_add_u32 s%d, s%d, s%d' % (st, st, sT0)],
            ['s_cmp_eq_u32 s%d, s%d' % (st, end), 's_cmov_b32 s%d, s%d' % (st, beg)]]
NOSCC = ('s_mov_b32', 's_movk_i32', 's_mul_i32', 's_cselect_b32', 's_cselect_b64', 's_cmov_b32')
def place_groups(G, groups, lo, hi):
    cur = lo
    for grp in groups:
        grp = [I(c) for c in grp]
        for extra in (0, 1, 2):
            ok = None
            for st in range(cur, hi + 1):
                gp = st; pl = []; use = {}
                for k, ins in enumerate(grp):
                    while gp <= hi and G.used[gp] + use.get(gp, 0) + ins.cost > G.cap + extra: gp += 1
                    if gp > hi: pl = None; break
                    pl.append(gp); use[gp] = use.get(gp, 0) + ins.cost
                if pl and pl[0] == st and not any(x.kind == 'branch' or (x.kind == 'salu' and x.mn not in NOSCC) for q in range(pl[0] + 1, pl[-1] + 1) for x in G.g[q]):
                    ok = pl; break
            if ok: break
        assert ok, ('no room for group', grp)
        for gp, ins in zip(ok, grp): G.put(gp, ins, force=True)
        cur = ok[-1]
    return cur
def kswitch(n):
    if 4 * PEEL + 2 <= n < 30:
        return [['s_add_u32 s%d, s%d, s%d' % (sVO, sVO, sCI)], ['s_cmp_eq_u32 s%d, %d' % (sVO, 5 * SLOT), 's_cselect_b32 s%d, %d, s%d' % (sKD, -4 * SLOT, sCI), 's_cmov_b32 s%d, 0' % sVO],
                ['v_add_u32 v%d, s%d, v%d' % (vKA, sKD, vKA)]]
    return [['v_add_u32 v%d, %d, v%d' % (vKA, SLOT, vKA) if n % 5 else 'v_subrev_u32 v%d, %d, v%d' % (vKA, 4 * SLOT, vKA)]]
def dma_wq(tile, p, st):
    slot = 4 + (tile + 1) % 5
    pre = [I('s_add_u32 m0, s%d, %d' % (sWL8, slot * SLOT + p * 1088)), I('s_mov_b32 s%d, %d' % (st, tile * 32 * 8192 + p * 16384))]
    d = I('buffer_load_dwordx4 v%d, %s, s%d offen %s lds' % (vDWq, sr(SWQ), st, OPT['wpol'].replace('+', ' ')), tag=('Wq', tile, p))
    return pre, d
XB = lambda j: 34816 * (1 - (j & 1))
def dma_x(j, p, st=None):
    pre = [I('s_add_u32 m0, s%d, %d' % (sWX, XB(j) + p * 1088))]
    if p == 0 and j: pre = pre + [I('v_add_u32 v%d, 128, v%d' % (vDX, vDX))]
    d = I('buffer_load_dwordx4 v%d, %s, %s offen %s lds' % (vDX, sr(SX), 's%d' % (sXP + p - 1) if p else '0', OPT['xpol'].replace('+', ' ')), tag=('X', j, p))
    return pre, d
def dma_wo(chunk, half, p, st):
    slot = WOB[chunk % 4] + half
    pre = [I('s_add_u32 m0, s%d, %d' % (sWL, slot * SLOT + p * 1088)), I('s_mov_b32 s%d, %d' % (st, half * 128 * 896 + p * 7168 + chunk * 128))]
    d = I('buffer_load_dwordx4 v%d, %s, s%d offen %s lds' % (vDWo, sr(SWO), st, OPT['wopol'].replace('+', ' ')), tag=('Wo', chunk, half, p))
    return pre, d
def dma_kv_imm(which, tile, p, st, first=None):
    slot = kslot(tile) if which == 'K' else tile % 4
    if PM:
        pre = ktoggle(which, p) + [I('s_mov_b32 s%d, %d' % (st, tile * 16384 + p * 4096)), I('s_add_u32 m0, s%d, %d' % (sWK, slot * SLOT + p * 4352))]
        return pre, I('buffer_load_dwordx4 v%d, %s, s%d offen %s lds' % (vDK if which == 'K' else vDV, sr(SK if which == 'K' else SV), st, OPT['kvpol'].replace('+', ' ')), tag=(which, tile, p))
    pre, d = dma_kv(which, tile, slot, p, st)
    if first is None: first = p == 0
    if first: pre += [I('s_xor_b32 s%d, s%d, %d' % (st, sXR, tile * 16384) if OPT['xr'] else 's_mov_b32 s%d, %d' % (st, tile * TS))]
    return pre, d
def adv(so):
    return [I('s_add_u32 s%d, s%d, %d' % (so, so, TS))]

def rd_wq(tile, n):
    ds, T = n >> 1, n & 1
    slot = 4 + (tile + 1) % 5
    if slot == 8: a = (vWA80, vWA81)[(ds >> 1) & 1]; base = 0
    else: a = (vWA0, vWA1)[(ds >> 1) & 1]; base = (slot - 4) * SLOT
    r = ARING(n)
    return [I('ds_read_b64_tr_b16 %s, v%d offset:%d' % (ar(r + 2 * rho, 2), a, base + rho * 2176 + ds * 64 + T * 8), tag=('fWq', tile, n, rho)) for rho in (0, 1)]
def rd_x(j, qb, T):
    return I('ds_read_b128 %s, v%d offset:%d' % (ar(XF(j, T, qb)), vXA, XB(j) + qb * 2176 + T * 64), tag=('fX', j, qb, T))
def rd_k(t, n):
    T, ds = n >> 3, n & 7
    return [I('ds_read_b128 %s, v%d offset:%d' % (vr(RING(n)), vKA, T * 8704 + ds * 64), tag=('fK', t, n, 1))]
def rd_v(t, db):
    a = vVAo if db & 1 else vVAe
    r = RING(db)
    return [I('ds_read_b64_tr_b16 %s, v%d offset:%d' % (vr(r + 2 * rho, 2), a, (t % 4) * SLOT + rho * 8704 + db * 32), tag=('fV', t, db, rho)) for rho in (0, 1)]
def rd_wo(hc, n):
    ds, T = wo_frag(hc, n)
    nt = 2 * (hc & 1) + T
    r = RING(n)
    return [I('ds_read_b64_tr_b16 %s, v%d offset:%d' % (vr(r + 2 * rho, 2), vOA + nt, (4 * ds + 2 * rho) * 1088), tag=('fWo', hc, n, rho)) for rho in (0, 1)]

def put_dmas(G, dmas, groups):
    prev = 0
    for (pre, d), g in zip(dmas, groups):
        gp = 4 * g + 1
        G.put(gp, d)
    for (pre, d), g in zip(dmas, groups):
        gp = 4 * g + 1
        hi = gp - 1; got = []
        for ins in reversed(pre):
            for cand in range(hi, prev - 1, -1):
                if G.used[cand] + ins.cost <= G.cap:
                    G.used[cand] += ins.cost; got.append((cand, ins)); hi = cand; break
            else: G.used[hi] += ins.cost; got.append((hi, ins))
        for cand, ins in reversed(got): G.g[cand].append(ins)
        prev = gp + 1

def setup():
    o = []
    A = lambda s: o.append(I(s))
    A('s_cmp_ge_u32 s2, 256'); A('s_cbranch_scc1 L_END')
    A('s_load_dwordx16 s[36:51], s[0:1], 0')
    A('v_lshrrev_b32 v1, 6, v0'); A('v_and_b32 v0, 63, v0')
    A('v_readfirstlane_b32 s3, v1')
    A('s_and_b32 s4, s2, 7'); A('s_lshr_b32 s5, s2, 3')
    if OPT['cpf']:
        A('s_getpc_b64 s[8:9]'); A('s_lshl_b32 s6, s5, 2'); A('s_add_u32 s6, s6, s3'); A('s_mul_i32 s6, s6, %d' % (128 * NCL))
        A('s_mov_b32 s10, %d' % (16384 * NCL)); A('s_mov_b32 s11, 0x20000')
        A('v_min_u32 v201, %d, v0' % (NCL - 1)); A('v_lshlrev_b32 v201, 7, v201')
        o.append(I('buffer_load_dword v200, v201, s[8:11], s6 offen', tag=('CPF',)))
    if OPT['map'] == 0:
        A('s_and_b32 s6, s4, 3'); A('s_lshl_b32 s6, s6, 2'); A('s_and_b32 s7, s5, 3'); A('s_add_u32 s6, s6, s7')
        A('s_lshr_b32 s4, s4, 2'); A('s_lshl_b32 s4, s4, 3'); A('s_lshr_b32 s5, s5, 2'); A('s_add_u32 s4, s4, s5')
    else:
        A('s_lshr_b32 s6, s5, 1'); A('s_and_b32 s5, s5, 1'); A('s_lshl_b32 s4, s4, 1'); A('s_add_u32 s4, s4, s5')
    A('s_lshl_b32 s5, s4, 4'); A('s_add_u32 s%d, s5, s6' % sBH)
    A('s_mul_i32 s%d, s3, 4352' % sWL)
    A('s_and_b32 s7, s3, 1')
    if OPT['wq8']: A('s_lshl_b32 s7, s7, 3'); A('s_add_u32 s%d, s%d, s7' % (sWL8, sWL)); A('s_lshr_b32 s7, s7, 3')
    else: A('s_mov_b32 s%d, s%d' % (sWL8, sWL))
    A('v_and_b32 v1, 15, v0'); A('v_lshrrev_b32 v2, 4, v0'); A('v_bfe_u32 v3, v0, 2, 2'); A('v_and_b32 v4, 3, v0')
    A('v_lshrrev_b32 v5, 5, v0'); A('v_and_b32 v6, 31, v0')
    A('s_lshl_b32 s34, s3, 6'); A('v_lshrrev_b32 v7, 3, v0'); A('v_and_b32 v8, 2, v7'); A('v_add_u32 v7, s34, v7'); A('s_movk_i32 s35, 896')
    A('v_mul_lo_u32 v7, v7, s35'); A('v_and_b32 v9, 7, v0'); A('v_xor_b32 v8, v8, v9'); A('v_lshl_add_u32 v%d, v8, 4, v7' % vDX)
    A('s_lshl_b32 s%d, s%d, 1' % (sWX, sWL))
    for p in range(1, 8): A('s_movk_i32 s%d, %d' % (sXP + p - 1, p * 7168) if p < 5 else 's_mov_b32 s%d, %d' % (sXP + p - 1, p * 7168))
    A('s_lshl_b32 s34, s3, 3'); A('v_add_u32 v7, s34, v5'); A('v_lshlrev_b32 v7, 13, v7'); A('v_lshlrev_b32 v8, 3, v5')
    A('v_xor_b32 v8, v8, v6'); A('v_lshl_add_u32 v%d, v8, 4, v7' % vDWq)
    A('s_waitcnt lgkmcnt(0)')
    def srd(d, p, off, size):
        A('s_add_u32 s%d, s%d, %s' % (d, p, off)); A('s_addc_u32 s%d, s%d, 0' % (d + 1, p + 1))
        A('s_mov_b32 s%d, %s' % (d + 2, size)); A('s_mov_b32 s%d, 0x20000' % (d + 3))
    A('s_mul_i32 s34, s4, 229376'); srd(SX, 36, 's34', '229376')
    A('s_lshl_b32 s34, s6, 9'); A('s_sub_u32 s35, 3670016, s34'); srd(SWQ, 42, 's34', 's35')
    return o

def setup2():
    o = []
    A = lambda s: o.append(I(s))
    def srd(d, p, off, size):
        A('s_add_u32 s%d, s%d, %s' % (d, p, off)); A('s_addc_u32 s%d, s%d, 0' % (d + 1, p + 1))
        A('s_mov_b32 s%d, %s' % (d + 2, size)); A('s_mov_b32 s%d, 0x20000' % (d + 3))
    A('s_lshl_b32 s34, s%d, 19' % sBH); srd(SK, 38, 's34', '524288'); srd(SV, 40, 's34', '524288')
    A('s_mul_i32 s34, s6, 229376'); srd(SWO, 44, 's34', '229376')
    A('s_mul_i32 s34, s4, %d' % BSTRIDE)
    if OPT['wsoff']: A('s_add_u32 s34, s34, %d' % (OPT['wsoff'] << 20))
    srd(SWS, 50, 's34', str(BSTRIDE))
    tw = OPT['tlbw']
    if tw:
        A('s_mov_b32 m0, %d' % (9 * SLOT)); A('v_lshlrev_b32 v255, %d, v0' % OPT['tlbs'])
        if tw & 8: A('s_mul_i32 s34, s4, 229376'); srd(40, 46, 's34', '229376')
        for bit, r in ((1, SK), (1, SV), (16, SWQ), (16, SX), (2, SWO), (4, SWS), (8, 40)):
            if tw & bit: o.append(I('buffer_load_dword v255, %s, 0 offen nt lds' % sr(r), tag=('PF',)))
    A('s_mov_b32 s%d, 0x%x' % (sTHR, OPT['thr']))
    A('s_mov_b32 s%d, 0x3db8aa3b' % sSC); A('s_mov_b32 s%d, 0x3db8aa3b' % (sSC + 1))
    if OPT['rot'] == 0: A('s_mov_b32 s%d, 0' % sKO)
    elif OPT['rot'] == 1: A('s_and_b32 s%d, s%d, 31' % (sKO, sBH))
    elif OPT['rot'] == 2: A('s_lshr_b32 s%d, s2, 3' % sKO)
    elif OPT['rot'] == 3: A('s_mul_i32 s%d, s2, 11' % sKO); A('s_lshr_b32 s34, s2, 5'); A('s_add_u32 s%d, s%d, s34' % (sKO, sKO)); A('s_and_b32 s%d, s%d, 31' % (sKO, sKO))
    elif OPT['rot'] == 4: A('s_and_b32 s%d, s2, 7' % sKO); A('s_lshl_b32 s%d, s%d, 2' % (sKO, sKO))
    A('s_lshl_b32 s%d, s%d, 14' % (sKO, sKO)); A('s_mov_b32 s%d, s%d' % (sVO, sKO)); A('s_mov_b32 s%d, %d' % (sLC, PEEL))
    A('s_movk_i32 s35, 1088')
    A('v_lshrrev_b32 v7, 3, v1'); A('v_and_b32 v8, 2, v1'); A('v_xor_b32 v8, v8, v2'); A('v_lshlrev_b32 v8, 4, v8')
    A('v_and_b32 v9, 7, v1'); A('v_lshl_add_u32 v8, v9, 7, v8'); A('v_mad_u32_u24 v8, v7, s35, v8'); A('v_lshl_add_u32 v%d, s%d, 1, v8' % (vXA, sWL))
    A('v_lshrrev_b32 v9, 1, v3'); A('v_and_b32 v10, 1, v3')
    A('v_lshl_add_u32 v8, v2, 2, v9'); A('v_mul_lo_u32 v8, v8, s35'); A('v_lshl_add_u32 v8, v4, 4, v8')
    if OPT['wq8']: A('v_and_b32 v11, 1, v2'); A('v_lshl_add_u32 v8, v11, 3, v8')
    A('v_add_u32 v8, %d, v8' % (4 * SLOT))
    A('v_mul_u32_u24 v11, 640, v10'); A('v_add_u32 v%d, v8, v11' % vWA0)
    A('v_mul_u32_u24 v11, 384, v10'); A('v_add_u32 v%d, v8, v11' % vWA1)
    A('v_add_u32 v%d, %d, v%d' % (vWA80, 4 * SLOT, vWA0)); A('v_add_u32 v%d, %d, v%d' % (vWA81, 4 * SLOT, vWA1))
    A('v_lshrrev_b32 v8, 1, v1'); A('v_mul_lo_u32 v8, v8, s35'); A('v_and_b32 v11, 1, v1'); A('v_lshl_add_u32 v8, v11, 9, v8')
    A('v_lshl_or_b32 v11, v7, 1, v11'); A('v_xor_b32 v11, v11, v2'); A('v_add_u32 v8, %d, v8' % (4 * SLOT)); A('v_lshl_add_u32 v%d, v11, 4, v8' % vKA)
    A('v_lshl_add_u32 v8, v2, 1, v9'); A('v_mul_lo_u32 v8, v8, s35'); A('v_lshl_add_u32 v8, v4, 3, v8')
    A('v_mul_u32_u24 v11, 544, v10'); A('v_add_u32 v%d, v8, v11' % vVAe)
    A('v_mul_u32_u24 v11, 480, v10'); A('v_add_u32 v%d, v8, v11' % vVAo)
    A('s_lshl_b32 s34, s3, 12'); A('v_lshlrev_b32 v8, 9, v5'); A('v_add_u32 v8, s34, v8')
    if OPT['km'] == 1: A('s_mul_i32 s5, s3, %d' % (131072 - 4096)); A('v_add_u32 v8, s5, v8')
    if OPT['km'] == 2: A('s_lshr_b32 s5, s3, 1'); A('s_mul_i32 s5, s5, %d' % (262144 - 8192)); A('v_add_u32 v8, s5, v8')
    if PM: A('s_lshl_b32 s5, s3, 10'); A('v_lshlrev_b32 v8, 9, v5'); A('v_add_u32 v8, s5, v8'); A('v_xor_b32 v11, v5, v6'); A('v_lshl_add_u32 v%d, v11, 4, v8' % vDK)
    else: A('s_lshl_b32 s5, s7, 1'); A('v_or_b32 v11, s5, v5'); A('v_xor_b32 v11, v11, v6'); A('v_lshl_add_u32 v%d, v11, 4, v8' % vDK)
    A('v_lshlrev_b32 v11, 1, v5'); A('v_xor_b32 v11, v11, v6'); A('v_lshl_add_u32 v%d, v11, 4, v8' % vDV)
    A('v_lshlrev_b32 v8, 8, v3'); A('v_lshl_add_u32 v8, v2, 6, v8'); A('v_lshl_add_u32 v8, v4, 4, v8'); A('v_add_u32 v%d, s34, v8' % vST)
    A('s_lshl_b32 s34, s3, 5'); A('v_lshrrev_b32 v8, 3, v0'); A('v_add_u32 v8, s34, v8'); A('s_movk_i32 s5, 896'); A('v_mul_lo_u32 v8, v8, s5')
    A('v_and_b32 v11, 7, v0'); A('v_lshlrev_b32 v12, 1, v2'); A('v_xor_b32 v11, v11, v12'); A('v_lshl_add_u32 v%d, v11, 4, v8' % vDWo)
    A('v_lshrrev_b32 v8, 1, v2'); A('v_mul_lo_u32 v8, v8, s35'); A('v_and_b32 v11, 1, v2'); A('v_lshl_add_u32 v11, v11, 2, v3')
    A('v_lshl_add_u32 v8, v11, 7, v8'); A('v_lshl_add_u32 v8, v4, 3, v8'); A('v_lshrrev_b32 v11, 1, v11'); A('v_add_u32 v8, %d, v8' % (WOB[0] * SLOT))
    for nt in range(4):
        A('v_xor_b32 v12, %d, v11' % nt); A('v_lshl_add_u32 v%d, v12, 5, v8' % (vOA + nt))
    for qb in range(4): A('v_mov_b32 v%d, 0' % (L0 + qb))
    A('s_mul_i32 s%d, s6, 229376' % sPO)
    A('s_lshl_b32 s34, s3, 7'); A('s_lshl_b32 s35, s6, 2'); A('s_add_u32 s34, s34, s35'); A('s_add_u32 s%d, s34, %d' % (sFLO, FLOFF))
    A('s_lshr_b32 s34, s6, 2'); A('s_lshl_b32 s34, s34, 7'); A('s_add_u32 s%d, s34, %d' % (sPLO, FLOFF))
    A('s_lshl_b32 s34, s6, 10'); A('s_lshl_b32 s35, s3, 8'); A('s_add_u32 s%d, s34, s35' % sRLO)
    A('s_mul_i32 s34, s6, 14336'); A('s_mul_i32 s35, s3, 3584'); A('s_add_u32 s%d, s34, s35' % sOUO)
    A('s_lshl_b32 s%d, s4, 4' % sCO)
    A('s_getreg_b32 s34, hwreg(HW_REG_XCC_ID, 0, 4)')
    if OPT['forceslow'] == 1: A('s_and_b32 s34, s6, 1')
    A('s_or_b32 s%d, s34, 0x80' % sREG); A('s_mul_i32 s%d, s%d, 0x01010101' % (sFULL, sREG))
    A('s_and_b32 s34, s6, 3'); A('s_lshl_b32 s34, s34, 2'); A('s_add_u32 s34, s34, s3'); A('s_lshl_b32 s34, s34, 2'); A('s_add_u32 s34, s34, s%d' % sPLO); A('s_add_u32 s34, s34, 64')
    A('v_lshl_add_u32 v8, v0, 9, s%d' % sFLO); A('v_writelane_b32 v8, s34, 1')
    A('v_mul_u32_u24 v9, %d, v0' % (OPT['ring'] - OPT['lag'] + 1))
    o.append(I('buffer_store_dword v9, v8, %s, 0 offen' % sr(SWS), tag=('Fz',)))
    return o

sPF, sPFt, vPA, vPL128, vPD = 36, 37, 254, 255, 231
pfstate = dict(n=None)
def pf_items(n):
    pre = []
    if pfstate['n'] != n:
        pre += ['v_min_u32 v%d, %d, v%d' % (vPA, (n - 1) * 128, vPL128)]
        pfstate['n'] = n
    pre += ['s_mul_i32 s%d, s3, %d' % (sPFt, n * 128), 's_add_u32 s%d, s%d, s%d' % (sPFt, sPFt, sPF), 's_add_u32 s%d, s%d, %d' % (sPF, sPF, n * 512)]
    pol = OPT['pfpol'].replace('+', ' ').replace('none', '')
    lds = [I('buffer_load_dword v%d, %s, s%d offen %s lds' % (vPA, sr(r), sPFt, pol), tag=('PF',)) for r in (SK, SV)]
    return [([I(p) for p in pre] + [I('s_mov_b32 m0, %d' % (9 * SLOT))], lds[0]), ([], lds[1])]
l2state = dict(n=None)
def l2_items(k):
    its = [i for i, c in enumerate(OPT['l2pf']) if c != '0']
    it, st = its[k // 2], k & 1
    n = 4 * int(OPT['l2pf'][it], 36)
    pre = []
    if l2state['n'] != n:
        pre += ['v_min_u32 v254, %d, v251' % ((n - 1) * 128), 'v_add_u32 v254, v254, v255']; l2state['n'] = n
    pre += ['s_mov_b32 s%d, %d' % (sPFt, (4 * it + LEAD - st) * 16384), 's_mov_b32 m0, %d' % (9 * SLOT)]
    pol = OPT['l2pol'].replace('+', ' ').replace('none', '')
    return ([I(p) for p in pre], I('buffer_load_dword v254, %s, s%d offen %s lds' % (sr(SV if st else SK), sPFt, pol), tag=('PF',)))
def pflist(x): return [int(c, 36) for c in x]

def phase1():
    o = []
    k = 0
    for f, t, n in ((dma_x, 0, 8), (dma_wq, 0, 4), (dma_wq, 1, 4), (dma_x, 1, 8), (dma_wq, 2, 4), (dma_wq, 3, 4)):
        for p in range(n):
            pre, d = f(t, p, sT0 + (k & 1)); k += 1
            o += pre + ([I('s_nop 0')] if len(pre) < 2 else []); o.append(d)
    o += setup2()
    wp = OPT['warmpol'].replace('+', ' ').replace('none', '')
    if OPT['warm']: o.append(I('s_mov_b32 m0, %d' % (9 * SLOT)))
    if OPT['warm'] & 2:
        o += [I(c) for c in ['v_bfe_u32 v251, v0, 3, 2', 'v_and_b32 v252, 7, v0', 'v_min_u32 v252, 4, v252', 'v_mul_u32_u24 v251, 896, v251', 'v_lshl_add_u32 v251, v252, 7, v251',
              's_lshl_b32 s36, s6, 2', 's_add_u32 s36, s36, s3', 's_mul_i32 s36, s36, 3584', 's_add_u32 s36, s36, 256']]
        o.append(I('buffer_load_dword v251, %s, s36 offen %s lds' % (sr(SX), wp), tag=('PF',)))
    if OPT['warm'] & 1:
        o += [I(c) for c in ['v_min_u32 v252, 19, v0', 'v_lshrrev_b32 v252, 2, v252', 'v_lshlrev_b32 v252, 13, v252', 'v_lshl_add_u32 v252, v4, 7, v252',
              's_lshl_b32 s37, s4, 2', 's_add_u32 s37, s37, s3', 's_mul_i32 s37, s37, 40960', 's_add_u32 s37, s37, %d' % (128 * 8192)]]
        o.append(I('buffer_load_dword v252, %s, s37 offen %s lds' % (sr(SWQ), wp), tag=('PF',)))
    if OPT['warm'] & 4 and OPT['woat'] <= 14:
        o += [I(c) for c in ['v_bfe_u32 v253, v0, 3, 2', 'v_and_b32 v254, 7, v0', 'v_min_u32 v254, 6, v254', 'v_mul_u32_u24 v253, 896, v253', 'v_lshl_add_u32 v253, v254, 7, v253']]
    if OPT['l2pf']:
        o += [I('v_and_b32 v251, 15, v0'), I('v_lshlrev_b32 v251, 7, v251'), I('v_lshrrev_b32 v255, 4, v0'), I('v_lshlrev_b32 v255, 14, v255'),
              I('s_lshl_b32 s%d, s3, 12' % sPFt), I('v_add_u32 v255, s%d, v255' % sPFt)]
    o.append(W(vm=('Wq', 0, 3))); o.append(I('s_barrier'))
    for qb in range(4): o.append(rd_x(0, qb, 0))
    o += rd_wq(0, 0) + [rd_x(0, 0, 1), rd_x(0, 1, 1)] + rd_wq(0, 1) + [rd_x(0, 2, 1), rd_x(0, 3, 1)] + rd_wq(0, 2) + rd_wq(0, 3)
    o.append(W(lg=('fWq', 0, 0, 1)))
    stamp(o)
    for i in range(14):
        mf = []
        for n in range(16):
            ds, T = n >> 1, n & 1
            for qb in (range(3, -1, -1) if CH & 16 and n & 1 else range(4)):
                d = ACC(ds, qb, T)
                mf.append(I('%s %s, %s, %s, %s' % (MF, d, ar(ARING(n)), ar(XF(i >> 1, i & 1, qb)), '0' if i == 0 else d)))
        G = Gaps(mf)
        for g in range(16):
            nx = g + 4
            if nx < 16:
                for r in rd_wq(i, nx): G.put(4 * g + 3, r)
            elif i < 13:
                for r in rd_wq(i + 1, nx - 16): G.put(4 * g + 3, r)
            if g < 15:
                if g == 12 and i < 13:
                    G.put(4 * g + 2, W(lg=('fWq', i, g + 1, 1), vm=[('Wq', i + 1, 3)] + ([('X', i + 1, 7)] if i < 6 else []))); G.put(4 * g + 2, 's_barrier')
                else: G.put(4 * g + 2, W(lg=('fWq', i, g + 1, 1)))
            elif i < 13: G.put(4 * g + 2, W(lg=('fWq', i + 1, 0, 1)))
        if i < 6:
            for qb in range(4):
                for T in range(2): G.put((52, 53, 56, 57)[qb], rd_x(i + 1, qb, T))
        dm = []
        if i < 5: dm = [dma_x(i + 2, p) for p in range(8)]
        fl = fill_dmas(i)
        wq = [dma_wq(i + 4, p, sT1) for p in range(4)] if i <= 9 else []
        if wq and fl:
            while wq or fl:
                if wq: dm.append(wq.pop(0))
                if fl: dm.append(fl.pop(0))
        else: dm += wq + fl
        n = len(dm)
        grp = list(range(1, 13)) if n == 12 else [1 + (k * 12) // n for k in range(n)]
        if OPT['l2pf']:
            ks = [k for k, c in enumerate(OPT['l2at']) if int(c, 36) == i]
            cand = (14, 15) if i >= 6 else ((12, 15) if i == 5 else (15,))
            assert len(ks) <= len(cand)
            for k, g in zip(ks, cand): dm.append(l2_items(k)); grp = grp + [g]
            if OPT['l2two'] and ks:
                assert len(ks) == 1
                d = dm[-1][1]
                dm.append(([], I(d.text.split(' offen')[0] + ' offen %s lds' % OPT['l2two'].replace('+', ' ').replace('none', ''), tag=('PF',)))); grp = grp + [15]
            assert len(ks) <= 2
        if OPT['warm'] & 4 and i == OPT['woat']:
            assert len(grp) == len([g for g in grp if g < 14])
            dm.append(([I(c) for c in ['s_lshl_b32 s37, s4, 2', 's_add_u32 s37, s37, s3', 's_mul_i32 s37, s37, 3584', 's_mov_b32 m0, %d' % (9 * SLOT)]],
                       I('buffer_load_dword v253, %s, s37 offen %s lds' % (sr(SWO), wp), tag=('PF',)))); grp = grp + [15]
        put_dmas(G, dm, grp)
        if i == 11 and OPT['cp2']:
            place_groups(G, [['s_getpc_b64 s[72:73]', 'L_GP2:'], ['s_add_u32 s72, s72, L_TAILC-L_GP2', 's_addc_u32 s73, s73, 0'], ['s_movk_i32 s74, 0x7f80'], ['s_mov_b32 s75, 0x20000'], ['s_lshl_b32 s76, s3, 13']], 50, 63)
        if i == 5 and PM: G.place('s_mul_i32 s%d, s3, 1088' % sWK)
        if i == 5 and OPT['xr']: G.chain(['s_lshr_b32 s%d, s2, %d' % (sXR, OPT['xs']), 's_and_b32 s%d, s%d, %d' % (sXR, sXR, OPT['xr']), 's_lshl_b32 s%d, s%d, 14' % (sXR, sXR)])
        if i == 12:
            G.chain(['s_mov_b32 s%d, s48' % SDBG, 's_mov_b32 s%d, s49' % (SDBG + 1), 's_movk_i32 s%d, 256' % (SDBG + 2),
                     's_mul_i32 s%d, s4, 229376' % sT1, 's_add_u32 s%d, s46, s%d' % (SOUT, sT1), 's_addc_u32 s%d, s47, 0' % (SOUT + 1), 's_mov_b32 s%d, 229376' % (SOUT + 2)], 8)
        if i == 13:
            G.chain(['s_and_b32 s%d, s6, 3' % sFCO, 's_lshl_b32 s%d, s%d, 2' % (sFCO, sFCO), 's_add_u32 s%d, s%d, s3' % (sFCO, sFCO), 's_lshl_b32 s%d, s%d, 2' % (sFCO, sFCO),
                     's_add_u32 s%d, s%d, s%d' % (sFCO, sFCO, sPLO), 's_add_u32 s%d, s%d, 64' % (sFCO, sFCO),
                     's_lshl_b32 s%d, s3, 7' % sPCO, 's_add_u32 s%d, s%d, %d' % (sPCO, sPCO, FLOFF + 64), 's_sub_u32 s%d, s%d, s%d' % (sPCO, sPCO, sPLO)], 30)
        if i == 13:
            k0, kn, v0, vn, k1, km = [int(c) for c in OPT['skip'].split(',')]
            ch = ['s_mov_b32 s%d, %d' % (sCD, 9 * SLOT), 's_mov_b32 s%d, 0x80000' % (sCD + 1), 's_movk_i32 s%d, %d' % (sCI, SLOT), 's_movk_i32 s%d, %d' % (sCI + 1, TS),
                  's_add_u32 s%d, s%d, %d' % (sKBEG, sWK, 4 * SLOT), 's_add_u32 s%d, s%d, %d' % (sKEND, sWK, 9 * SLOT),
                  's_mov_b32 s%d, s%d' % (sKS, sKBEG), 's_mov_b32 s%d, %d' % (sKS + 1, 5 * TS), 's_mov_b32 s%d, s%d' % (sVS, sWK), 's_mov_b32 s%d, %d' % (sVS + 1, 4 * TS),
                  's_mul_i32 s%d, s2, 79' % sKD, 's_and_b32 s%d, s%d, 0xff' % (sKD, sKD)]
            if OPT['sw']: ch[-2:] = ['s_lshl_b32 s%d, s3, 6' % sKD]
            def pos(d, base, n): return ['s_mul_i32 s%d, s%d, %d' % (d, sKD, n), 's_lshr_b32 s%d, s%d, 8' % (d, d), 's_add_u32 s%d, s%d, %d' % (d, d, base)]
            ch += ['s_mov_b32 s%d, 0' % sMK, 's_mov_b32 s%d, 1' % (sMK + 1)]
            ch += pos(sKE, k0, kn) + ['s_bitset1_b32 s%d, s%d' % (sMK, sKE)] + pos(sKE, k1, km) + ['s_bitset1_b32 s%d, s%d' % (sMK, sKE)] + pos(sKE, v0, vn) + ['s_bitset1_b32 s%d, s%d' % (sMK + 1, sKE)]
            assert v0 >= 4 * NA - 2 + (NA == 6) and (k1 >= 4 * NA - 2 + (NA == 6) or not OPT['ka'])
            assert k0 + kn <= k1 and k1 + km <= 28 and 1 <= v0 and v0 + vn <= 28
            G.chain(ch, 0)
        if PEEL == 0:
            if i == 5: zq.extend(range(240, 256))
            if 5 <= i < 13 and i & 1: zq.extend(range(48 + 32 * ((i - 3) // 2), 80 + 32 * ((i - 3) // 2)))
            if i == 12: zq.extend(range(208, 240))
            if i == 13: zq.extend(range(32, 48))
            if i >= 5: put_zeros(G)
        o += G.flat()
    stamp(o)
    o.append(I('s_nop 3'))
    def conv(src, dst):
        r = []
        for k in range(4): r.append(I('v_pk_mul_f32 %s, %s, %s' % (vr(src + 2 * k, 2), vr(src + 2 * k, 2), sr(sSC, 2))))
        for k in range(4): r.append(I('v_cvt_pk_bf16_f32 v%d, v%d, v%d' % (dst + k, src + 2 * k, src + 2 * k + 1)))
        return r
    fl = fill_dmas(14)
    for f in range(28):
        o += conv(8 * f, 4 * f)
        if f % 6 == 2 and fl:
            pre, d = fl.pop(0); o += pre + [I('s_nop 0'), d]
    assert not fl
    o.append(W(vm=('K', 0, 3))); o.append(I('s_barrier'))
    for n in range(4): o += rd_k(0, n)
    for k in range(32): o.append(I('v_accvgpr_read_b32 v%d, a%d' % (128 + k, k)))
    for qb in range(4): o += conv(128 + 8 * qb, Q(7, qb))
    o.append(W(lg=('fK', 0, CH & 1, 1)))
    return o

def softmax_items(buf, qb):
    b = S(buf, qb); lt = LT0 + qb
    it = []
    for k in range(8):
        it.append(('e', k, I('v_exp_f32 v%d, v%d' % (b + k, b + k))))
        if k == 1: it.append(('v', k, I('v_add_f32 v%d, v%d, v%d' % (lt, b, b + 1))))
        elif k > 1: it.append(('v', k, I('v_add_f32 v%d, v%d, v%d' % (lt, lt, b + k))))
        if k & 1: it.append(('v', k, I('v_cvt_pk_bf16_f32 v%d, v%d, v%d' % (b + k // 2, b + k - 1, b + k))))
    return it

def place_softmax(G, buf, qbs, expgaps):
    eg = list(expgaps); pend = []
    for qb in qbs:
        for kind, k, ins in softmax_items(buf, qb):
            if kind == 'e':
                gp = eg.pop(0); G.put(gp, ins); last = gp
            else: pend.append((ins, last + 1))
    return pend

def place_chain(G, pend):
    cur = 0
    for ins, lo in pend: cur = G.place(ins, max(cur, lo))
    return cur

stubs = []
def check_items(t):
    lab = 'RS_%d' % (t % 4 + 4 * (t < 4 * NA) if 4 * PEEL <= t < 28 else 100 + t)
    if lab not in [s[0] for s in stubs]: stubs.append((lab, t & 1))
    return [I('v_max_f32 v%d, v%d, v%d' % (vTM, vTM, LT0 + 3)), I('v_cmp_lt_f32 vcc, s%d, v%d' % (sTHR, vTM)),
            I('s_cbranch_vccnz %s' % lab), I('%s_RET:' % lab)]

def qk_mfmas(t1, first):
    mf = []
    for n, qb in ([(2 * G + k, qb) for G in range(8) for qb in range(4) for k in range(2)] if CH & 1 else [(n, qb) for n in range(16) for qb in range(4)]):
        T, ds = n >> 3, n & 7
        d = vr(S(t1 & 1, qb, T))
        c = d if ds else ('0' if first else vr(NEGM(qb)))
        mf.append(I('%s %s, %s, %s, %s' % (MF, d, vr(RING(n)), vr(Q(ds, qb)), c)))
    return mf
def qk_reads(G, t1, nxt, nxt_tag):
    for g in range(8):
        if OPT['w2'] and g: G.put(8 * g, W(lg=('fK', t1, 2 * g + 1, 1)))
        rs = [rd_k(t1, nx) if nx < 16 else nxt(nx - 16) for nx in (2 * g + 4, 2 * g + 5)]
        for r in rs[0]: G.put(8 * g + 6, r)
        G.put(8 * g + 7, W(lg=('fK', t1, 2 * g + 3 - OPT['w2'], 1) if g < 7 else nxt_tag))
        for k, r in enumerate(rs[1]): G.put(8 * g + 7 + (k if g < 7 else 0), r, force=True)
def pv_mfmas(t):
    mf = []
    for db in range(16):
        for qb in (range(3, -1, -1) if CH & 2 and db & 1 else range(4)):
            d = ar(O(db, qb))
            mf.append(I('%s %s, %s, %s, %s' % (MF, d, vr(RING(db)), vr(S(t & 1, qb)), d if t or PEEL == 0 else '0')))
    return mf

def prologue():
    o = []
    G = Gaps(qk_mfmas(0, True))
    if CH & 1:
        G.put(50, W(vm=[('K', 1, 3), ('V', 0, 3)])); G.put(50, 's_barrier')
        qk_reads(G, 0, lambda n: rd_k(1, n), ('fK', 1, 1, 1))
    for g in range(0 if CH & 1 else 16):
        nx = g + 4
        for r in (rd_k(0, nx) if nx < 16 else rd_k(1, nx - 16)): G.put(4 * g + 3, r)
        if g == 12:
            G.put(4 * g + 2, W(lg=('fK', 0, g + 1, 1), vm=[('K', 1, 3), ('V', 0, 3)])); G.put(4 * g + 2, 's_barrier')
        elif g < 15: G.put(4 * g + 2, W(lg=('fK', 0, g + 1, 1)))
        else: G.put(4 * g + 2, W(lg=('fK', 1, 0, 1)))
    G.chain(['s_mov_b32 s%d, %d' % (sKO, LEAD * TS), 's_mov_b32 s%d, %d' % (sVO, ((4 * PEEL + 1) % 5) * SLOT)])
    place_groups(G, kswitch(1), 48, 53)
    dm = fill_dmas(15)
    grp = [1 + (k * 14) // len(dm) for k in range(len(dm))]
    if OPT['warm'] & 4 and OPT['woat'] == 14:
        dm.append(([I(c) for c in ['s_lshl_b32 s37, s4, 2', 's_add_u32 s37, s37, s3', 's_mul_i32 s37, s37, 3584', 's_mov_b32 m0, %d' % (9 * SLOT)]],
                   I('buffer_load_dword v253, %s, s37 offen %s lds' % (sr(SWO), OPT['warmpol'].replace('+', ' ').replace('none', '')), tag=('PF',)))); grp = grp + [14]
    put_dmas(G, dm, grp)
    if PEEL == 0:
        print('; zeros left for the prologue', len(zq), file=sys.stderr)
        zq.extend(list(range(48, 80)) + list(range(32))); put_zeros(G, True)
    if OPT['prel']: o.insert(0, I('buffer_load_dword v254, off, %s, s%d sc1' % (sr(SDBG), sCO), tag=('Prel',)))
    o += G.flat()
    A = lambda s: o.append(I(s))
    if OPT['prel'] == 2: o.append(W(vm=('Prel',)))
    A('v_mbcnt_lo_u32_b32 v252, -1, 0'); A('v_mov_b32 v253, s%d' % sREG)
    A('v_or_b32 v252, s3, v252'); A('v_lshl_add_u32 v252, v252, 8, s6')
    if OPT['forceslow'] == 2:
        A('s_and_b32 s%d, s4, 1' % sT0); A('s_lshl_b32 s%d, s%d, 8' % (sT0, sT0)); A('s_cmp_eq_u32 s6, 0'); A('s_cselect_b32 s%d, s%d, 0' % (sT0, sT0)); A('v_add_u32 v252, s%d, v252' % sT0)
    o.append(I('buffer_store_byte v253, v252, %s, s%d offen' % (sr(SDBG), sCO), tag=('Reg',)))
    A('s_nop 1')
    tm = [244, 245, 246, 247]; tc = [248, 249, 250, 251]
    for st in range(4):
        for qb in range(4):
            b = S(0, qb)
            if st == 0: A('v_max3_f32 v%d, v%d, v%d, v%d' % (tm[qb], b, b + 1, b + 2))
            elif st < 3: A('v_max3_f32 v%d, v%d, v%d, v%d' % (tm[qb], tm[qb], b + 2 * st + 1, b + 2 * st + 2))
            else: A('v_max_f32 v%d, v%d, v%d' % (tm[qb], tm[qb], b + 7))
    for sw in ('v_permlane32_swap_b32', 'v_permlane16_swap_b32'):
        for qb in range(4): A('v_mov_b32 v%d, v%d' % (tc[qb], tm[qb]))
        for qb in range(4): A('%s v%d, v%d' % (sw, tm[qb], tc[qb]))
        for qb in range(4): A('v_max_f32 v%d, v%d, v%d' % (tm[qb], tm[qb], tc[qb]))
    for qb in range(4):
        for r in range(4): A('v_sub_f32 v%d, 0, v%d' % (NEGM(qb) + r, tm[qb]))
    for qb in range(4):
        for k in range(8): A('v_sub_f32 v%d, v%d, v%d' % (S(0, qb) + k, S(0, qb) + k, tm[qb]))
    i0 = softmax_items(0, 0); i1 = softmax_items(0, 1)
    for x, y in zip(i0, i1): o.append(x[2]); o.append(y[2])
    return o

def padput(G, n, t, half):
    if OPT['padp']:
        prof = [int(c, 36) for c in OPT['padp']]
        mx = max(prof)
        for k in range(half, mx, 2):
            gp = 6 + 10 * (k // 2)
            if t >= 28:
                if prof[7] > k: G.put(gp, 's_nop 15', force=True)
                continue
            N = sum(1 for p in prof[:7] if p > k)
            if N == 0: continue
            lab = 'PAD_%d_%d' % (t % 4, k)
            if N < 7:
                G.put(gp, 's_cmp_lt_u32 s%d, %d' % (sLC, N), force=True); G.put(gp, 's_cbranch_scc0 %s' % lab, force=True)
            G.put(gp, 's_nop 15', force=True)
            if N < 7: G.put(gp, I(lab + ':'), force=True)
        return
    cond = OPT['padit'] or OPT['padfrom']
    if cond and t >= 28:
        if OPT['padit']: return
        cond = False
    for k in range(n):
        gp = 10 + 12 * k
        if cond:
            lab = 'PAD_%d_%d_%d' % (t % 4, half, k)
            G.put(gp, ('s_cmp_lt_u32 s%d, %d' % (sLC, OPT['padit'])) if OPT['padit'] else ('s_cmp_ge_u32 s%d, %d' % (sLC, OPT['padfrom'])), force=True)
            G.put(gp, 's_cbranch_scc0 %s' % lab, force=True)
        G.put(gp, 's_nop 15', force=True)
        if cond: G.put(gp, I(lab + ':'), force=True)

def addr_chain(c):
    ch = ['v_mbcnt_lo_u32_b32 v255, -1, 0', 'v_mbcnt_hi_u32_b32 v255, -1, v255', 's_mov_b32 s%d, 229376' % sVO,
          'v_and_b32 vCC, 15, v255', 'v_lshrrev_b32 v254, 4, v255',
          'v_lshl_add_u32 v%d, v255, 9, s%d' % (vFL, sFLO), 'v_lshl_add_u32 v%d, vCC, 4, s%d' % (vRL, sRLO),
          'v_writelane_b32 v%d, s%d, 1' % (vFL, sFCO), 'v_mad_u32_u24 v%d, v254, s%d, v%d' % (vRL, sVO, vRL)]
    ch += ['v_add_u32 v%d, %d, v%d' % (vRL + j, j * 917504, vRL) for j in (1, 2, 3)]
    ch += ['v_and_b32 v255, 1, v254', 'v_mul_lo_u32 v255, v255, s%d' % sPCO, 'v_lshl_add_u32 v%d, vCC, 2, s%d' % (vPL, sPLO), 'v_add_u32 v%d, v255, v%d' % (vPL, vPL)]
    ch += ['v_lshrrev_b32 v255, 1, v254', 'v_lshlrev_b32 v254, 5, v254', 'v_lshl_add_u32 v254, v255, 20, v254', 'v_add_u32 v254, s%d, v254' % sOUO,
           'v_lshrrev_b32 v255, 2, vCC', 'v_lshl_add_u32 v254, v255, 3, v254', 'v_and_b32 v255, 3, vCC', 'v_mul_u32_u24 v255, 896, v255', 'v_add_u32 v%d, v255, v254' % vOUT]
    ch += ['v_and_b32 v255, 1, vCC', 'v_lshlrev_b32 v255, 4, v255', 'v_lshlrev_b32 v255, v255, v%d' % vSEL, 'v_lshrrev_b32 v%d, 1, vCC' % (vSEL + 3), 'v_lshlrev_b32 v%d, v%d, 1' % (vSEL + 3, vSEL + 3)]
    ch.insert(0, 'v_mov_b32 v%d, 0x3f80' % vSEL)
    for r in range(4): ch += ['v_bfe_i32 v%d, v%d, %d, 1' % (vSEL + r, vSEL + 3, r), 'v_and_b32 v%d, v255, v%d' % (vSEL + r, vSEL + r)]
    return [x.replace('vCC', 'v%d' % c) for x in ch]
def addr_fin(re): return (['v_mbcnt_lo_u32_b32 v243, -1, 0', 'v_mbcnt_hi_u32_b32 v243, -1, v243', 'v_and_b32 v243, 15, v243'] if re else []) + ['v_lshl_add_u32 v%d, v243, 2, s%d' % (vPL2, sPLO), 'v_mul_i32_i24 v%d, %d, v243' % (vB, OPT['ring'] - 2 * OPT['lag'] + 2)]
achain = []; adone = []; redo = {}
oblk = [(ds, qb) for ds in range(8) for qb in range(4)]
def oblock(ds, qb, tmp):
    return ['v_accvgpr_read_b32 v%d, a%d' % (tmp + 4 * T + r, O(2 * ds + T, qb) + r) for T in range(2) for r in range(4)] + ['v_cvt_pk_bf16_f32 v%d, v%d, v%d' % (Q(ds, qb) + j, tmp + 2 * j, tmp + 2 * j + 1) for j in range(4)]
def fit_chain(G, items, lo, hi):
    use = {}; pl = []; gp = lo
    for c in items:
        while gp <= hi and G.used[gp] + use.get(gp, 0) + 1 > G.cap: gp += 1
        if gp > hi: return None
        pl.append(gp); use[gp] = use.get(gp, 0) + 1
    return pl
def step(t):
    o = []
    cur = t & 1
    max3 = I('v_max3_f32 v%d, v%d, v%d, v%d' % (vTM, LT0, LT0 + 1, LT0 + 2))
    ladd = [I('v_add_f32 v%d, v%d, v%d' % (L0 + q, L0 + q, LT0 + q)) for q in range(4)]
    if t < 28: dK = [dma_dyn('K', t + LEAD + (t < 4 * NA) * OPT['ka'], p) for p in range(4)]; dV = [dma_dyn('V', t + LEAD - (t >= 4 * NA), p) for p in range(4)]
    else:
        dK = [dma_kv_imm('K', t + LEAD, p, sT0) if t + LEAD < 32 else dma_wo(*WOS[t, 0], p, sT0) for p in range(4)]
        dV = [dma_kv_imm('V', t + LEAD - 1, p, sT0) if t + LEAD < 33 else dma_wo(*WOS[t, 1], p, sT0) for p in range(4)]
    if t < 31:
        G = Gaps(qk_mfmas(t + 1, False))
        eg = [0, 4, 5, 8, 12, 13] + [4 * g for g in range(4, 14)]
        if CH & 1:
            qk_reads(G, t + 1, lambda n: rd_v(t, n), ('fV', t, 0, 1))
            eg = [8 * g + k for g in range(7) for k in ((1, 3) if OPT['w2'] else (0, 2, 4) if g < 2 else (0, 3))][:16]
            if OPT['w2']: eg = sorted(eg + [5, 13])
        for g in range(0 if CH & 1 else 16):
            nx = g + 4
            for r in (rd_k(t + 1, nx) if nx < 16 else rd_v(t, nx - 16)): G.put(4 * g + 3, r)
            G.put(4 * g + 2, W(lg=('fK', t + 1, g + 1, 1) if g < 15 else ('fV', t, 0, 1)))
        pend = place_softmax(G, cur, (2, 3), eg)
        put_dmas(G, dK, {4: pflist(OPT['dgk']), 3: [5, 8, 11], 2: [6, 10], 1: [8], 0: []}[len(dK)])
        if t == 28 and LEAD == 4:
            cz = G.chain(['v_mbcnt_lo_u32_b32 v%d, -1, 0' % vTM, 'v_and_b32 v%d, 3, v%d' % (vTM, vTM), 'v_lshlrev_b32 v%d, 2, v%d' % (vTM, vTM)], 1, 20)
            softplace(G, I('buffer_load_dword v%d, v%d, %s, s%d offen sc1' % (vCAS, vTM, sr(SDBG), sCO), tag=('Chk',)), cz + 1, 20)
        idx = [k for k, (ins, lo) in enumerate(pend) if ins.mn == 'v_add_f32' and ins.ops[0] == 'v%d' % (LT0 + 2)][-1]
        pend.insert(idx + 1, (max3, pend[idx][1]))
        cg = place_chain(G, pend)
        ck = check_items(t)
        cg = G.place(ck[0], cg); cg = G.place(ck[1], cg); cg = cgb = G.place(ck[2], cg + 1); G.put(cg, ck[3])
        assert cg >= 40
        G.chain(ladd, cg)
        if t < 28:
            cz = place_groups(G, dyn_next('K', t % 4), 0, 19)
            place_groups(G, dyn_next('V', t % 4) + ([['s_lshr_b64 %s, %s, 4' % (sr(sMK, 2), sr(sMK, 2))]] if t % 4 == 3 else []), cz + 1, 63)
        if t < 30: place_groups(G, kswitch(t + 2), 48, 63)
        place_groups(G, [[adv(sKO)[0].text]], cg + 1, 63)
        if t == 28 and OPT['ovp']: achain[:] = addr_chain(246)
        if t >= 28 and OPT['ovp']:
            cz = 0
            redo['RS_%d' % (100 + t)] = list(adone)
            while achain and fit_chain(G, achain[:1], cz, 63):
                adone.append(achain.pop(0)); cz = G.place(adone[-1], cz)
                if cz < cgb: redo['RS_%d' % (100 + t)].append(adone[-1])
            redo['RS_131'] = list(adone)
        padput(G, (OPT['pad'] + 1) // 2, t, 0)
        o += G.flat()
    else:
        for pre, d in dK: o += pre; o.append(I('s_nop 0')); o.append(d)
        i0 = softmax_items(cur, 2); i1 = softmax_items(cur, 3)
        for x, y in zip(i0, i1): o.append(x[2]); o.append(y[2])
        o.append(max3); o += check_items(t); o += ladd
    G = Gaps(pv_mfmas(t))
    if t < 30: nxt_rd = lambda n: rd_k(t + 2, n); nxt_tag = ('fK', t + 2, CH & 1, 1); vmw = [('K', t + 2, 3), ('V', t + 1, 3)] + ([('Chk',)] if t == 29 else [])
    elif t == 30: nxt_rd = lambda n: rd_v(31, n); nxt_tag = ('fV', 31, 0, 1); vmw = [('V', 31, 3)]
    else: nxt_rd = lambda n: rd_wo(0, n); nxt_tag = ('fWo', 0, 0, 1); vmw = [('Wo', 0, 1, 3)]
    for g in range(16):
        nx = g + 4
        if g == 15 and CH & 1 and t < 30: G.put(63, W(lg=nxt_tag))
        for r in (rd_v(t, nx) if nx < 16 else nxt_rd(nx - 16)): G.put(4 * g + 3, r)
        if g == 15 and CH & 1 and t < 30: pass
        elif g == 12:
            G.put(4 * g + 2, W(lg=('fV', t, g + 1, 1), vm=vmw)); G.put(4 * g + 2, 's_barrier')
        else: G.put(4 * g + 2, W(lg=('fV', t, g + 1, 1) if g < 15 else nxt_tag))
    pend = []
    if t < 31: pend = place_softmax(G, cur ^ 1, (0, 1), [4 * g for g in range(16)])
    grp = {4: pflist(OPT['dgv']), 3: [1, 4, 7], 2: [2, 6], 1: [4], 0: []}[len(dV)]
    if OPT['pfl'] and t < 28:
        if t == 0 and pfstate['n'] != OPT['pfl']: raise SystemExit('last pfq must equal pfl')
        dV = dV + pf_items(OPT['pfl']); grp = grp + [10, 11]
    if t >= 28:
        for k, r in enumerate(pt_at(2 * (t - 28) + 1)): dV = dV + [pt_items(r)]; grp = grp + [(11 if t < 31 else 14) + k]
    if OPT['cp2'] and t < 28 and t % 4 == OPT['cp2'] - 1:
        dV = dV + [([I('v_mbcnt_lo_u32_b32 v245, -1, 0'), I('v_mbcnt_hi_u32_b32 v245, -1, v245'), I('v_lshlrev_b32 v245, 7, v245'), I('s_mov_b32 m0, %d' % (9 * SLOT))],
                    I('buffer_load_dword v245, s[72:75], s76 offen lds', tag=('PF',)))]; grp = grp + [10]
    put_dmas(G, dV, grp)
    place_chain(G, pend)
    if t < 31:
        pass
    if OPT['warm'] & 4 and OPT['woat'] == 100 + t:
        cz = 0
        for c in ['v_mbcnt_lo_u32_b32 v244, -1, 0', 's_lshl_b32 s37, s4, 2', 'v_bfe_u32 v%d, v244, 3, 2' % vTM, 's_add_u32 s37, s37, s3', 'v_and_b32 v244, 7, v244', 's_mul_i32 s37, s37, 3584',
                  'v_min_u32 v244, 6, v244', 'v_mul_u32_u24 v%d, 896, v%d' % (vTM, vTM), 'v_lshl_add_u32 v%d, v244, 7, v%d' % (vTM, vTM)]: cz = softplace(G, c, cz, cz + 4)
        softplace(G, I('buffer_load_dword v244, v%d, %s, s37 offen %s' % (vTM, sr(SWO), OPT['warmpol'].replace('+', ' ').replace('none', '')), tag=('PF',)), cz + 1, cz + 8)
    padput(G, OPT['pad'] // 2, t, 1)
    if t == 28 and LEAD < 4:
        cz = 34
        for c in ['v_mbcnt_lo_u32_b32 v%d, -1, 0' % vTM, 'v_and_b32 v%d, 3, v%d' % (vTM, vTM), 'v_lshlrev_b32 v%d, 2, v%d' % (vTM, vTM)]: cz = softplace(G, c, cz, cz + 3)
        softplace(G, I('buffer_load_dword v%d, v%d, %s, s%d offen sc1' % (vCAS, vTM, sr(SDBG), sCO), tag=('Chk',)), cz + 1, cz + 6)
    if OPT['ptl'] and 4 * PEEL <= t < 28:
        cz = softplace(G, I('buffer_load_dword v245, v246, %s, s36 offen %s' % (sr(SWS), OPT['ptpol'].replace('+', ' ')), tag=('PT', t)), 37, 45)
        softplace(G, 's_add_u32 s36, s36, %d' % (128 * OPT['ptl']), cz + 1, cz + 6)
    if OPT['ptl'] and t == 4 * PEEL - 1:
        cz = 30
        for c in ['v_mbcnt_lo_u32_b32 v246, -1, 0', 's_mul_i32 s36, s3, %d' % (OPT['ring'] * 4096), 'v_min_u32 v246, %d, v246' % (OPT['ptl'] - 1),
                  's_add_u32 s36, s36, s%d' % sPO, 'v_lshlrev_b32 v246, 7, v246']: cz = softplace(G, c, cz, cz + 4)
    if t == 30 and OPT['ptouch'] and not OPT['ptl'] and not OPT['ptat']:
        sh = OPT['ptouch']; R = OPT['ring']
        cz = 32
        for c in ['v_mbcnt_lo_u32_b32 v%d, -1, 0' % vTM, 's_mul_i32 s%d, s3, %d' % (sVO, R * 4096), 'v_mbcnt_hi_u32_b32 v%d, -1, v%d' % (vTM, vTM),
                  's_add_u32 s%d, s%d, s%d' % (sVO, sVO, sPO), 'v_lshlrev_b32 v%d, %d, v%d' % (vTM, sh, vTM)]: cz = softplace(G, c, cz, cz + 3)
        n = -(-R * 4096 // (64 << sh))
        for k in range(n):
            cz = softplace(G, I('buffer_load_dword v%d, v%d, %s, s%d offen' % (vFV, vTM, sr(SWS), sVO), tag=('PT', k)), cz + 1, min(63, cz + 4))
            if k < n - 1: cz = softplace(G, 's_add_u32 s%d, s%d, %d' % (sVO, sVO, 64 << sh), cz + 1, cz + 4) + 4
    if t == 29:
        ch = ['v_cmp_ne_u32 vcc, s%d, v%d' % (sFULL, vCAS), 'v_mbcnt_lo_u32_b32 v%d, -1, 0' % vTM, 's_or_b32 s%d, s6, s3' % sVO, 'v_or_b32 v%d, s%d, v%d' % (vTM, sVO, vTM),
              's_cmp_eq_u64 vcc, 0', 's_cselect_b32 s%d, 32, 64' % sVO, 'v_lshlrev_b32 v%d, 8, v%d' % (vTM, vTM), 's_or_b32 s%d, s%d, s%d' % (sVO, sVO, sREG), 'v_mov_b32 v%d, s%d' % (vCAS, sVO),
              I('buffer_store_byte v%d, v%d, %s, s%d offen' % (vCAS, vTM, sr(SDBG), sCO), tag=('Dec',))]
        cz = 52
        for k, c in enumerate(ch): cz = softplace(G, c, min(63, cz + (k in (4, 9))), min(63, cz + 2))
    if 4 * PEEL <= t < 28 and t % 4 == 3:
        gp = G.place('s_add_u32 s%d, s%d, 1' % (sLC, sLC), 44); G.place('s_cmp_lt_u32 s%d, %d' % (sLC, NA if t < 4 * NA else 7), max(gp + 1, 52))
        G.put(63, 's_cbranch_scc1 L_LOOP%s' % ('A' if t < 4 * NA else ''), force=True)
    if t == 31:
        ch = []
        for sw in ('v_permlane32_swap_b32', 'v_permlane16_swap_b32'):
            ch += ['v_mov_b32 v%d, v%d' % (LT0 + q, L0 + q) for q in range(4)]
            ch += ['%s v%d, v%d' % (sw, L0 + q, LT0 + q) for q in range(4)]
            ch += ['v_add_f32 v%d, v%d, v%d' % (L0 + q, L0 + q, LT0 + q) for q in range(4)]
        ch += ['v_rcp_f32 v%d, v%d' % (L0 + q, L0 + q) for q in range(4)]
        if OPT['ovp']: G.cap = 3; G.put(OPT['decg'], dec_load(('DecL',)), force=True)
        G.chain(ch, 0)
        G.cap = 3
        if OPT['ovp']:
            G.chain(achain + addr_fin(True), 0)
            G.cap = OPT['oc']; cz = 0; k = 0
            pos = {m.ops[0]: j for j, m in enumerate(G.m)}
            while len(oblk) > OPT['ov'] and OPT['ovp'] == 1:
                ds, qb = oblk[0]; blk = oblock(ds, qb, 128 + 8 * (k % 4))
                pl = fit_chain(G, blk, max(cz, pos[ar(O(2 * ds + 1, qb))] + 3), 63)
                if not pl: break
                for gp, c in zip(pl, blk): G.put(gp, c)
                cz = pl[-1]; oblk.pop(0); k += 1
        else: G.chain(addr_chain(243) + addr_fin(False), 0)
    o += G.flat()
    return o

def pt_items(r):
    pre = ['v_mbcnt_lo_u32_b32 v%d, -1, 0' % vPT, 'v_min_u32 v%d, 31, v%d' % (vPT, vPT), 'v_lshlrev_b32 v%d, 7, v%d' % (vPT, vPT)]
    if r == 0: pre += ['s_lshl_b32 s36, s3, 12', 's_add_u32 s36, s36, s%d' % sPO]
    else: pre += ['s_add_u32 s36, s36, 16384']
    return [I(c) for c in pre] + [I('s_mov_b32 m0, %d' % (9 * SLOT))], I('buffer_load_dword v%d, %s, s36 offen %s lds' % (vPT, sr(SWS), OPT['ptpol'].replace('+', ' ')), tag=('PF',))
vPT = 231
def pt_at(code): return [r for r, c in enumerate(OPT['ptat']) if int(c, 36) == code]
def oconv():
    o = []
    assert not pt_at(8)
    k = 0; n = len(oblk) - OPT['ov']
    if OPT['orot']:
        assert n % 4 == 0
        o.append(I('s_mov_b32 s%d, 3' % sT1))
        for w in (1, 2, 3): o += [I('s_cmp_eq_u32 s3, %d' % w), I('s_cbranch_scc1 L_OC%d' % w)]
        o.append(I('L_OC0:'))
    while len(oblk) > OPT['ov']:
        ds, qb = oblk.pop(0); o += [I(c) for c in oblock(ds, qb, 128 + 8 * (k % 4))]; k += 1
        if OPT['orot'] and k % (n // 4) == 0:
            o += [I('s_sub_u32 s%d, s%d, 1' % (sT1, sT1))]
            o += [I('s_cbranch_scc1 L_OCE'), I('L_OC%d:' % (k // (n // 4)))] if k < n else [I('s_cbranch_scc0 L_OC0'), I('L_OCE:')]
    print('; oconv exposed blocks', k, file=sys.stderr)
    return o

def ringadv(reg, hc, R):
    return 's_add_u32 s%d, s%d, 16384' % (reg, reg) if (hc + 1) % R else 's_sub_u32 s%d, s%d, %d' % (reg, reg, (R - 1) * 16384)
def epi_items(hc, pol, R=14):
    buf = hc & 1; it = []
    if R != 14 and hc < R and OPT['st0pol']: pol = OPT['st0pol'].replace('+', ' ')
    if R != 14 and hc >= 14 - OPT['stlast']: pol = OPT['stpol2'].replace('+', ' ')
    for qb in range(4):
        b = S(buf, qb)
        for j in range(4):
            it.append(I('v_mul_f32 v%d, v%d, v%d' % (b + 2 * j, b + 2 * j, L0 + qb)))
            it.append(I('v_mul_f32 v%d, v%d, v%d' % (b + 2 * j + 1, b + 2 * j + 1, L0 + qb)))
            it.append(I('v_cvt_pk_bf16_f32 v%d, v%d, v%d' % (b + j, b + 2 * j, b + 2 * j + 1)))
        it.append(I('buffer_store_dwordx4 %s, v%d, %s, s%d offen offset:%d %s' % (vr(b), vST, sr(SWS), sPO, qb * 1024, pol), tag=('St', hc, qb)))
    it.append(I(ringadv(sPO, hc, R)))
    return it

def wo_frag(hc, n):
    if CH & 4 and (hc or not OPT['ov']): return 2 * (n >> 2) + (n & 1), (n >> 1) & 1
    return n >> 1, n & 1
def rd_wo8(hc, n):
    ds, T = wo_frag(hc, n)
    nt = 2 * (hc & 1) + T
    r = RING8(n)
    return [I('ds_read_b64_tr_b16 %s, v%d offset:%d' % (vr(r + 2 * rho, 2), vOA + nt, (4 * ds + 2 * rho) * 1088), tag=('fWo', hc, n, rho)) for rho in (0, 1)]
def red_loads(hc, rb): return [I('buffer_load_dwordx4 %s, v%d, %s, s%d offen %s' % (ar(rb + 4 * j), vRL + j, sr(SWS), sCO, 'sc1' if hc == 99 else OPT['rlpol'].replace('+', ' ').replace('none', '')), tag=('RL', hc, j)) for j in range(4)]
def red_mfmas(rb, d=vRD): return [I('%s %s, %s, %s, %s' % (MF, vr(d), vr(vSEL), ar(rb + 4 * j), vr(d) if j else '0')) for j in range(4)]
def red_out(hc, d=vRD, cv=vCV):
    return [I('v_cvt_pk_bf16_f32 v%d, v%d, v%d' % (cv, d, d + 1)), I('v_cvt_pk_bf16_f32 v%d, v%d, v%d' % (cv + 1, d + 2, d + 3)),
            I('buffer_store_dwordx2 %s, v%d, %s, 0 offen offset:%d %s' % (vr(cv, 2), vOUT, sr(SOUT), hc * 64, OPT['outpol'].replace('+', ' ')), tag=('Out', hc))]
def poll(tag, a=vPL): return I('buffer_load_dword v%d, v%d, %s, 0 offen sc1' % (vPR, a, sr(SWS)), tag=tag)
def flag(val):
    R, LAG = OPT['ring'], OPT['lag']
    if val + 1 - LAG >= 0: r = [I('v_add_u32 v%d, %d, v%d' % (vFV, val, vB))]
    else: r = [I('v_mov_b32 v%d, %d' % (vFV, R - LAG + 1)), I('v_writelane_b32 v%d, %d, 0' % (vFV, val))]
    return r + [I('buffer_store_dword v%d, v%d, %s, 0 offen' % (vFV, vFL, sr(SWS)), tag=('Fl', val))]
spins = []
def spin_stub(lab, thr, a):
    o = []
    A = lambda s: o.append(I(s))
    A('%s:' % lab); A('s_movk_i32 s%d, 0x7fff' % sT1)
    A('%s_L:' % lab); o.append(poll(None, a)); A('s_waitcnt vmcnt(0)'); A('v_cmp_gt_u32 vcc, %d, v%d' % (thr, vPR))
    A('s_sub_u32 s%d, s%d, 1' % (sT1, sT1)); A('s_cbranch_scc1 %s_RET' % lab); A('s_cbranch_vccnz %s_L' % lab); A('s_branch %s_RET' % lab)
    return o

def softplace(G, ins, lo, hi=None):
    if isinstance(ins, str): ins = I(ins)
    hi = G.n - 1 if hi is None else hi
    for gp in range(lo, hi + 1):
        if G.fits(gp, ins): return G.put(gp, ins)
    for extra in (1, 2, 3, 4):
        for gp in range(lo, hi + 1):
            if G.used[gp] + ins.cost <= G.cap + extra and not (ins.kind == 'ds' and any(x.kind == 'valu' for x in G.g[gp])):
                return G.put(gp, ins, force=True)
    raise AssertionError(('no room', ins.text))

def phase3(fast):
    o = []
    LAG = OPT['lag']
    pol = OPT['stpol'].replace('+', ' ') if fast else 'sc1'
    R = OPT['ring'] if fast else 14
    for hc in range(14):
        p = hc
        mf = []
        consume = fast and p - LAG - 1 >= 0
        red = red_mfmas(0) if consume else []
        rpos = {40: 0, 42: 1, 44: 2, 46: 3}
        gi = {}
        chd = wo_frag(hc, 1) == (1, 0)
        for k in range(64):
            n, qb = (2 * (k >> 3) + (k & 1), (k >> 1) & 3) if chd else (k >> 2, k & 3)
            if CH & 8 and (k >> 3 if chd else k >> 2) & 1: qb = 3 - qb
            ds, T = wo_frag(hc, n)
            d = vr(S(hc & 1, qb, T))
            if red and k in rpos: mf.append(red[rpos[k]])
            gi[k] = len(mf)
            mf.append(I('%s %s, %s, %s, %s' % (MF, d, vr(RING8(n)), vr(Q(ds, qb)), d if ds else '0')))
        G = Gaps(mf)
        ch = hc >> 1
        dopoll = fast and p >= LAG
        if consume:
            rl = red_loads(p - LAG - 1, 0)
            G.put(0, rl[2]); G.put(5, rl[3]); G.put(6, ringadv(sCO, p - LAG - 1, R))
        if dopoll: G.put(OPT['ppos'], poll(('Poll', p)))
        for g in range(16):
            nx = g + 7
            if nx < 16 or hc < 13:
                for r in (rd_wo8(hc, nx) if nx < 16 else rd_wo8(hc + 1, nx - 16)): G.put(gi[4 * g + 3], r)
            if g & 1:
                if g < 15: lg = ('fWo', hc, g + 2 if g < 14 else 15, 1)
                else: lg = ('fWo', hc + 1, 1, 1) if hc < 13 else None
                vm = []
                if g == 9:
                    if (hc & 1) and hc < 13: vm.append(('Wo', ch + 1, 1, 3))
                    if dopoll: vm.append(('Poll', p))
                    elif fast and p >= 2: vm.append(('St', p - 2, 3))
                if lg or vm: G.put(gi[4 * g + 2], W(lg=lg, vm=vm or None))
                if g == 9 and (hc & 1) and hc < 13: G.put(gi[4 * g + 2], 's_barrier')
        dm = []
        if hc in WOS: dm = [dma_wo(*WOS[hc], q, sT0) for q in range(4)]
        grp = ([4, 5, 7, 8] if fast else [1, 2, 3, 4])[:len(dm)]
        if fast:
            for r in pt_at(9 + hc): dm = [pt_items(r)] + dm; grp = [2] + grp
        put_dmas(G, dm, grp)
        after = gi[38] + 1
        stlo = 0
        if fast and p >= 2:
            f = flag(p - 1)
            cg = G.chain(f[:-1], 30); softplace(G, f[-1], max(after, cg + 1))
        if dopoll:
            lab = 'SP_%d' % p
            spins.append((lab, p - LAG + 1, vPL))
            cg = G.place('v_cmp_gt_u32 vcc, %d, v%d' % (p - LAG + 1, vPR), after)
            cg = G.place('s_cbranch_vccnz %s' % lab, cg + 1); G.put(cg, I('%s_RET:' % lab))
            stlo = cg + 1
            rl = red_loads(p - LAG, 0)
            softplace(G, rl[0], gi[53]); softplace(G, rl[1], gi[61])
        og = 0
        if fast and p - LAG - 2 >= 0: og = softplace(G, red_out(p - LAG - 2)[2], gi[44])
        if consume:
            ro = red_out(p - LAG - 1)
            cg = softplace(G, ro[0], max(gi[46] + 6, og + 1)); cg = softplace(G, ro[1], cg)
        if hc < 12:
            delta = (WOB[(ch + 1) % 4] - WOB[ch % 4]) * SLOT
            pair = (0, 1) if hc % 2 == 0 else (2, 3)
            for nt in pair:
                softplace(G, ('v_add_u32 v%d, %d, v%d' % (vOA + nt, delta, vOA + nt)) if delta > 0 else ('v_subrev_u32 v%d, %d, v%d' % (vOA + nt, -delta, vOA + nt)), gi[36])
        if hc == 0:
            G.cap = OPT['oc']; cz = 0
            for k, (ds, qb) in enumerate(oblk):
                for c in oblock(ds, qb, 160 + 8 * (k % 4)): cz = softplace(G, c, cz, gi[8 * ds] - 2)
        if hc > 0:
            cur = 0; last = stlo
            ep = epi_items(hc - 1, pol, R)
            if stlo:
                pre = {}
                for ins, tg in zip([x for x in ep if x.kind == 'vst'][:3], (stlo, gi[46], gi[50])): last = pre[ins.tag] = softplace(G, ins, tg)
            for ins in ep:
                if ins.kind == 'vst':
                    if stlo and ins.tag in pre: assert cur < pre[ins.tag], (hc, ins.tag, cur, pre)
                    else: last = softplace(G, ins, max(cur + 1, last))
                elif ins.kind == 'salu': softplace(G, ins, last)
                else: cur = softplace(G, ins, cur)
        o += G.flat()
    if not fast:
        o.append(I('s_nop 7'))
        o += epi_items(13, pol, R)
    return o

def fast_tail():
    o = []
    A = lambda s: o.append(I(s))
    LAG = OPT['lag']; R = OPT['ring']
    h0 = 13 - LAG
    ep = epi_items(13, OPT['stpol'].replace('+', ' '), R)
    rl = red_loads(h0, 0)
    o += rl[2:]; A(ringadv(sCO, h0, R))
    o.append(poll(('Poll', 14)))
    f = flag(13); o += f[:-1]
    A('s_nop 2')
    o += ep[:12]
    o.append(W(vm=('Poll', 14))); o.append(f[-1])
    spins.append(('SP_14', 15 - LAG, vPL))
    A('v_cmp_gt_u32 vcc, %d, v%d' % (15 - LAG, vPR)); o += ep[13:15]; A('s_cbranch_vccnz SP_14'); A('SP_14_RET:')
    o.append(ep[12]); o += ep[15:-1]
    o += red_loads(h0 + 1, 16); A(ringadv(sCO, h0 + 1, R))
    o.append(red_out(h0 - 1)[2])
    o += red_mfmas(0)
    A('v_mov_b32 v%d, 14' % vFV)
    o.append(W(vm=('St', 13, 3)))
    o.append(I('buffer_store_dword v%d, v%d, %s, 0 offen' % (vFV, vFL, sr(SWS)), tag=('Fl', 14)))
    o.append(poll(('Poll', 15), vPL2))
    o.append(W(vm=('RL', h0 + 1, 3)))
    o += red_mfmas(16, 128)
    ro0 = red_out(h0); o += ro0[:2]
    o.append(W(vm=('Poll', 15)))
    spins.append(('SP_15', 14, vPL2))
    A('v_cmp_gt_u32 vcc, 14, v%d' % vPR); A('s_nop 0'); A('s_cbranch_vccnz SP_15'); A('SP_15_RET:')
    rest = list(range(h0 + 2, 14))
    for k, hc in enumerate(rest):
        o += red_loads(hc, 16 * k + 32); A(ringadv(sCO, hc, R))
    o.append(ro0[2])
    o += red_out(h0 + 1, 128, 132)
    mm = [red_mfmas(16 * k + 32, 136 + 8 * k) for k in range(len(rest))]
    o.append(W(vm=('RL', 13, 3)))
    for j in range(4):
        for m in mm: o.append(m[j])
    A('s_nop 7')
    for k, hc in enumerate(rest): o += red_out(hc, 136 + 8 * k, 140 + 8 * k)
    return o

def dec_load(tag=None): return I('buffer_load_dword v%d, off, %s, s%d sc1' % (vCAS, sr(SDBG), sCO), tag=tag)
def decide():
    o = []
    A = lambda s: o.append(I(s))
    o.append(W(vm=('DecL',)))
    A('v_readfirstlane_b32 s%d, v%d' % (sT0, vCAS))
    A('s_bitcmp1_b32 s%d, 5' % sT0); A('s_cbranch_scc0 L_DECIDE'); A('L_FAST:'); A('s_mov_b32 s%d, 0' % sCO)
    return o

def slow_path(pro):
    o = []
    A = lambda s: o.append(I(s))
    A('L_DECIDE:')
    A('v_mbcnt_lo_u32_b32 v237, -1, 0'); A('v_lshl_add_u32 v237, v237, 8, s6')
    A('s_mov_b32 s%d, 0x40000' % sLC)
    A('L_DEC_A:')
    o.append(dec_load()); A('s_waitcnt vmcnt(0)'); A('v_readfirstlane_b32 s%d, v%d' % (sT0, vCAS))
    A('s_bitcmp1_b32 s%d, 5' % sT0); A('s_cbranch_scc1 L_FAST')
    A('s_bitcmp1_b32 s%d, 6' % sT0); A('s_cbranch_scc1 L_SLOW')
    A('s_bitcmp1_b32 s%d, 7' % sT0); A('s_cbranch_scc0 L_DEC_V')
    A('s_xor_b32 s%d, s%d, s%d' % (sT0, sT0, sREG)); A('s_and_b32 s%d, s%d, 15' % (sT0, sT0)); A('s_cbranch_scc1 L_SLOW')
    A('s_sub_u32 s%d, s%d, 1' % (sLC, sLC)); A('s_cbranch_scc0 L_DEC_A'); A('s_branch L_SLOW')
    A('L_DEC_V:')
    A('s_or_b32 s%d, s%d, 64' % (sT0, sREG)); A('v_mov_b32 v%d, s%d' % (vCAS, sT0))
    A('buffer_store_byte v%d, v237, %s, s%d offen' % (vCAS, sr(SDBG), sCO)); A('s_waitcnt vmcnt(0)')
    o.append(dec_load()); A('s_waitcnt vmcnt(0)'); A('v_readfirstlane_b32 s%d, v%d' % (sT0, vCAS))
    A('s_bitcmp1_b32 s%d, 7' % sT0); A('s_cbranch_scc1 L_DEC_A')
    A('L_SLOW:')
    o += phase3(False)
    A('s_waitcnt vmcnt(0)'); A('buffer_wbl2 sc1'); A('s_waitcnt vmcnt(0)')
    A('s_barrier'); A('s_cmp_eq_u32 s3, 0'); A('s_cbranch_scc0 L_END')
    A('s_and_b32 s%d, s6, 3' % sT0); A('s_lshl_b32 s%d, s%d, 3' % (sT0, sT0)); A('s_lshl_b32 s%d, 16, s%d' % (sT0, sT0)); A('v_mov_b32 v%d, s%d' % (vCAS, sT0))
    A('v_and_b32 v255, -4, v237')
    A('buffer_atomic_or v%d, v255, %s, s%d offen sc0 sc1' % (vCAS, sr(SDBG), sCO)); A('s_waitcnt vmcnt(0)')
    A('v_mbcnt_lo_u32_b32 v255, -1, 0'); A('v_lshrrev_b32 v%d, 2, v255' % vCAS); A('v_lshlrev_b32 v255, 2, v255'); A('v_lshl_add_u32 v255, v%d, 8, v255' % vCAS)
    A('v_mov_b32 v%d, 0' % vCAS)
    A('buffer_atomic_or v%d, v255, %s, s%d offen sc0 sc1' % (vCAS, sr(SDBG), sCO)); A('s_waitcnt vmcnt(0)')
    A('s_mov_b32 s%d, 0x10101010' % sT0); A('v_and_b32 v%d, s%d, v%d' % (vCAS, sT0, vCAS)); A('v_cmp_eq_u32 vcc, s%d, v%d' % (sT0, vCAS))
    A('s_nop 1'); A('s_and_b32 s%d, vcc_lo, 15' % sT0); A('s_cmp_eq_u32 s%d, 15' % sT0); A('s_cbranch_scc0 L_END')
    A('buffer_inv sc1'); A('s_waitcnt vmcnt(0)')
    for j in range(4): A('v_subrev_u32 v%d, s%d, v%d' % (vRL + j, sRLO, vRL + j))
    A('v_subrev_u32 v%d, s%d, v%d' % (vOUT, sOUO, vOUT))
    A('s_mov_b32 s%d, 0' % sLC)
    A('L_SLOOP:')
    A('s_lshl_b32 s%d, s%d, 8' % (sCO, sLC))
    o += red_loads(99, 0)
    A('s_bfe_u32 s%d, s%d, 0x40002' % (sT0, sLC)); A('s_mul_i32 s%d, s%d, 14336' % (sT0, sT0))
    A('s_and_b32 s%d, s%d, 3' % (sT1, sLC)); A('s_mul_i32 s%d, s%d, 3584' % (sT1, sT1)); A('s_add_u32 s%d, s%d, s%d' % (sT0, sT0, sT1))
    A('s_andn2_b32 s%d, s%d, 63' % (sT1, sLC)); A('s_add_u32 s%d, s%d, s%d' % (sT0, sT0, sT1))
    A('s_waitcnt vmcnt(0)')
    o += red_mfmas(0); A('s_nop 7')
    ro = red_out(0); o += ro[:2]
    A('buffer_store_dwordx2 %s, v%d, %s, s%d offen' % (vr(vCV, 2), vOUT, sr(SOUT), sT0))
    A('s_add_u32 s%d, s%d, 1' % (sLC, sLC)); A('s_cmp_lt_u32 s%d, 896' % sLC); A('s_cbranch_scc1 L_SLOOP')
    A('s_waitcnt vmcnt(0)'); A('s_endpgm')
    return o

def rare(par):
    o = []
    A = lambda s: o.append(I(s))
    A('RARE_%d:' % par)
    A('s_nop 7'); A('s_nop 7')
    A('v_mbcnt_lo_u32_b32 v252, -1, 0'); A('v_mbcnt_hi_u32_b32 v252, -1, v252')
    A('v_and_b32 v253, 15, v252'); A('v_lshlrev_b32 v253, 9, v253'); A('v_lshrrev_b32 v252, 4, v252'); A('v_lshl_add_u32 v252, v252, 4, v253')
    A('s_sub_u32 s%d, s%d, %d' % (sR0, sKO, LEAD * TS))
    if OPT['km'] == 1: A('v_and_b32 v253, 0x1000, v252'); A('v_mul_u32_u24 v253, 31, v253'); A('v_add_u32 v252, v253, v252')
    if OPT['xr']: A('s_xor_b32 s%d, s%d, s%d' % (sR0, sR0, sXR))
    for T in range(2):
        if T: A('s_add_u32 s%d, s%d, %d' % (sR0, sR0, 262144 if OPT['km'] else 8192))
        for ds in range(0, 8, 2):
            A('buffer_load_dwordx4 v[244:247], v252, %s, s%d offen offset:%d' % (sr(SK), sR0, ds * 64))
            A('buffer_load_dwordx4 v[248:251], v252, %s, s%d offen offset:%d' % (sr(SK), sR0, ds * 64 + 64))
            A('s_waitcnt vmcnt(0)')
            for d2 in range(2):
                for qb in range(4):
                    d = vr(S(par, qb, T))
                    A('%s %s, %s, %s, %s' % (MF, d, vr(244 + 4 * d2), vr(Q(ds + d2, qb)), d if ds + d2 else vr(NEGM(qb))))
            A('s_nop 7')
    A('s_nop 7')
    for qb in range(4):
        b = S(par, qb); y = S(par ^ 1, qb)
        A('v_max3_f32 v253, v%d, v%d, v%d' % (b, b + 1, b + 2)); A('v_max3_f32 v253, v253, v%d, v%d' % (b + 3, b + 4))
        A('v_max3_f32 v253, v253, v%d, v%d' % (b + 5, b + 6)); A('v_max_f32 v253, v253, v%d' % (b + 7))
        for sw in ('v_permlane32_swap_b32', 'v_permlane16_swap_b32'):
            A('v_mov_b32 v254, v253'); A('s_nop 1'); A('%s v253, v254' % sw); A('v_max_f32 v253, v253, v254')
        A('v_max_f32 v253, 0, v253')
        A('v_exp_f32 v255, -v253')
        for r in range(4): A('v_sub_f32 v%d, v%d, v253' % (NEGM(qb) + r, NEGM(qb) + r))
        for k in range(8): A('v_sub_f32 v%d, v%d, v253' % (y + k, y + k))
        for k in range(8): A('v_sub_f32 v%d, v%d, v253' % (b + k, b + k))
        for kind, k, ins in softmax_items(par, qb):
            o.append(ins)
            if kind == 'e': A('s_nop 0')
        A('v_mul_f32 v%d, v%d, v255' % (L0 + qb, L0 + qb))
        for db in range(0, 16, 2):
            regs = [O(db + d, qb) + r for d in range(2) for r in range(4)]
            for k, a in enumerate(regs): A('v_accvgpr_read_b32 v%d, a%d' % (244 + k, a))
            for k, a in enumerate(regs): A('v_mul_f32 v%d, v%d, v255' % (244 + k, 244 + k))
            for k, a in enumerate(regs): A('v_accvgpr_write_b32 a%d, v%d' % (a, 244 + k))
    A('s_nop 1')
    A('s_setpc_b64 %s' % sr(sRET, 2))
    return o

def dump_v(first, nfrag):
    o = []
    A = lambda s: o.append(I(s))
    A('s_nop 7'); A('s_nop 7'); A('s_waitcnt vmcnt(0) lgkmcnt(0)')
    A('s_lshl_b32 s34, s%d, 17' % sBH); A('s_add_u32 s28, s50, s34'); A('s_addc_u32 s29, s51, 0'); A('s_mov_b32 s30, 131072')
    for f in range(nfrag):
        A('s_mov_b32 s35, %d' % ((f // 4) * 16384 + (f % 4) * 1024))
        A('buffer_store_dwordx4 %s, v%d, %s, s35 offen' % (vr(first + 4 * f), vST, sr(SWS)))
    A('s_waitcnt vmcnt(0)'); A('s_endpgm')
    return o

def stamps_out():
    o = []
    if not OPT['stamps']: return o
    A = lambda s: o.append(I(s))
    A('s_waitcnt vmcnt(0)')
    A('s_memrealtime s[94:95]'); A('s_waitcnt lgkmcnt(0)')
    A('s_add_u32 s28, s50, 0x4000000'); A('s_addc_u32 s29, s51, 0'); A('s_mov_b32 s30, 0x100000')
    A('s_lshl_b32 s34, s2, 2'); A('s_add_u32 s34, s34, s3'); A('s_lshl_b32 s34, s34, 7')
    A('v_mov_b32 v1, 0')
    for k in range(32):
        A('v_mov_b32 v0, s%d' % (sST + k)); A('buffer_store_dword v0, v1, %s, s34 offen offset:%d' % (sr(SWS), 4 * k)); A('s_nop 1')
    return o

def main_kernel():
    pre = setup()
    if OPT['stamps']: pre = [I('s_memrealtime s[92:93]')] + pre
    stamp(pre)
    p1 = phase1()
    if OPT['stop'] == 'q':
        body = pre + p1 + dump_v(0, 32); loop = None; post = []; slow = []
        stream = body
    else:
        stamp(p1)
        pro = prologue()
        stamp(pro)
        iters = [sum((step(4 * it + k) for k in range(4)), []) for it in range(7)]
        if OPT['stamps'] == 2:
            for it in iters:
                it[0:0] = [I('s_waitcnt lgkmcnt(0)'), I('s_memrealtime s[96:97]'), I('s_waitcnt lgkmcnt(0)'), ] + [I('s_mov_b32 s%d, s%d' % (64 + k, 65 + k)) for k in range(6)] + [I('s_mov_b32 s70, s96')]
        tail = [I('L_TAILC:')]
        stamp(tail)
        for t in range(28, 32): tail += step(t)
        if OPT['odbl']: tail += [I('s_mov_b32 s%d, 0' % sVO), I('L_OD:')]
        stamp(tail)
        for n in (4, 5, 6): tail += rd_wo8(0, n)
        if not OPT['ovp']: tail.append(dec_load(('DecL',)))
        tail += oconv()
        if OPT['odbl']: tail += [I('s_add_u32 s%d, s%d, 1' % (sVO, sVO)), I('s_cmp_lt_u32 s%d, 2' % sVO), I('s_cbranch_scc1 L_OD')]
        slow = []
        if OPT['stop'] == 'o': tail += dump_v(0, 32)
        else:
            stamp(tail)
            tail += [W(lg=('fWo', 0, 1, 1))] + decide()
            common = pre + p1 + pro + sum(iters, []) + tail
            slow = slow_path(common)
            resolve_waits(common + slow); finalize_waits(slow)
            tail += phase3(True)
            stamp(tail)
            tail += fast_tail()
            stamp(tail)
            tail += stamps_out()
            tail += [I('s_waitcnt vmcnt(0)')]
        stream = pre + p1 + pro + sum(iters, []) + tail
    resolve_waits(stream)
    if OPT['stop'] != 'q' and PEEL < 7:
        if NA: unify_iters(iters[:NA])
        unify_iters(iters[PEEL + NA:])
    finalize_waits(stream)
    errs = check_hazards(stream, 'main')
    lastw = None
    for ins in stream:
        if ins.mn.startswith(('s_cselect', 's_cmov', 's_cbranch_scc')) and not lastw.startswith(('s_cmp', 's_bitcmp')) and 'L_OC' not in ins.text: errs.append('SCC from %s at %s' % (lastw, ins.text))
        if ins.mn == 's_addc_u32' and lastw != 's_add_u32': errs.append('SCC from %s at %s' % (lastw, ins.text))
        if ins.kind == 'branch' and ins.mn.startswith('s_cbranch_vcc'): lastw = 'call'
        if ins.kind == 'salu' and ins.mn not in NOSCC + ('s_bitset1_b32', 's_getreg_b32', 's_getpc_b64'): lastw = ins.mn
    if slow: errs += check_hazards(common + slow, 'slow')
    out = []
    if OPT['stop'] == 'q': out = stream
    else: out = pre + p1 + pro + sum(iters[:PEEL], []) + ([I('L_LOOPA:')] + iters[0] if NA else []) + ([I('L_LOOP:')] + iters[PEEL + NA] if PEEL < 7 else []) + tail
    out += [I('L_END:'), I('s_endpgm')]
    if OPT['stop'] != 'q':
        for lab, par in stubs:
            out += [I('%s:' % lab), I('s_call_b64 %s, RARE_%d' % (sr(sRET, 2), par))] + [I(c) for c in redo.get(lab, [])] + [I('s_nop 1'), I('s_branch %s_RET' % lab)]
        for lab, thr, a in spins: out += spin_stub(lab, thr, a)
        for par in (0, 1):
            r = rare(par); errs += check_hazards(r, 'rare'); out += r
        out += slow
    for e in errs[:40]: print('; ERROR', e, file=sys.stderr)
    if errs: raise SystemExit('hazard errors: %d' % len(errs))
    return out

def desc(name, vg, acc, y=False):
    return '''.amdhsa_kernel %s
  .amdhsa_next_free_vgpr %d
  .amdhsa_next_free_sgpr 102
  .amdhsa_accum_offset %d
  .amdhsa_group_segment_fixed_size 0
  .amdhsa_kernarg_size 64
  .amdhsa_user_sgpr_count 2
  .amdhsa_user_sgpr_kernarg_segment_ptr 1
  .amdhsa_system_sgpr_workgroup_id_x 1
%s.end_amdhsa_kernel''' % (name, vg, acc, '  .amdhsa_system_sgpr_workgroup_id_y 1\n' if y else '')

def fmt(ins):
    if ins.kind == 'dma' and ins.tag and OPT['nodma'] & {'X': 1, 'Wq': 2, 'K': 4, 'V': 4, 'Wo': 8, 'PF': 16}[ins.tag[0]]: return '    s_nop 0'
    if ins.kind == 'vst' and ins.tag and ins.tag[0] == 'St' and OPT['nost']: return '    s_nop 0'
    if OPT['noexp'] and ins.mn == 'v_exp_f32': return '    ' + ins.text.replace('v_exp_f32', 'v_mov_b32')
    k = OPT['kill']
    if ins.tag and ins.kind in ('vst', 'vld') and k & {'RL': 1, 'Out': 2, 'Poll': 4, 'Fl': 8, 'Reg': 32, 'Fz': 64, 'Dec': 128, 'Chk': 128}.get(ins.tag[0], 0): return '    s_nop 0'
    if k & 16 and ins.text.startswith('s_cbranch_vccnz SP_'): return '    s_nop 0'
    if k & 32 and ins.text.startswith('s_cbranch_scc0 L_DECIDE'): return '    s_nop 0'
    return ins.text if ins.kind == 'label' else '    ' + ins.text

if __name__ == '__main__':
    K1 = OPT['name'] + '_kernel'; K2 = 'mha_reduce_kernel'
    hdr = open('standalone__mha_block_cached__near_ridge.s.ref').read().split('; Override launch')[0]
    t = hdr
    t += '; @launch grid=(256,1,1) block=(256,1,1) lds=163840\n'
    t += '.amdgcn_target "amdgcn-amd-amdhsa--gfx950"\n.text\n'
    for K, body in ((K1, main_kernel()),):
        t += '.globl %s\n.p2align 8\n.type %s,@function\n%s:\n' % (K, K, K)
        t += '\n'.join((fmt(i).strip().replace(', ', ',') if OPT['tight'] else fmt(i)) for i in body) + '\n'
    t += '.section .rodata,"a"\n.p2align 6\n' + desc(K1, 512, 256) + '\n'
    sys.stdout.write(t)
```

```python
import sys, os
sys.path.insert(0, os.path.dirname(os.path.abspath(__file__)))
from asmlib import *

OPT = dict(cp2=0, dgk='579b', dgv='1357', na=0, ka=1, km=0, sw=0, odbl=0, orot=0, ov=0, ovp=0, oc=3, decg=2, xr=0, xs=0, pm=0, skip='1,9,10,9,19,9', tight=0, ncl=0, chain=0, w2=0, fill='04444444404', st0pol='', wsoff=0, ptat='', ptl=0, ptpol='', peel=0, lead=4, pre9=0, kp='', vp='', cpf=0, stlast=0, stpol2='sc1', outpol='', l2two='', tlbw=0, tlbs=16, warm=0, woat=6, warmpol='none', l2pf='', l2at='', l2pol='none', xpol='', wopol='', mix=0, pol2='', drop='', padp='', pad1='', padit=0, padfrom=0, pad=0, noexp=0, pf='', pfq='', pfl=0, pfpol='nt', ppos=12, prel=0, rlpol='sc1', kill=0, fuse=1, lag=3, ptouch=7, forceslow=0, map=1, ring=4, stpol='', wpol='', rot=0, kvpol='nt', nodma=0, nost=0, wq8=1, stop='', stamps=0, thr=0x47800000, name='standalone__mha_block_cached__near_ridge')
for a in sys.argv[1:]:
    k, v = a.split('=')
    OPT[k] = v if k in ('dgk', 'dgv', 'stop', 'name', 'kvpol', 'stpol', 'wpol', 'rlpol', 'pf', 'pfq', 'pfpol', 'padp', 'pad1', 'drop', 'pol2', 'l2pf', 'l2at', 'l2pol', 'xpol', 'wopol', 'warmpol', 'l2two', 'stpol2', 'outpol', 'kp', 'vp', 'ptpol', 'st0pol', 'ptat', 'fill', 'skip') else int(v, 0)

SLOT = 17408
MF = 'v_mfma_f32_16x16x32_bf16'
def vr(b, n=4): return 'v[%d:%d]' % (b, b + n - 1) if n > 1 else 'v%d' % b
def ar(b, n=4): return 'a[%d:%d]' % (b, b + n - 1) if n > 1 else 'a%d' % b
def sr(b, n=4): return 's[%d:%d]' % (b, b + n - 1)

SK, SV, SWQ, SX, SWO, SWS = 8, 12, 16, 20, 24, 28
sWL, sWL8, sT0, sT1 = 32, 33, 34, 35
sKO, sLC, sTHR, sSC, sRET, sR0, sVO = 52, 53, 54, 56, 58, 61, 62
sBH = 63
sST = 64
def Q(ds, qb): return 4 * (ds * 4 + qb)
def S(buf, qb, T=0): return 128 + 32 * buf + 8 * qb + 4 * T
def NEGM(qb): return 192 + 4 * qb
def RING(n): return 208 + 4 * (n % 4)
L0, LT0 = 224, 228
vKA, vVAe, vVAo, vDK, vDV, vDWo, vOA, vST, vTM = 232, 233, 234, 236, 237, 235, 238, 242, 243
vSEL, vRL, vFL, vPL, vOUT, vRD, vCV, vPR, vFV, vCAS = 244, 248, 252, 253, 254, 228, 232, 234, 237, 236
sPO, sCO, sREG, sFULL, sFLO, sPLO, sRLO, sOUO = 55, 60, 5, 7, 98, 99, 100, 101
sFCO, sPCO = 33, 63
vB, vPL2 = 243, 255
SDBG, SOUT = 20, 16
BSTRIDE, FLOFF = 3670528, 3670016
def RING8(n): return 192 + 4 * ((n + 4) % 8)
vWA0, vWA1, vWA80, vWA81, vXA, vDWq, vDX = 244, 245, 246, 247, 248, 249, 250
def O(db, qb): return 4 * (db * 4 + qb)
def ACC(ds, qb, T):
    if ds < 7: return vr(8 * (ds * 4 + qb) + 4 * T)
    return ar(8 * qb + 4 * T)
def XF(j, T, qb): return (32 if j % 6 == 0 else 48 + 32 * j) + 16 * T + 4 * qb
sWX, sXP = 91, 84
def ARING(n): return 64 + 4 * (n % 4)

nstamp = [0]
def stamp(out):
    if OPT['stamps'] in (0, 2): return
    k = nstamp[0]; nstamp[0] += 1
    out.append(I('s_waitcnt lgkmcnt(0)'))
    out.append(I('%s %s' % ('s_memrealtime' if OPT['stamps'] == 3 else 's_memtime', sr(sST + 2 * k, 2))))
    out.append(I('s_waitcnt lgkmcnt(0)'))

LEAD, PEEL, CH = OPT['lead'], OPT['peel'], OPT['chain']
NCL = OPT['ncl'] or 4 + (PEEL + 1) // 2
TS = {0: 16384, 1: 4096, 2: 8192}[OPT['km']]
NA = OPT['na']
assert not (NA and PEEL)
zq = []
def put_zeros(G, soft=False, lo=0):
    while zq and (soft or fit_chain(G, zq[:1], lo, G.n - 1)): lo = softplace(G, 'v_accvgpr_write_b32 a%d, 0' % zq.pop(0), lo)
def kslot(n): return 4 + n % 5
WOB = [7, 0, 4, 2]
sKS, sVS, sKE, sVE, sMK, sKBEG, sKEND, sCD, sCI, sKD = 38, 40, 42, 44, 46, 48, 49, 84, 86, 88
def mk_sched():
    avail = {('V', 0): 6, ('V', 1): 6, ('V', 2): 7, ('V', 3): 7, ('K', 4): 15, ('K', 0): 10, ('K', 1): 11, ('K', 2): 12, ('K', 3): 13}
    order = [('K', 0), ('K', 1), ('V', 0), ('K', 2), ('V', 1), ('K', 3), ('V', 2), ('K', 4), ('V', 3)]
    done = {k: 0 for k in order}; F = {}
    for per, c in zip(range(5, 16), OPT['fill']):
        F[per] = []
        for _ in range(int(c, 36)):
            k = [k for k in order if avail[k] <= per and done[k] < 4][0]
            F[per].append((k[0], k[1], done[k])); done[k] += 1
    assert all(v == 4 for v in done.values())
    return F
FILL = mk_sched()
def fill_dmas(per):
    r = []; prev = None
    for w, n, p in FILL.get(per, []):
        r.append(dma_kv_imm(w, n, p, sT0, prev != (w, n))); prev = (w, n)
    return r
if LEAD == 4: WOS = {(28, 0): (0, 0), (29, 0): (0, 1), (30, 0): (1, 0), (31, 0): (1, 1), (29, 1): (2, 0), (30, 1): (2, 1), (31, 1): (3, 0), 0: (3, 1), 2: (4, 0), 3: (4, 1), 4: (5, 0), 5: (5, 1), 6: (6, 0), 7: (6, 1)}
else: WOS = dict(zip([(29, 0), (30, 0), (30, 1), (31, 0), (31, 1)] + list(range(9)), [(c, h) for c in range(7) for h in range(2)]))
def dma_kv(which, tile, slot, p, soff):
    srd, vo = (SK, vDK) if which == 'K' else (SV, vDV)
    pre = [I('s_add_u32 m0, s%d, %d' % (sWL, slot * SLOT + p * 64))]
    pol = OPT['pol2'] if (which, p) in [('K', 3), ('V', 3), ('K', 1), ('V', 1), ('K', 2), ('V', 2)][:OPT['mix']] else OPT['kvpol']
    d = I('buffer_load_dwordx4 v%d, %s, s%d offen offset:%d %s lds' % (vo, sr(srd), soff, p * 1024, pol.replace('+', ' ')), tag=(which, tile, p))
    return pre, d
PM = OPT['pm']; sWK = 89 if PM else sWL
kpar = [0]
sXR = 90
def ktoggle(which, p):
    if which != 'K' or kpar[0] == p & 1: return []
    kpar[0] ^= 1
    return [I('v_xor_b32 v%d, 32, v%d' % (vDK, vDK))]
def dma_dyn(which, tile, p):
    srd, vo, e = (SK, vDK, sKE) if which == 'K' else (SV, vDV, sVE)
    if PM:
        pre = ktoggle(which, p) + ([I('s_add_u32 s%d, s%d, 4096' % (e + 1, e + 1))] if p else []) + [I('s_add_u32 m0, s%d, %d' % (e, p * 4352) if p else 's_mov_b32 m0, s%d' % e)]
        return pre, I('buffer_load_dwordx4 v%d, %s, s%d offen %s lds' % (vo, sr(srd), e + 1, OPT['kvpol'].replace('+', ' ')), tag=(which, tile, p))
    pre = [I('s_add_u32 m0, s%d, %d' % (e, p * 64) if p else 's_mov_b32 m0, s%d' % e)]
    return pre, I('buffer_load_dwordx4 v%d, %s, s%d offen offset:%d %s lds' % (vo, sr(srd), e + 1, p * 1024, OPT['kvpol'].replace('+', ' ')), tag=(which, tile, p))
def dyn_next(which, k):
    st, e, m, beg, end = (sKS, sKE, sMK, sKBEG, sKEND) if which == 'K' else (sVS, sVE, sMK + 1, sWK, sKBEG)
    return [['s_bitcmp1_b32 s%d, %d' % (m, k), 's_cselect_b64 %s, %s, %s' % (sr(e, 2), sr(sCD, 2), sr(st, 2)), 's_cselect_b64 %s, 0, %s' % (sr(sT0, 2), sr(sCI, 2))],
            ['s_add_u32 s%d, s%d, s%d' % (st + 1, st + 1, sT1)]] + ([['s_xor_b32 s%d, s%d, s%d' % (e + 1, e + 1, sXR)]] if OPT['xr'] else []) + [['s_add_u32 s%d, s%d, s%d' % (st, st, sT0)],
            ['s_cmp_eq_u32 s%d, s%d' % (st, end), 's_cmov_b32 s%d, s%d' % (st, beg)]]
NOSCC = ('s_mov_b32', 's_movk_i32', 's_mul_i32', 's_cselect_b32', 's_cselect_b64', 's_cmov_b32')
def place_groups(G, groups, lo, hi):
    cur = lo
    for grp in groups:
        grp = [I(c) for c in grp]
        for extra in (0, 1, 2):
            ok = None
            for st in range(cur, hi + 1):
                gp = st; pl = []; use = {}
                for k, ins in enumerate(grp):
                    while gp <= hi and G.used[gp] + use.get(gp, 0) + ins.cost > G.cap + extra: gp += 1
                    if gp > hi: pl = None; break
                    pl.append(gp); use[gp] = use.get(gp, 0) + ins.cost
                if pl and pl[0] == st and not any(x.kind == 'branch' or (x.kind == 'salu' and x.mn not in NOSCC) for q in range(pl[0] + 1, pl[-1] + 1) for x in G.g[q]):
                    ok = pl; break
            if ok: break
        assert ok, ('no room for group', grp)
        for gp, ins in zip(ok, grp): G.put(gp, ins, force=True)
        cur = ok[-1]
    return cur
def kswitch(n):
    if 4 * PEEL + 2 <= n < 30:
        return [['s_add_u32 s%d, s%d, s%d' % (sVO, sVO, sCI)], ['s_cmp_eq_u32 s%d, %d' % (sVO, 5 * SLOT), 's_cselect_b32 s%d, %d, s%d' % (sKD, -4 * SLOT, sCI), 's_cmov_b32 s%d, 0' % sVO],
                ['v_add_u32 v%d, s%d, v%d' % (vKA, sKD, vKA)]]
    return [['v_add_u32 v%d, %d, v%d' % (vKA, SLOT, vKA) if n % 5 else 'v_subrev_u32 v%d, %d, v%d' % (vKA, 4 * SLOT, vKA)]]
def dma_wq(tile, p, st):
    slot = 4 + (tile + 1) % 5
    pre = [I('s_add_u32 m0, s%d, %d' % (sWL8, slot * SLOT + p * 1088)), I('s_mov_b32 s%d, %d' % (st, ((tile >> 1) * 64 * 8192 + (tile & 1) * 256 if CH & 32 else tile * 32 * 8192) + p * 16384))]
    d = I('buffer_load_dwordx4 v%d, %s, s%d offen %s lds' % (vDWq, sr(SWQ), st, OPT['wpol'].replace('+', ' ')), tag=('Wq', tile, p))
    return pre, d
XB = lambda j: 34816 * (1 - (j & 1))
def dma_x(j, p, st=None):
    pre = [I('s_add_u32 m0, s%d, %d' % (sWX, XB(j) + p * 1088))]
    if p == 0 and j: pre = pre + [I('v_add_u32 v%d, 128, v%d' % (vDX, vDX))]
    d = I('buffer_load_dwordx4 v%d, %s, %s offen %s lds' % (vDX, sr(SX), 's%d' % (sXP + p - 1) if p else '0', OPT['xpol'].replace('+', ' ')), tag=('X', j, p))
    return pre, d
def dma_wo(chunk, half, p, st):
    slot = WOB[chunk % 4] + half
    pre = [I('s_add_u32 m0, s%d, %d' % (sWL, slot * SLOT + p * 1088)), I('s_mov_b32 s%d, %d' % (st, half * 128 * 896 + p * 7168 + chunk * 128))]
    d = I('buffer_load_dwordx4 v%d, %s, s%d offen %s lds' % (vDWo, sr(SWO), st, OPT['wopol'].replace('+', ' ')), tag=('Wo', chunk, half, p))
    return pre, d
def dma_kv_imm(which, tile, p, st, first=None):
    slot = kslot(tile) if which == 'K' else tile % 4
    if PM:
        pre = ktoggle(which, p) + [I('s_mov_b32 s%d, %d' % (st, tile * 16384 + p * 4096)), I('s_add_u32 m0, s%d, %d' % (sWK, slot * SLOT + p * 4352))]
        return pre, I('buffer_load_dwordx4 v%d, %s, s%d offen %s lds' % (vDK if which == 'K' else vDV, sr(SK if which == 'K' else SV), st, OPT['kvpol'].replace('+', ' ')), tag=(which, tile, p))
    pre, d = dma_kv(which, tile, slot, p, st)
    if first is None: first = p == 0
    if first: pre += [I('s_xor_b32 s%d, s%d, %d' % (st, sXR, tile * 16384) if OPT['xr'] else 's_mov_b32 s%d, %d' % (st, tile * TS))]
    return pre, d
def adv(so):
    return [I('s_add_u32 s%d, s%d, %d' % (so, so, TS))]

def rd_wq(tile, n):
    ds, T = (4 * (n & 1) + (n >> 2), (n >> 1) & 1) if CH & 32 else (n >> 1, n & 1)
    slot = 4 + (tile + 1) % 5
    if slot == 8: a = (vWA80, vWA81)[(ds >> 1) & 1]; base = 0
    else: a = (vWA0, vWA1)[(ds >> 1) & 1]; base = (slot - 4) * SLOT
    r = ARING(n)
    return [I('ds_read_b64_tr_b16 %s, v%d offset:%d' % (ar(r + 2 * rho, 2), a, base + rho * 2176 + ds * 64 + T * 8), tag=('fWq', tile, n, rho)) for rho in (0, 1)]
def rd_x(j, qb, T):
    return I('ds_read_b128 %s, v%d offset:%d' % (ar(XF(j, T, qb)), vXA, XB(j) + qb * 2176 + T * 64), tag=('fX', j, qb, T))
def rd_k(t, n):
    T, ds = n >> 3, n & 7
    return [I('ds_read_b128 %s, v%d offset:%d' % (vr(RING(n)), vKA, T * 8704 + ds * 64), tag=('fK', t, n, 1))]
def rd_v(t, db):
    a = vVAo if db & 1 else vVAe
    r = RING(db)
    return [I('ds_read_b64_tr_b16 %s, v%d offset:%d' % (vr(r + 2 * rho, 2), a, (t % 4) * SLOT + rho * 8704 + db * 32), tag=('fV', t, db, rho)) for rho in (0, 1)]
def rd_wo(hc, n):
    ds, T = wo_frag(hc, n)
    nt = 2 * (hc & 1) + T
    r = RING(n)
    return [I('ds_read_b64_tr_b16 %s, v%d offset:%d' % (vr(r + 2 * rho, 2), vOA + nt, (4 * ds + 2 * rho) * 1088), tag=('fWo', hc, n, rho)) for rho in (0, 1)]

def put_dmas(G, dmas, groups):
    prev = 0
    for (pre, d), g in zip(dmas, groups):
        gp = 4 * g + 1
        G.put(gp, d)
    for (pre, d), g in zip(dmas, groups):
        gp = 4 * g + 1
        hi = gp - 1; got = []
        for ins in reversed(pre):
            for cand in range(hi, prev - 1, -1):
                if G.used[cand] + ins.cost <= G.cap:
                    G.used[cand] += ins.cost; got.append((cand, ins)); hi = cand; break
            else: G.used[hi] += ins.cost; got.append((hi, ins))
        for cand, ins in reversed(got): G.g[cand].append(ins)
        prev = gp + 1

def setup():
    o = []
    A = lambda s: o.append(I(s))
    A('s_cmp_ge_u32 s2, 256'); A('s_cbranch_scc1 L_END')
    A('s_load_dwordx16 s[36:51], s[0:1], 0')
    A('v_lshrrev_b32 v1, 6, v0'); A('v_and_b32 v0, 63, v0')
    A('v_readfirstlane_b32 s3, v1')
    A('s_and_b32 s4, s2, 7'); A('s_lshr_b32 s5, s2, 3')
    if OPT['cpf']:
        A('s_getpc_b64 s[8:9]'); A('s_lshl_b32 s6, s5, 2'); A('s_add_u32 s6, s6, s3'); A('s_mul_i32 s6, s6, %d' % (128 * NCL))
        A('s_mov_b32 s10, %d' % (16384 * NCL)); A('s_mov_b32 s11, 0x20000')
        A('v_min_u32 v201, %d, v0' % (NCL - 1)); A('v_lshlrev_b32 v201, 7, v201')
        o.append(I('buffer_load_dword v200, v201, s[8:11], s6 offen', tag=('CPF',)))
    if OPT['map'] == 0:
        A('s_and_b32 s6, s4, 3'); A('s_lshl_b32 s6, s6, 2'); A('s_and_b32 s7, s5, 3'); A('s_add_u32 s6, s6, s7')
        A('s_lshr_b32 s4, s4, 2'); A('s_lshl_b32 s4, s4, 3'); A('s_lshr_b32 s5, s5, 2'); A('s_add_u32 s4, s4, s5')
    else:
        A('s_lshr_b32 s6, s5, 1'); A('s_and_b32 s5, s5, 1'); A('s_lshl_b32 s4, s4, 1'); A('s_add_u32 s4, s4, s5')
    A('s_lshl_b32 s5, s4, 4'); A('s_add_u32 s%d, s5, s6' % sBH)
    A('s_mul_i32 s%d, s3, 4352' % sWL)
    A('s_and_b32 s7, s3, 1')
    if OPT['wq8']: A('s_lshl_b32 s7, s7, 3'); A('s_add_u32 s%d, s%d, s7' % (sWL8, sWL)); A('s_lshr_b32 s7, s7, 3')
    else: A('s_mov_b32 s%d, s%d' % (sWL8, sWL))
    A('v_and_b32 v1, 15, v0'); A('v_lshrrev_b32 v2, 4, v0'); A('v_bfe_u32 v3, v0, 2, 2'); A('v_and_b32 v4, 3, v0')
    A('v_lshrrev_b32 v5, 5, v0'); A('v_and_b32 v6, 31, v0')
    A('s_lshl_b32 s34, s3, 6'); A('v_lshrrev_b32 v7, 3, v0'); A('v_and_b32 v8, 2, v7'); A('v_add_u32 v7, s34, v7'); A('s_movk_i32 s35, 896')
    A('v_mul_lo_u32 v7, v7, s35'); A('v_and_b32 v9, 7, v0'); A('v_xor_b32 v8, v8, v9'); A('v_lshl_add_u32 v%d, v8, 4, v7' % vDX)
    A('s_lshl_b32 s%d, s%d, 1' % (sWX, sWL))
    for p in range(1, 8): A('s_movk_i32 s%d, %d' % (sXP + p - 1, p * 7168) if p < 5 else 's_mov_b32 s%d, %d' % (sXP + p - 1, p * 7168))
    A('s_lshl_b32 s34, s3, 3'); A('v_add_u32 v7, s34, v5'); A('v_lshlrev_b32 v7, 13, v7'); A('v_lshlrev_b32 v8, 3, v5')
    A('v_xor_b32 v8, v8, v6')
    if CH & 32: A('v_lshrrev_b32 v9, 4, v8'); A('v_and_b32 v8, 15, v8'); A('v_lshl_add_u32 v7, v9, 18, v7')
    A('v_lshl_add_u32 v%d, v8, 4, v7' % vDWq)
    A('s_waitcnt lgkmcnt(0)')
    def srd(d, p, off, size):
        A('s_add_u32 s%d, s%d, %s' % (d, p, off)); A('s_addc_u32 s%d, s%d, 0' % (d + 1, p + 1))
        A('s_mov_b32 s%d, %s' % (d + 2, size)); A('s_mov_b32 s%d, 0x20000' % (d + 3))
    A('s_mul_i32 s34, s4, 229376'); srd(SX, 36, 's34', '229376')
    A('s_lshl_b32 s34, s6, 9'); A('s_sub_u32 s35, 3670016, s34'); srd(SWQ, 42, 's34', 's35')
    return o

def setup2():
    o = []
    A = lambda s: o.append(I(s))
    def srd(d, p, off, size):
        A('s_add_u32 s%d, s%d, %s' % (d, p, off)); A('s_addc_u32 s%d, s%d, 0' % (d + 1, p + 1))
        A('s_mov_b32 s%d, %s' % (d + 2, size)); A('s_mov_b32 s%d, 0x20000' % (d + 3))
    A('s_lshl_b32 s34, s%d, 19' % sBH); srd(SK, 38, 's34', '524288'); srd(SV, 40, 's34', '524288')
    A('s_mul_i32 s34, s6, 229376'); srd(SWO, 44, 's34', '229376')
    A('s_mul_i32 s34, s4, %d' % BSTRIDE)
    if OPT['wsoff']: A('s_add_u32 s34, s34, %d' % (OPT['wsoff'] << 20))
    srd(SWS, 50, 's34', str(BSTRIDE))
    tw = OPT['tlbw']
    if tw:
        A('s_mov_b32 m0, %d' % (9 * SLOT)); A('v_lshlrev_b32 v255, %d, v0' % OPT['tlbs'])
        if tw & 8: A('s_mul_i32 s34, s4, 229376'); srd(40, 46, 's34', '229376')
        for bit, r in ((1, SK), (1, SV), (16, SWQ), (16, SX), (2, SWO), (4, SWS), (8, 40)):
            if tw & bit: o.append(I('buffer_load_dword v255, %s, 0 offen nt lds' % sr(r), tag=('PF',)))
    A('s_mov_b32 s%d, 0x%x' % (sTHR, OPT['thr']))
    A('s_mov_b32 s%d, 0x3db8aa3b' % sSC); A('s_mov_b32 s%d, 0x3db8aa3b' % (sSC + 1))
    if OPT['rot'] == 0: A('s_mov_b32 s%d, 0' % sKO)
    elif OPT['rot'] == 1: A('s_and_b32 s%d, s%d, 31' % (sKO, sBH))
    elif OPT['rot'] == 2: A('s_lshr_b32 s%d, s2, 3' % sKO)
    elif OPT['rot'] == 3: A('s_mul_i32 s%d, s2, 11' % sKO); A('s_lshr_b32 s34, s2, 5'); A('s_add_u32 s%d, s%d, s34' % (sKO, sKO)); A('s_and_b32 s%d, s%d, 31' % (sKO, sKO))
    elif OPT['rot'] == 4: A('s_and_b32 s%d, s2, 7' % sKO); A('s_lshl_b32 s%d, s%d, 2' % (sKO, sKO))
    A('s_lshl_b32 s%d, s%d, 14' % (sKO, sKO)); A('s_mov_b32 s%d, s%d' % (sVO, sKO)); A('s_mov_b32 s%d, %d' % (sLC, PEEL))
    A('s_movk_i32 s35, 1088')
    A('v_lshrrev_b32 v7, 3, v1'); A('v_and_b32 v8, 2, v1'); A('v_xor_b32 v8, v8, v2'); A('v_lshlrev_b32 v8, 4, v8')
    A('v_and_b32 v9, 7, v1'); A('v_lshl_add_u32 v8, v9, 7, v8'); A('v_mad_u32_u24 v8, v7, s35, v8'); A('v_lshl_add_u32 v%d, s%d, 1, v8' % (vXA, sWL))
    A('v_lshrrev_b32 v9, 1, v3'); A('v_and_b32 v10, 1, v3')
    A('v_lshl_add_u32 v8, v2, 2, v9'); A('v_mul_lo_u32 v8, v8, s35'); A('v_lshl_add_u32 v8, v4, 4, v8')
    if OPT['wq8']: A('v_and_b32 v11, 1, v2'); A('v_lshl_add_u32 v8, v11, 3, v8')
    A('v_add_u32 v8, %d, v8' % (4 * SLOT))
    A('v_mul_u32_u24 v11, 640, v10'); A('v_add_u32 v%d, v8, v11' % vWA0)
    A('v_mul_u32_u24 v11, 384, v10'); A('v_add_u32 v%d, v8, v11' % vWA1)
    A('v_add_u32 v%d, %d, v%d' % (vWA80, 4 * SLOT, vWA0)); A('v_add_u32 v%d, %d, v%d' % (vWA81, 4 * SLOT, vWA1))
    A('v_lshrrev_b32 v8, 1, v1'); A('v_mul_lo_u32 v8, v8, s35'); A('v_and_b32 v11, 1, v1'); A('v_lshl_add_u32 v8, v11, 9, v8')
    A('v_lshl_or_b32 v11, v7, 1, v11'); A('v_xor_b32 v11, v11, v2'); A('v_add_u32 v8, %d, v8' % (4 * SLOT)); A('v_lshl_add_u32 v%d, v11, 4, v8' % vKA)
    A('v_lshl_add_u32 v8, v2, 1, v9'); A('v_mul_lo_u32 v8, v8, s35'); A('v_lshl_add_u32 v8, v4, 3, v8')
    A('v_mul_u32_u24 v11, 544, v10'); A('v_add_u32 v%d, v8, v11' % vVAe)
    A('v_mul_u32_u24 v11, 480, v10'); A('v_add_u32 v%d, v8, v11' % vVAo)
    A('s_lshl_b32 s34, s3, 12'); A('v_lshlrev_b32 v8, 9, v5'); A('v_add_u32 v8, s34, v8')
    if OPT['km'] == 1: A('s_mul_i32 s5, s3, %d' % (131072 - 4096)); A('v_add_u32 v8, s5, v8')
    if OPT['km'] == 2: A('s_lshr_b32 s5, s3, 1'); A('s_mul_i32 s5, s5, %d' % (262144 - 8192)); A('v_add_u32 v8, s5, v8')
    if PM: A('s_lshl_b32 s5, s3, 10'); A('v_lshlrev_b32 v8, 9, v5'); A('v_add_u32 v8, s5, v8'); A('v_xor_b32 v11, v5, v6'); A('v_lshl_add_u32 v%d, v11, 4, v8' % vDK)
    else: A('s_lshl_b32 s5, s7, 1'); A('v_or_b32 v11, s5, v5'); A('v_xor_b32 v11, v11, v6'); A('v_lshl_add_u32 v%d, v11, 4, v8' % vDK)
    A('v_lshlrev_b32 v11, 1, v5'); A('v_xor_b32 v11, v11, v6'); A('v_lshl_add_u32 v%d, v11, 4, v8' % vDV)
    A('v_lshlrev_b32 v8, 8, v3'); A('v_lshl_add_u32 v8, v2, 6, v8'); A('v_lshl_add_u32 v8, v4, 4, v8'); A('v_add_u32 v%d, s34, v8' % vST)
    A('s_lshl_b32 s34, s3, 5'); A('v_lshrrev_b32 v8, 3, v0'); A('v_add_u32 v8, s34, v8'); A('s_movk_i32 s5, 896'); A('v_mul_lo_u32 v8, v8, s5')
    A('v_and_b32 v11, 7, v0'); A('v_lshlrev_b32 v12, 1, v2'); A('v_xor_b32 v11, v11, v12'); A('v_lshl_add_u32 v%d, v11, 4, v8' % vDWo)
    A('v_lshrrev_b32 v8, 1, v2'); A('v_mul_lo_u32 v8, v8, s35'); A('v_and_b32 v11, 1, v2'); A('v_lshl_add_u32 v11, v11, 2, v3')
    A('v_lshl_add_u32 v8, v11, 7, v8'); A('v_lshl_add_u32 v8, v4, 3, v8'); A('v_lshrrev_b32 v11, 1, v11'); A('v_add_u32 v8, %d, v8' % (WOB[0] * SLOT))
    for nt in range(4):
        A('v_xor_b32 v12, %d, v11' % nt); A('v_lshl_add_u32 v%d, v12, 5, v8' % (vOA + nt))
    for qb in range(4): A('v_mov_b32 v%d, 0' % (L0 + qb))
    A('s_mul_i32 s%d, s6, 229376' % sPO)
    A('s_lshl_b32 s34, s3, 7'); A('s_lshl_b32 s35, s6, 2'); A('s_add_u32 s34, s34, s35'); A('s_add_u32 s%d, s34, %d' % (sFLO, FLOFF))
    A('s_lshr_b32 s34, s6, 2'); A('s_lshl_b32 s34, s34, 7'); A('s_add_u32 s%d, s34, %d' % (sPLO, FLOFF))
    A('s_lshl_b32 s34, s6, 10'); A('s_lshl_b32 s35, s3, 8'); A('s_add_u32 s%d, s34, s35' % sRLO)
    A('s_mul_i32 s34, s6, 14336'); A('s_mul_i32 s35, s3, 3584'); A('s_add_u32 s%d, s34, s35' % sOUO)
    A('s_lshl_b32 s%d, s4, 4' % sCO)
    A('s_getreg_b32 s34, hwreg(HW_REG_XCC_ID, 0, 4)')
    if OPT['forceslow'] == 1: A('s_and_b32 s34, s6, 1')
    A('s_or_b32 s%d, s34, 0x80' % sREG); A('s_mul_i32 s%d, s%d, 0x01010101' % (sFULL, sREG))
    A('s_and_b32 s34, s6, 3'); A('s_lshl_b32 s34, s34, 2'); A('s_add_u32 s34, s34, s3'); A('s_lshl_b32 s34, s34, 2'); A('s_add_u32 s34, s34, s%d' % sPLO); A('s_add_u32 s34, s34, 64')
    A('v_lshl_add_u32 v8, v0, 9, s%d' % sFLO); A('v_writelane_b32 v8, s34, 1')
    A('v_mul_u32_u24 v9, %d, v0' % (OPT['ring'] - OPT['lag'] + 1))
    o.append(I('buffer_store_dword v9, v8, %s, 0 offen' % sr(SWS), tag=('Fz',)))
    return o

sPF, sPFt, vPA, vPL128, vPD = 36, 37, 254, 255, 231
pfstate = dict(n=None)
def pf_items(n):
    pre = []
    if pfstate['n'] != n:
        pre += ['v_min_u32 v%d, %d, v%d' % (vPA, (n - 1) * 128, vPL128)]
        pfstate['n'] = n
    pre += ['s_mul_i32 s%d, s3, %d' % (sPFt, n * 128), 's_add_u32 s%d, s%d, s%d' % (sPFt, sPFt, sPF), 's_add_u32 s%d, s%d, %d' % (sPF, sPF, n * 512)]
    pol = OPT['pfpol'].replace('+', ' ').replace('none', '')
    lds = [I('buffer_load_dword v%d, %s, s%d offen %s lds' % (vPA, sr(r), sPFt, pol), tag=('PF',)) for r in (SK, SV)]
    return [([I(p) for p in pre] + [I('s_mov_b32 m0, %d' % (9 * SLOT))], lds[0]), ([], lds[1])]
l2state = dict(n=None)
def l2_items(k):
    its = [i for i, c in enumerate(OPT['l2pf']) if c != '0']
    it, st = its[k // 2], k & 1
    n = 4 * int(OPT['l2pf'][it], 36)
    pre = []
    if l2state['n'] != n:
        pre += ['v_min_u32 v254, %d, v251' % ((n - 1) * 128), 'v_add_u32 v254, v254, v255']; l2state['n'] = n
    pre += ['s_mov_b32 s%d, %d' % (sPFt, (4 * it + LEAD - st) * 16384), 's_mov_b32 m0, %d' % (9 * SLOT)]
    pol = OPT['l2pol'].replace('+', ' ').replace('none', '')
    return ([I(p) for p in pre], I('buffer_load_dword v254, %s, s%d offen %s lds' % (sr(SV if st else SK), sPFt, pol), tag=('PF',)))
def pflist(x): return [int(c, 36) for c in x]

def phase1():
    o = []
    k = 0
    for f, t, n in ((dma_x, 0, 8), (dma_wq, 0, 4), (dma_wq, 1, 4), (dma_x, 1, 8), (dma_wq, 2, 4), (dma_wq, 3, 4)):
        for p in range(n):
            pre, d = f(t, p, sT0 + (k & 1)); k += 1
            o += pre + ([I('s_nop 0')] if len(pre) < 2 else []); o.append(d)
    o += setup2()
    wp = OPT['warmpol'].replace('+', ' ').replace('none', '')
    if OPT['warm']: o.append(I('s_mov_b32 m0, %d' % (9 * SLOT)))
    if OPT['warm'] & 2:
        o += [I(c) for c in ['v_bfe_u32 v251, v0, 3, 2', 'v_and_b32 v252, 7, v0', 'v_min_u32 v252, 4, v252', 'v_mul_u32_u24 v251, 896, v251', 'v_lshl_add_u32 v251, v252, 7, v251',
              's_lshl_b32 s36, s6, 2', 's_add_u32 s36, s36, s3', 's_mul_i32 s36, s36, 3584', 's_add_u32 s36, s36, 256']]
        o.append(I('buffer_load_dword v251, %s, s36 offen %s lds' % (sr(SX), wp), tag=('PF',)))
    if OPT['warm'] & 1:
        o += [I(c) for c in ['v_min_u32 v252, 19, v0', 'v_lshrrev_b32 v252, 2, v252', 'v_lshlrev_b32 v252, 13, v252', 'v_lshl_add_u32 v252, v4, 7, v252',
              's_lshl_b32 s37, s4, 2', 's_add_u32 s37, s37, s3', 's_mul_i32 s37, s37, 40960', 's_add_u32 s37, s37, %d' % (128 * 8192)]]
        o.append(I('buffer_load_dword v252, %s, s37 offen %s lds' % (sr(SWQ), wp), tag=('PF',)))
    if OPT['warm'] & 4 and OPT['woat'] <= 14:
        o += [I(c) for c in ['v_bfe_u32 v253, v0, 3, 2', 'v_and_b32 v254, 7, v0', 'v_min_u32 v254, 6, v254', 'v_mul_u32_u24 v253, 896, v253', 'v_lshl_add_u32 v253, v254, 7, v253']]
    if OPT['l2pf']:
        o += [I('v_and_b32 v251, 15, v0'), I('v_lshlrev_b32 v251, 7, v251'), I('v_lshrrev_b32 v255, 4, v0'), I('v_lshlrev_b32 v255, 14, v255'),
              I('s_lshl_b32 s%d, s3, 12' % sPFt), I('v_add_u32 v255, s%d, v255' % sPFt)]
    o.append(W(vm=('Wq', 0, 3))); o.append(I('s_barrier'))
    for qb in range(4): o.append(rd_x(0, qb, 0))
    o += rd_wq(0, 0) + [rd_x(0, 0, 1), rd_x(0, 1, 1)] + rd_wq(0, 1) + [rd_x(0, 2, 1), rd_x(0, 3, 1)] + rd_wq(0, 2) + rd_wq(0, 3)
    o.append(W(lg=('fX', 0, 3, 1) if CH & 32 else ('fWq', 0, 0, 1)))
    stamp(o)
    for i in range(14):
        mf = []
        for n in range(16):
            ds, T = n >> 1, n & 1
            for qb in (range(3, -1, -1) if CH & 16 and n & 1 else range(4)):
                d = ACC(ds, qb, T)
                mf.append(I('%s %s, %s, %s, %s' % (MF, d, ar(ARING(n)), ar(XF(i >> 1, i & 1, qb)), '0' if i == 0 else d)))
        if CH & 32:
            mf = []
            for g in range(8):
                for qb in (range(3, -1, -1) if CH & 16 and g & 1 else range(4)):
                    for kk in range(2):
                        d = ACC(4 * (i & 1) + (g >> 1), qb, g & 1)
                        mf.append(I('%s %s, %s, %s, %s' % (MF, d, ar(ARING(2 * g + kk)), ar(XF(i >> 1, kk, qb)), '0' if i < 2 and kk == 0 else d)))
        G = Gaps(mf)
        if CH & 32:
            if i < 13: G.put(50, W(vm=[('Wq', i + 1, 3)] + ([('X', i + 1, 7)] if i < 6 else []))); G.put(50, 's_barrier')
            for g in range(8):
                rs = [rd_wq(i, nx) if nx < 16 else rd_wq(i + 1, nx - 16) if i < 13 else [] for nx in (2 * g + 4, 2 * g + 5)]
                for r in rs[0]: G.put(8 * g + 6, r)
                if g < 7 or i < 13: G.put(8 * g + 7, W(lg=('fWq', i, 2 * g + 3, 1) if g < 7 else ('fWq', i + 1, 1, 1)))
                for k, r in enumerate(rs[1]): G.put(8 * g + 7 + (k if g < 7 else 0), r, force=True)
        for g in range(0 if CH & 32 else 16):
            nx = g + 4
            if nx < 16:
                for r in rd_wq(i, nx): G.put(4 * g + 3, r)
            elif i < 13:
                for r in rd_wq(i + 1, nx - 16): G.put(4 * g + 3, r)
            if g < 15:
                if g == 12 and i < 13:
                    G.put(4 * g + 2, W(lg=('fWq', i, g + 1, 1), vm=[('Wq', i + 1, 3)] + ([('X', i + 1, 7)] if i < 6 else []))); G.put(4 * g + 2, 's_barrier')
                else: G.put(4 * g + 2, W(lg=('fWq', i, g + 1, 1)))
            elif i < 13: G.put(4 * g + 2, W(lg=('fWq', i + 1, 0, 1)))
        if i < 6:
            for qb in range(4):
                for T in range(2): G.put(((52, 53, 58, 59) if CH & 32 else (52, 53, 56, 57))[qb], rd_x(i + 1, qb, T))
        dm = []
        if i < 5: dm = [dma_x(i + 2, p) for p in range(8)]
        fl = fill_dmas(i)
        wq = [dma_wq(i + 4, p, sT1) for p in range(4)] if i <= 9 else []
        if wq and fl:
            while wq or fl:
                if wq: dm.append(wq.pop(0))
                if fl: dm.append(fl.pop(0))
        else: dm += wq + fl
        n = len(dm)
        grp = list(range(1, 13)) if n == 12 else [1 + (k * 12) // n for k in range(n)]
        if OPT['l2pf']:
            ks = [k for k, c in enumerate(OPT['l2at']) if int(c, 36) == i]
            cand = (14, 15) if i >= 6 else ((12, 15) if i == 5 else (15,))
            assert len(ks) <= len(cand)
            for k, g in zip(ks, cand): dm.append(l2_items(k)); grp = grp + [g]
            if OPT['l2two'] and ks:
                assert len(ks) == 1
                d = dm[-1][1]
                dm.append(([], I(d.text.split(' offen')[0] + ' offen %s lds' % OPT['l2two'].replace('+', ' ').replace('none', ''), tag=('PF',)))); grp = grp + [15]
            assert len(ks) <= 2
        if OPT['warm'] & 4 and i == OPT['woat']:
            assert len(grp) == len([g for g in grp if g < 14])
            dm.append(([I(c) for c in ['s_lshl_b32 s37, s4, 2', 's_add_u32 s37, s37, s3', 's_mul_i32 s37, s37, 3584', 's_mov_b32 m0, %d' % (9 * SLOT)]],
                       I('buffer_load_dword v253, %s, s37 offen %s lds' % (sr(SWO), wp), tag=('PF',)))); grp = grp + [15]
        put_dmas(G, dm, grp)
        if i == 11 and OPT['cp2']:
            place_groups(G, [['s_getpc_b64 s[72:73]', 'L_GP2:'], ['s_add_u32 s72, s72, L_TAILC-L_GP2', 's_addc_u32 s73, s73, 0'], ['s_movk_i32 s74, 0x7f80'], ['s_mov_b32 s75, 0x20000'], ['s_lshl_b32 s76, s3, 13']], 50, 63)
        if i == 5 and PM: G.place('s_mul_i32 s%d, s3, 1088' % sWK)
        if i == 5 and OPT['xr']: G.chain(['s_lshr_b32 s%d, s2, %d' % (sXR, OPT['xs']), 's_and_b32 s%d, s%d, %d' % (sXR, sXR, OPT['xr']), 's_lshl_b32 s%d, s%d, 14' % (sXR, sXR)])
        if i == 12:
            G.chain(['s_mov_b32 s%d, s48' % SDBG, 's_mov_b32 s%d, s49' % (SDBG + 1), 's_movk_i32 s%d, 256' % (SDBG + 2),
                     's_mul_i32 s%d, s4, 229376' % sT1, 's_add_u32 s%d, s46, s%d' % (SOUT, sT1), 's_addc_u32 s%d, s47, 0' % (SOUT + 1), 's_mov_b32 s%d, 229376' % (SOUT + 2)], 8)
        if i == 13:
            G.chain(['s_and_b32 s%d, s6, 3' % sFCO, 's_lshl_b32 s%d, s%d, 2' % (sFCO, sFCO), 's_add_u32 s%d, s%d, s3' % (sFCO, sFCO), 's_lshl_b32 s%d, s%d, 2' % (sFCO, sFCO),
                     's_add_u32 s%d, s%d, s%d' % (sFCO, sFCO, sPLO), 's_add_u32 s%d, s%d, 64' % (sFCO, sFCO),
                     's_lshl_b32 s%d, s3, 7' % sPCO, 's_add_u32 s%d, s%d, %d' % (sPCO, sPCO, FLOFF + 64), 's_sub_u32 s%d, s%d, s%d' % (sPCO, sPCO, sPLO)], 30)
        if i == 13:
            k0, kn, v0, vn, k1, km = [int(c) for c in OPT['skip'].split(',')]
            ch = ['s_mov_b32 s%d, %d' % (sCD, 9 * SLOT), 's_mov_b32 s%d, 0x80000' % (sCD + 1), 's_movk_i32 s%d, %d' % (sCI, SLOT), 's_movk_i32 s%d, %d' % (sCI + 1, TS),
                  's_add_u32 s%d, s%d, %d' % (sKBEG, sWK, 4 * SLOT), 's_add_u32 s%d, s%d, %d' % (sKEND, sWK, 9 * SLOT),
                  's_mov_b32 s%d, s%d' % (sKS, sKBEG), 's_mov_b32 s%d, %d' % (sKS + 1, 5 * TS), 's_mov_b32 s%d, s%d' % (sVS, sWK), 's_mov_b32 s%d, %d' % (sVS + 1, 4 * TS),
                  's_mul_i32 s%d, s2, 79' % sKD, 's_and_b32 s%d, s%d, 0xff' % (sKD, sKD)]
            if OPT['sw']: ch[-2:] = ['s_lshl_b32 s%d, s3, 6' % sKD]
            def pos(d, base, n): return ['s_mul_i32 s%d, s%d, %d' % (d, sKD, n), 's_lshr_b32 s%d, s%d, 8' % (d, d), 's_add_u32 s%d, s%d, %d' % (d, d, base)]
            ch += ['s_mov_b32 s%d, 0' % sMK, 's_mov_b32 s%d, 1' % (sMK + 1)]
            ch += pos(sKE, k0, kn) + ['s_bitset1_b32 s%d, s%d' % (sMK, sKE)] + pos(sKE, k1, km) + ['s_bitset1_b32 s%d, s%d' % (sMK, sKE)] + pos(sKE, v0, vn) + ['s_bitset1_b32 s%d, s%d' % (sMK + 1, sKE)]
            assert v0 >= 4 * NA - 2 + (NA == 6) and (k1 >= 4 * NA - 2 + (NA == 6) or not OPT['ka'])
            assert k0 + kn <= k1 and k1 + km <= 28 and 1 <= v0 and v0 + vn <= 28
            G.chain(ch, 0)
        if PEEL == 0:
            if i == 5: zq.extend(range(240, 256))
            if 5 <= i < 13 and i & 1: zq.extend(range(48 + 32 * ((i - 3) // 2), 80 + 32 * ((i - 3) // 2)))
            if i == 12: zq.extend(range(208, 240))
            if i == 13 and not CH & 32: zq.extend(range(32, 48))
            if i >= 5: put_zeros(G)
        o += G.flat()
    stamp(o)
    o.append(I('s_nop 3'))
    def conv(src, dst):
        r = []
        for k in range(4): r.append(I('v_pk_mul_f32 %s, %s, %s' % (vr(src + 2 * k, 2), vr(src + 2 * k, 2), sr(sSC, 2))))
        for k in range(4): r.append(I('v_cvt_pk_bf16_f32 v%d, v%d, v%d' % (dst + k, src + 2 * k, src + 2 * k + 1)))
        return r
    fl = fill_dmas(14)
    for f in range(28):
        o += conv(8 * f, 4 * f)
        if f % 6 == 2 and fl:
            pre, d = fl.pop(0); o += pre + [I('s_nop 0'), d]
    assert not fl
    o.append(W(vm=('K', 0, 3))); o.append(I('s_barrier'))
    for n in range(4): o += rd_k(0, n)
    for k in range(32): o.append(I('v_accvgpr_read_b32 v%d, a%d' % (128 + k, k)))
    for qb in range(4): o += conv(128 + 8 * qb, Q(7, qb))
    o.append(W(lg=('fK', 0, CH & 1, 1)))
    return o

def softmax_items(buf, qb):
    b = S(buf, qb); lt = LT0 + qb
    it = []
    for k in range(8):
        it.append(('e', k, I('v_exp_f32 v%d, v%d' % (b + k, b + k))))
        if k == 1: it.append(('v', k, I('v_add_f32 v%d, v%d, v%d' % (lt, b, b + 1))))
        elif k > 1: it.append(('v', k, I('v_add_f32 v%d, v%d, v%d' % (lt, lt, b + k))))
        if k & 1: it.append(('v', k, I('v_cvt_pk_bf16_f32 v%d, v%d, v%d' % (b + k // 2, b + k - 1, b + k))))
    return it

def place_softmax(G, buf, qbs, expgaps):
    eg = list(expgaps); pend = []
    for qb in qbs:
        for kind, k, ins in softmax_items(buf, qb):
            if kind == 'e':
                gp = eg.pop(0); G.put(gp, ins); last = gp
            else: pend.append((ins, last + 1))
    return pend

def place_chain(G, pend):
    cur = 0
    for ins, lo in pend: cur = G.place(ins, max(cur, lo))
    return cur

stubs = []
def check_items(t):
    lab = 'RS_%d' % (t % 4 + 4 * (t < 4 * NA) if 4 * PEEL <= t < 28 else 100 + t)
    if lab not in [s[0] for s in stubs]: stubs.append((lab, t & 1))
    return [I('v_max_f32 v%d, v%d, v%d' % (vTM, vTM, LT0 + 3)), I('v_cmp_lt_f32 vcc, s%d, v%d' % (sTHR, vTM)),
            I('s_cbranch_vccnz %s' % lab), I('%s_RET:' % lab)]

def qk_mfmas(t1, first):
    mf = []
    for n, qb in ([(2 * G + k, qb) for G in range(8) for qb in range(4) for k in range(2)] if CH & 1 else [(n, qb) for n in range(16) for qb in range(4)]):
        T, ds = n >> 3, n & 7
        d = vr(S(t1 & 1, qb, T))
        c = d if ds else ('0' if first else vr(NEGM(qb)))
        mf.append(I('%s %s, %s, %s, %s' % (MF, d, vr(RING(n)), vr(Q(ds, qb)), c)))
    return mf
def qk_reads(G, t1, nxt, nxt_tag):
    for g in range(8):
        if OPT['w2'] and g: G.put(8 * g, W(lg=('fK', t1, 2 * g + 1, 1)))
        rs = [rd_k(t1, nx) if nx < 16 else nxt(nx - 16) for nx in (2 * g + 4, 2 * g + 5)]
        for r in rs[0]: G.put(8 * g + 6, r)
        G.put(8 * g + 7, W(lg=('fK', t1, 2 * g + 3 - OPT['w2'], 1) if g < 7 else nxt_tag))
        for k, r in enumerate(rs[1]): G.put(8 * g + 7 + (k if g < 7 else 0), r, force=True)
def pv_mfmas(t):
    mf = []
    for db in range(16):
        for qb in (range(3, -1, -1) if CH & 2 and db & 1 else range(4)):
            d = ar(O(db, qb))
            mf.append(I('%s %s, %s, %s, %s' % (MF, d, vr(RING(db)), vr(S(t & 1, qb)), d if t or PEEL == 0 else '0')))
    return mf

def prologue():
    o = []
    G = Gaps(qk_mfmas(0, True))
    if CH & 1:
        G.put(50, W(vm=[('K', 1, 3), ('V', 0, 3)])); G.put(50, 's_barrier')
        qk_reads(G, 0, lambda n: rd_k(1, n), ('fK', 1, 1, 1))
    for g in range(0 if CH & 1 else 16):
        nx = g + 4
        for r in (rd_k(0, nx) if nx < 16 else rd_k(1, nx - 16)): G.put(4 * g + 3, r)
        if g == 12:
            G.put(4 * g + 2, W(lg=('fK', 0, g + 1, 1), vm=[('K', 1, 3), ('V', 0, 3)])); G.put(4 * g + 2, 's_barrier')
        elif g < 15: G.put(4 * g + 2, W(lg=('fK', 0, g + 1, 1)))
        else: G.put(4 * g + 2, W(lg=('fK', 1, 0, 1)))
    G.chain(['s_mov_b32 s%d, %d' % (sKO, LEAD * TS), 's_mov_b32 s%d, %d' % (sVO, ((4 * PEEL + 1) % 5) * SLOT)])
    place_groups(G, kswitch(1), 48, 53)
    dm = fill_dmas(15)
    grp = [1 + (k * 14) // len(dm) for k in range(len(dm))]
    if OPT['warm'] & 4 and OPT['woat'] == 14:
        dm.append(([I(c) for c in ['s_lshl_b32 s37, s4, 2', 's_add_u32 s37, s37, s3', 's_mul_i32 s37, s37, 3584', 's_mov_b32 m0, %d' % (9 * SLOT)]],
                   I('buffer_load_dword v253, %s, s37 offen %s lds' % (sr(SWO), OPT['warmpol'].replace('+', ' ').replace('none', '')), tag=('PF',)))); grp = grp + [14]
    put_dmas(G, dm, grp)
    if PEEL == 0:
        print('; zeros left for the prologue', len(zq), file=sys.stderr)
        zq.extend(list(range(32 if CH & 32 else 48, 80)) + list(range(32))); put_zeros(G, True)
    if OPT['prel']: o.insert(0, I('buffer_load_dword v254, off, %s, s%d sc1' % (sr(SDBG), sCO), tag=('Prel',)))
    o += G.flat()
    A = lambda s: o.append(I(s))
    if OPT['prel'] == 2: o.append(W(vm=('Prel',)))
    A('v_mbcnt_lo_u32_b32 v252, -1, 0'); A('v_mov_b32 v253, s%d' % sREG)
    A('v_or_b32 v252, s3, v252'); A('v_lshl_add_u32 v252, v252, 8, s6')
    if OPT['forceslow'] == 2:
        A('s_and_b32 s%d, s4, 1' % sT0); A('s_lshl_b32 s%d, s%d, 8' % (sT0, sT0)); A('s_cmp_eq_u32 s6, 0'); A('s_cselect_b32 s%d, s%d, 0' % (sT0, sT0)); A('v_add_u32 v252, s%d, v252' % sT0)
    o.append(I('buffer_store_byte v253, v252, %s, s%d offen' % (sr(SDBG), sCO), tag=('Reg',)))
    A('s_nop 1')
    tm = [244, 245, 246, 247]; tc = [248, 249, 250, 251]
    for st in range(4):
        for qb in range(4):
            b = S(0, qb)
            if st == 0: A('v_max3_f32 v%d, v%d, v%d, v%d' % (tm[qb], b, b + 1, b + 2))
            elif st < 3: A('v_max3_f32 v%d, v%d, v%d, v%d' % (tm[qb], tm[qb], b + 2 * st + 1, b + 2 * st + 2))
            else: A('v_max_f32 v%d, v%d, v%d' % (tm[qb], tm[qb], b + 7))
    for sw in ('v_permlane32_swap_b32', 'v_permlane16_swap_b32'):
        for qb in range(4): A('v_mov_b32 v%d, v%d' % (tc[qb], tm[qb]))
        for qb in range(4): A('%s v%d, v%d' % (sw, tm[qb], tc[qb]))
        for qb in range(4): A('v_max_f32 v%d, v%d, v%d' % (tm[qb], tm[qb], tc[qb]))
    for qb in range(4):
        for r in range(4): A('v_sub_f32 v%d, 0, v%d' % (NEGM(qb) + r, tm[qb]))
    for qb in range(4):
        for k in range(8): A('v_sub_f32 v%d, v%d, v%d' % (S(0, qb) + k, S(0, qb) + k, tm[qb]))
    i0 = softmax_items(0, 0); i1 = softmax_items(0, 1)
    for x, y in zip(i0, i1): o.append(x[2]); o.append(y[2])
    return o

def padput(G, n, t, half):
    if OPT['padp']:
        prof = [int(c, 36) for c in OPT['padp']]
        mx = max(prof)
        for k in range(half, mx, 2):
            gp = 6 + 10 * (k // 2)
            if t >= 28:
                if prof[7] > k: G.put(gp, 's_nop 15', force=True)
                continue
            N = sum(1 for p in prof[:7] if p > k)
            if N == 0: continue
            lab = 'PAD_%d_%d' % (t % 4, k)
            if N < 7:
                G.put(gp, 's_cmp_lt_u32 s%d, %d' % (sLC, N), force=True); G.put(gp, 's_cbranch_scc0 %s' % lab, force=True)
            G.put(gp, 's_nop 15', force=True)
            if N < 7: G.put(gp, I(lab + ':'), force=True)
        return
    cond = OPT['padit'] or OPT['padfrom']
    if cond and t >= 28:
        if OPT['padit']: return
        cond = False
    for k in range(n):
        gp = 10 + 12 * k
        if cond:
            lab = 'PAD_%d_%d_%d' % (t % 4, half, k)
            G.put(gp, ('s_cmp_lt_u32 s%d, %d' % (sLC, OPT['padit'])) if OPT['padit'] else ('s_cmp_ge_u32 s%d, %d' % (sLC, OPT['padfrom'])), force=True)
            G.put(gp, 's_cbranch_scc0 %s' % lab, force=True)
        G.put(gp, 's_nop 15', force=True)
        if cond: G.put(gp, I(lab + ':'), force=True)

def addr_chain(c):
    ch = ['v_mbcnt_lo_u32_b32 v255, -1, 0', 'v_mbcnt_hi_u32_b32 v255, -1, v255', 's_mov_b32 s%d, 229376' % sVO,
          'v_and_b32 vCC, 15, v255', 'v_lshrrev_b32 v254, 4, v255',
          'v_lshl_add_u32 v%d, v255, 9, s%d' % (vFL, sFLO), 'v_lshl_add_u32 v%d, vCC, 4, s%d' % (vRL, sRLO),
          'v_writelane_b32 v%d, s%d, 1' % (vFL, sFCO), 'v_mad_u32_u24 v%d, v254, s%d, v%d' % (vRL, sVO, vRL)]
    ch += ['v_add_u32 v%d, %d, v%d' % (vRL + j, j * 917504, vRL) for j in (1, 2, 3)]
    ch += ['v_and_b32 v255, 1, v254', 'v_mul_lo_u32 v255, v255, s%d' % sPCO, 'v_lshl_add_u32 v%d, vCC, 2, s%d' % (vPL, sPLO), 'v_add_u32 v%d, v255, v%d' % (vPL, vPL)]
    ch += ['v_lshrrev_b32 v255, 1, v254', 'v_lshlrev_b32 v254, 5, v254', 'v_lshl_add_u32 v254, v255, 20, v254', 'v_add_u32 v254, s%d, v254' % sOUO,
           'v_lshrrev_b32 v255, 2, vCC', 'v_lshl_add_u32 v254, v255, 3, v254', 'v_and_b32 v255, 3, vCC', 'v_mul_u32_u24 v255, 896, v255', 'v_add_u32 v%d, v255, v254' % vOUT]
    ch += ['v_and_b32 v255, 1, vCC', 'v_lshlrev_b32 v255, 4, v255', 'v_lshlrev_b32 v255, v255, v%d' % vSEL, 'v_lshrrev_b32 v%d, 1, vCC' % (vSEL + 3), 'v_lshlrev_b32 v%d, v%d, 1' % (vSEL + 3, vSEL + 3)]
    ch.insert(0, 'v_mov_b32 v%d, 0x3f80' % vSEL)
    for r in range(4): ch += ['v_bfe_i32 v%d, v%d, %d, 1' % (vSEL + r, vSEL + 3, r), 'v_and_b32 v%d, v255, v%d' % (vSEL + r, vSEL + r)]
    return [x.replace('vCC', 'v%d' % c) for x in ch]
def addr_fin(re): return (['v_mbcnt_lo_u32_b32 v243, -1, 0', 'v_mbcnt_hi_u32_b32 v243, -1, v243', 'v_and_b32 v243, 15, v243'] if re else []) + ['v_lshl_add_u32 v%d, v243, 2, s%d' % (vPL2, sPLO), 'v_mul_i32_i24 v%d, %d, v243' % (vB, OPT['ring'] - 2 * OPT['lag'] + 2)]
achain = []; adone = []; redo = {}
oblk = [(ds, qb) for ds in range(8) for qb in range(4)]
def oblock(ds, qb, tmp):
    return ['v_accvgpr_read_b32 v%d, a%d' % (tmp + 4 * T + r, O(2 * ds + T, qb) + r) for T in range(2) for r in range(4)] + ['v_cvt_pk_bf16_f32 v%d, v%d, v%d' % (Q(ds, qb) + j, tmp + 2 * j, tmp + 2 * j + 1) for j in range(4)]
def fit_chain(G, items, lo, hi):
    use = {}; pl = []; gp = lo
    for c in items:
        while gp <= hi and G.used[gp] + use.get(gp, 0) + 1 > G.cap: gp += 1
        if gp > hi: return None
        pl.append(gp); use[gp] = use.get(gp, 0) + 1
    return pl
def step(t):
    o = []
    cur = t & 1
    max3 = I('v_max3_f32 v%d, v%d, v%d, v%d' % (vTM, LT0, LT0 + 1, LT0 + 2))
    ladd = [I('v_add_f32 v%d, v%d, v%d' % (L0 + q, L0 + q, LT0 + q)) for q in range(4)]
    if t < 28: dK = [dma_dyn('K', t + LEAD + (t < 4 * NA) * OPT['ka'], p) for p in range(4)]; dV = [dma_dyn('V', t + LEAD - (t >= 4 * NA), p) for p in range(4)]
    else:
        dK = [dma_kv_imm('K', t + LEAD, p, sT0) if t + LEAD < 32 else dma_wo(*WOS[t, 0], p, sT0) for p in range(4)]
        dV = [dma_kv_imm('V', t + LEAD - 1, p, sT0) if t + LEAD < 33 else dma_wo(*WOS[t, 1], p, sT0) for p in range(4)]
    if t < 31:
        G = Gaps(qk_mfmas(t + 1, False))
        eg = [0, 4, 5, 8, 12, 13] + [4 * g for g in range(4, 14)]
        if CH & 1:
            qk_reads(G, t + 1, lambda n: rd_v(t, n), ('fV', t, 0, 1))
            eg = [8 * g + k for g in range(7) for k in ((1, 3) if OPT['w2'] else (0, 2, 4) if g < 2 else (0, 3))][:16]
            if OPT['w2']: eg = sorted(eg + [5, 13])
        for g in range(0 if CH & 1 else 16):
            nx = g + 4
            for r in (rd_k(t + 1, nx) if nx < 16 else rd_v(t, nx - 16)): G.put(4 * g + 3, r)
            G.put(4 * g + 2, W(lg=('fK', t + 1, g + 1, 1) if g < 15 else ('fV', t, 0, 1)))
        pend = place_softmax(G, cur, (2, 3), eg)
        put_dmas(G, dK, {4: pflist(OPT['dgk']), 3: [5, 8, 11], 2: [6, 10], 1: [8], 0: []}[len(dK)])
        if t == 28 and LEAD == 4:
            cz = G.chain(['v_mbcnt_lo_u32_b32 v%d, -1, 0' % vTM, 'v_and_b32 v%d, 3, v%d' % (vTM, vTM), 'v_lshlrev_b32 v%d, 2, v%d' % (vTM, vTM)], 1, 20)
            softplace(G, I('buffer_load_dword v%d, v%d, %s, s%d offen sc1' % (vCAS, vTM, sr(SDBG), sCO), tag=('Chk',)), cz + 1, 20)
        idx = [k for k, (ins, lo) in enumerate(pend) if ins.mn == 'v_add_f32' and ins.ops[0] == 'v%d' % (LT0 + 2)][-1]
        pend.insert(idx + 1, (max3, pend[idx][1]))
        cg = place_chain(G, pend)
        ck = check_items(t)
        cg = G.place(ck[0], cg); cg = G.place(ck[1], cg); cg = cgb = G.place(ck[2], cg + 1); G.put(cg, ck[3])
        assert cg >= 40
        G.chain(ladd, cg)
        if t < 28:
            cz = place_groups(G, dyn_next('K', t % 4), 0, 19)
            place_groups(G, dyn_next('V', t % 4) + ([['s_lshr_b64 %s, %s, 4' % (sr(sMK, 2), sr(sMK, 2))]] if t % 4 == 3 else []), cz + 1, 63)
        if t < 30: place_groups(G, kswitch(t + 2), 48, 63)
        place_groups(G, [[adv(sKO)[0].text]], cg + 1, 63)
        if t == 28 and OPT['ovp']: achain[:] = addr_chain(246)
        if t >= 28 and OPT['ovp']:
            cz = 0
            redo['RS_%d' % (100 + t)] = list(adone)
            while achain and fit_chain(G, achain[:1], cz, 63):
                adone.append(achain.pop(0)); cz = G.place(adone[-1], cz)
                if cz < cgb: redo['RS_%d' % (100 + t)].append(adone[-1])
            redo['RS_131'] = list(adone)
        padput(G, (OPT['pad'] + 1) // 2, t, 0)
        o += G.flat()
    else:
        for pre, d in dK: o += pre; o.append(I('s_nop 0')); o.append(d)
        i0 = softmax_items(cur, 2); i1 = softmax_items(cur, 3)
        for x, y in zip(i0, i1): o.append(x[2]); o.append(y[2])
        o.append(max3); o += check_items(t); o += ladd
    G = Gaps(pv_mfmas(t))
    if t < 30: nxt_rd = lambda n: rd_k(t + 2, n); nxt_tag = ('fK', t + 2, CH & 1, 1); vmw = [('K', t + 2, 3), ('V', t + 1, 3)] + ([('Chk',)] if t == 29 else [])
    elif t == 30: nxt_rd = lambda n: rd_v(31, n); nxt_tag = ('fV', 31, 0, 1); vmw = [('V', 31, 3)]
    else: nxt_rd = lambda n: rd_wo(0, n); nxt_tag = ('fWo', 0, 0, 1); vmw = [('Wo', 0, 1, 3)]
    for g in range(16):
        nx = g + 4
        if g == 15 and CH & 1 and t < 30: G.put(63, W(lg=nxt_tag))
        for r in (rd_v(t, nx) if nx < 16 else nxt_rd(nx - 16)): G.put(4 * g + 3, r)
        if g == 15 and CH & 1 and t < 30: pass
        elif g == 12:
            G.put(4 * g + 2, W(lg=('fV', t, g + 1, 1), vm=vmw)); G.put(4 * g + 2, 's_barrier')
        else: G.put(4 * g + 2, W(lg=('fV', t, g + 1, 1) if g < 15 else nxt_tag))
    pend = []
    if t < 31: pend = place_softmax(G, cur ^ 1, (0, 1), [4 * g for g in range(16)])
    grp = {4: pflist(OPT['dgv']), 3: [1, 4, 7], 2: [2, 6], 1: [4], 0: []}[len(dV)]
    if OPT['pfl'] and t < 28:
        if t == 0 and pfstate['n'] != OPT['pfl']: raise SystemExit('last pfq must equal pfl')
        dV = dV + pf_items(OPT['pfl']); grp = grp + [10, 11]
    if t >= 28:
        for k, r in enumerate(pt_at(2 * (t - 28) + 1)): dV = dV + [pt_items(r)]; grp = grp + [(11 if t < 31 else 14) + k]
    if OPT['cp2'] and t < 28 and t % 4 == OPT['cp2'] - 1:
        dV = dV + [([I('v_mbcnt_lo_u32_b32 v245, -1, 0'), I('v_mbcnt_hi_u32_b32 v245, -1, v245'), I('v_lshlrev_b32 v245, 7, v245'), I('s_mov_b32 m0, %d' % (9 * SLOT))],
                    I('buffer_load_dword v245, s[72:75], s76 offen lds', tag=('PF',)))]; grp = grp + [10]
    put_dmas(G, dV, grp)
    place_chain(G, pend)
    if t < 31:
        pass
    if OPT['warm'] & 4 and OPT['woat'] == 100 + t:
        cz = 0
        for c in ['v_mbcnt_lo_u32_b32 v244, -1, 0', 's_lshl_b32 s37, s4, 2', 'v_bfe_u32 v%d, v244, 3, 2' % vTM, 's_add_u32 s37, s37, s3', 'v_and_b32 v244, 7, v244', 's_mul_i32 s37, s37, 3584',
                  'v_min_u32 v244, 6, v244', 'v_mul_u32_u24 v%d, 896, v%d' % (vTM, vTM), 'v_lshl_add_u32 v%d, v244, 7, v%d' % (vTM, vTM)]: cz = softplace(G, c, cz, cz + 4)
        softplace(G, I('buffer_load_dword v244, v%d, %s, s37 offen %s' % (vTM, sr(SWO), OPT['warmpol'].replace('+', ' ').replace('none', '')), tag=('PF',)), cz + 1, cz + 8)
    padput(G, OPT['pad'] // 2, t, 1)
    if t == 28 and LEAD < 4:
        cz = 34
        for c in ['v_mbcnt_lo_u32_b32 v%d, -1, 0' % vTM, 'v_and_b32 v%d, 3, v%d' % (vTM, vTM), 'v_lshlrev_b32 v%d, 2, v%d' % (vTM, vTM)]: cz = softplace(G, c, cz, cz + 3)
        softplace(G, I('buffer_load_dword v%d, v%d, %s, s%d offen sc1' % (vCAS, vTM, sr(SDBG), sCO), tag=('Chk',)), cz + 1, cz + 6)
    if OPT['ptl'] and 4 * PEEL <= t < 28:
        cz = softplace(G, I('buffer_load_dword v245, v246, %s, s36 offen %s' % (sr(SWS), OPT['ptpol'].replace('+', ' ')), tag=('PT', t)), 37, 45)
        softplace(G, 's_add_u32 s36, s36, %d' % (128 * OPT['ptl']), cz + 1, cz + 6)
    if OPT['ptl'] and t == 4 * PEEL - 1:
        cz = 30
        for c in ['v_mbcnt_lo_u32_b32 v246, -1, 0', 's_mul_i32 s36, s3, %d' % (OPT['ring'] * 4096), 'v_min_u32 v246, %d, v246' % (OPT['ptl'] - 1),
                  's_add_u32 s36, s36, s%d' % sPO, 'v_lshlrev_b32 v246, 7, v246']: cz = softplace(G, c, cz, cz + 4)
    if t == 30 and OPT['ptouch'] and not OPT['ptl'] and not OPT['ptat']:
        sh = OPT['ptouch']; R = OPT['ring']
        cz = 32
        for c in ['v_mbcnt_lo_u32_b32 v%d, -1, 0' % vTM, 's_mul_i32 s%d, s3, %d' % (sVO, R * 4096), 'v_mbcnt_hi_u32_b32 v%d, -1, v%d' % (vTM, vTM),
                  's_add_u32 s%d, s%d, s%d' % (sVO, sVO, sPO), 'v_lshlrev_b32 v%d, %d, v%d' % (vTM, sh, vTM)]: cz = softplace(G, c, cz, cz + 3)
        n = -(-R * 4096 // (64 << sh))
        for k in range(n):
            cz = softplace(G, I('buffer_load_dword v%d, v%d, %s, s%d offen' % (vFV, vTM, sr(SWS), sVO), tag=('PT', k)), cz + 1, min(63, cz + 4))
            if k < n - 1: cz = softplace(G, 's_add_u32 s%d, s%d, %d' % (sVO, sVO, 64 << sh), cz + 1, cz + 4) + 4
    if t == 29:
        ch = ['v_cmp_ne_u32 vcc, s%d, v%d' % (sFULL, vCAS), 'v_mbcnt_lo_u32_b32 v%d, -1, 0' % vTM, 's_or_b32 s%d, s6, s3' % sVO, 'v_or_b32 v%d, s%d, v%d' % (vTM, sVO, vTM),
              's_cmp_eq_u64 vcc, 0', 's_cselect_b32 s%d, 32, 64' % sVO, 'v_lshlrev_b32 v%d, 8, v%d' % (vTM, vTM), 's_or_b32 s%d, s%d, s%d' % (sVO, sVO, sREG), 'v_mov_b32 v%d, s%d' % (vCAS, sVO),
              I('buffer_store_byte v%d, v%d, %s, s%d offen' % (vCAS, vTM, sr(SDBG), sCO), tag=('Dec',))]
        cz = 52
        for k, c in enumerate(ch): cz = softplace(G, c, min(63, cz + (k in (4, 9))), min(63, cz + 2))
    if 4 * PEEL <= t < 28 and t % 4 == 3:
        gp = G.place('s_add_u32 s%d, s%d, 1' % (sLC, sLC), 44); G.place('s_cmp_lt_u32 s%d, %d' % (sLC, NA if t < 4 * NA else 7), max(gp + 1, 52))
        G.put(63, 's_cbranch_scc1 L_LOOP%s' % ('A' if t < 4 * NA else ''), force=True)
    if t == 31:
        ch = []
        for sw in ('v_permlane32_swap_b32', 'v_permlane16_swap_b32'):
            ch += ['v_mov_b32 v%d, v%d' % (LT0 + q, L0 + q) for q in range(4)]
            ch += ['%s v%d, v%d' % (sw, L0 + q, LT0 + q) for q in range(4)]
            ch += ['v_add_f32 v%d, v%d, v%d' % (L0 + q, L0 + q, LT0 + q) for q in range(4)]
        ch += ['v_rcp_f32 v%d, v%d' % (L0 + q, L0 + q) for q in range(4)]
        if OPT['ovp']: G.cap = 3; G.put(OPT['decg'], dec_load(('DecL',)), force=True)
        G.chain(ch, 0)
        G.cap = 3
        if OPT['ovp']:
            G.chain(achain + addr_fin(True), 0)
            G.cap = OPT['oc']; cz = 0; k = 0
            pos = {m.ops[0]: j for j, m in enumerate(G.m)}
            while len(oblk) > OPT['ov'] and OPT['ovp'] == 1:
                ds, qb = oblk[0]; blk = oblock(ds, qb, 128 + 8 * (k % 4))
                pl = fit_chain(G, blk, max(cz, pos[ar(O(2 * ds + 1, qb))] + 3), 63)
                if not pl: break
                for gp, c in zip(pl, blk): G.put(gp, c)
                cz = pl[-1]; oblk.pop(0); k += 1
        else: G.chain(addr_chain(243) + addr_fin(False), 0)
    o += G.flat()
    return o

def pt_items(r):
    pre = ['v_mbcnt_lo_u32_b32 v%d, -1, 0' % vPT, 'v_min_u32 v%d, 31, v%d' % (vPT, vPT), 'v_lshlrev_b32 v%d, 7, v%d' % (vPT, vPT)]
    if r == 0: pre += ['s_lshl_b32 s36, s3, 12', 's_add_u32 s36, s36, s%d' % sPO]
    else: pre += ['s_add_u32 s36, s36, 16384']
    return [I(c) for c in pre] + [I('s_mov_b32 m0, %d' % (9 * SLOT))], I('buffer_load_dword v%d, %s, s36 offen %s lds' % (vPT, sr(SWS), OPT['ptpol'].replace('+', ' ')), tag=('PF',))
vPT = 231
def pt_at(code): return [r for r, c in enumerate(OPT['ptat']) if int(c, 36) == code]
def oconv():
    o = []
    assert not pt_at(8)
    k = 0; n = len(oblk) - OPT['ov']
    if OPT['orot']:
        assert n % 4 == 0
        o.append(I('s_mov_b32 s%d, 3' % sT1))
        for w in (1, 2, 3): o += [I('s_cmp_eq_u32 s3, %d' % w), I('s_cbranch_scc1 L_OC%d' % w)]
        o.append(I('L_OC0:'))
    while len(oblk) > OPT['ov']:
        ds, qb = oblk.pop(0); o += [I(c) for c in oblock(ds, qb, 128 + 8 * (k % 4))]; k += 1
        if OPT['orot'] and k % (n // 4) == 0:
            o += [I('s_sub_u32 s%d, s%d, 1' % (sT1, sT1))]
            o += [I('s_cbranch_scc1 L_OCE'), I('L_OC%d:' % (k // (n // 4)))] if k < n else [I('s_cbranch_scc0 L_OC0'), I('L_OCE:')]
    print('; oconv exposed blocks', k, file=sys.stderr)
    return o

def ringadv(reg, hc, R):
    return 's_add_u32 s%d, s%d, 16384' % (reg, reg) if (hc + 1) % R else 's_sub_u32 s%d, s%d, %d' % (reg, reg, (R - 1) * 16384)
def epi_items(hc, pol, R=14):
    buf = hc & 1; it = []
    if R != 14 and hc < R and OPT['st0pol']: pol = OPT['st0pol'].replace('+', ' ')
    if R != 14 and hc >= 14 - OPT['stlast']: pol = OPT['stpol2'].replace('+', ' ')
    for qb in range(4):
        b = S(buf, qb)
        for j in range(4):
            it.append(I('v_mul_f32 v%d, v%d, v%d' % (b + 2 * j, b + 2 * j, L0 + qb)))
            it.append(I('v_mul_f32 v%d, v%d, v%d' % (b + 2 * j + 1, b + 2 * j + 1, L0 + qb)))
            it.append(I('v_cvt_pk_bf16_f32 v%d, v%d, v%d' % (b + j, b + 2 * j, b + 2 * j + 1)))
        it.append(I('buffer_store_dwordx4 %s, v%d, %s, s%d offen offset:%d %s' % (vr(b), vST, sr(SWS), sPO, qb * 1024, pol), tag=('St', hc, qb)))
    it.append(I(ringadv(sPO, hc, R)))
    return it

def wo_frag(hc, n):
    if CH & 4 and (hc or not OPT['ov']): return 2 * (n >> 2) + (n & 1), (n >> 1) & 1
    return n >> 1, n & 1
def rd_wo8(hc, n):
    ds, T = wo_frag(hc, n)
    nt = 2 * (hc & 1) + T
    r = RING8(n)
    return [I('ds_read_b64_tr_b16 %s, v%d offset:%d' % (vr(r + 2 * rho, 2), vOA + nt, (4 * ds + 2 * rho) * 1088), tag=('fWo', hc, n, rho)) for rho in (0, 1)]
def red_loads(hc, rb): return [I('buffer_load_dwordx4 %s, v%d, %s, s%d offen %s' % (ar(rb + 4 * j), vRL + j, sr(SWS), sCO, 'sc1' if hc == 99 else OPT['rlpol'].replace('+', ' ').replace('none', '')), tag=('RL', hc, j)) for j in range(4)]
def red_mfmas(rb, d=vRD): return [I('%s %s, %s, %s, %s' % (MF, vr(d), vr(vSEL), ar(rb + 4 * j), vr(d) if j else '0')) for j in range(4)]
def red_out(hc, d=vRD, cv=vCV):
    return [I('v_cvt_pk_bf16_f32 v%d, v%d, v%d' % (cv, d, d + 1)), I('v_cvt_pk_bf16_f32 v%d, v%d, v%d' % (cv + 1, d + 2, d + 3)),
            I('buffer_store_dwordx2 %s, v%d, %s, 0 offen offset:%d %s' % (vr(cv, 2), vOUT, sr(SOUT), hc * 64, OPT['outpol'].replace('+', ' ')), tag=('Out', hc))]
def poll(tag, a=vPL): return I('buffer_load_dword v%d, v%d, %s, 0 offen sc1' % (vPR, a, sr(SWS)), tag=tag)
def flag(val):
    R, LAG = OPT['ring'], OPT['lag']
    if val + 1 - LAG >= 0: r = [I('v_add_u32 v%d, %d, v%d' % (vFV, val, vB))]
    else: r = [I('v_mov_b32 v%d, %d' % (vFV, R - LAG + 1)), I('v_writelane_b32 v%d, %d, 0' % (vFV, val))]
    return r + [I('buffer_store_dword v%d, v%d, %s, 0 offen' % (vFV, vFL, sr(SWS)), tag=('Fl', val))]
spins = []
def spin_stub(lab, thr, a):
    o = []
    A = lambda s: o.append(I(s))
    A('%s:' % lab); A('s_movk_i32 s%d, 0x7fff' % sT1)
    A('%s_L:' % lab); o.append(poll(None, a)); A('s_waitcnt vmcnt(0)'); A('v_cmp_gt_u32 vcc, %d, v%d' % (thr, vPR))
    A('s_sub_u32 s%d, s%d, 1' % (sT1, sT1)); A('s_cbranch_scc1 %s_RET' % lab); A('s_cbranch_vccnz %s_L' % lab); A('s_branch %s_RET' % lab)
    return o

def softplace(G, ins, lo, hi=None):
    if isinstance(ins, str): ins = I(ins)
    hi = G.n - 1 if hi is None else hi
    for gp in range(lo, hi + 1):
        if G.fits(gp, ins): return G.put(gp, ins)
    for extra in (1, 2, 3, 4):
        for gp in range(lo, hi + 1):
            if G.used[gp] + ins.cost <= G.cap + extra and not (ins.kind == 'ds' and any(x.kind == 'valu' for x in G.g[gp])):
                return G.put(gp, ins, force=True)
    raise AssertionError(('no room', ins.text))

def phase3(fast):
    o = []
    LAG = OPT['lag']
    pol = OPT['stpol'].replace('+', ' ') if fast else 'sc1'
    R = OPT['ring'] if fast else 14
    for hc in range(14):
        p = hc
        mf = []
        consume = fast and p - LAG - 1 >= 0
        red = red_mfmas(0) if consume else []
        rpos = {40: 0, 42: 1, 44: 2, 46: 3}
        gi = {}
        chd = wo_frag(hc, 1) == (1, 0)
        for k in range(64):
            n, qb = (2 * (k >> 3) + (k & 1), (k >> 1) & 3) if chd else (k >> 2, k & 3)
            if CH & 8 and (k >> 3 if chd else k >> 2) & 1: qb = 3 - qb
            ds, T = wo_frag(hc, n)
            d = vr(S(hc & 1, qb, T))
            if red and k in rpos: mf.append(red[rpos[k]])
            gi[k] = len(mf)
            mf.append(I('%s %s, %s, %s, %s' % (MF, d, vr(RING8(n)), vr(Q(ds, qb)), d if ds else '0')))
        G = Gaps(mf)
        ch = hc >> 1
        dopoll = fast and p >= LAG
        if consume:
            rl = red_loads(p - LAG - 1, 0)
            G.put(0, rl[2]); G.put(5, rl[3]); G.put(6, ringadv(sCO, p - LAG - 1, R))
        if dopoll: G.put(OPT['ppos'], poll(('Poll', p)))
        for g in range(16):
            nx = g + 7
            if nx < 16 or hc < 13:
                for r in (rd_wo8(hc, nx) if nx < 16 else rd_wo8(hc + 1, nx - 16)): G.put(gi[4 * g + 3], r)
            if g & 1:
                if g < 15: lg = ('fWo', hc, g + 2 if g < 14 else 15, 1)
                else: lg = ('fWo', hc + 1, 1, 1) if hc < 13 else None
                vm = []
                if g == 9:
                    if (hc & 1) and hc < 13: vm.append(('Wo', ch + 1, 1, 3))
                    if dopoll: vm.append(('Poll', p))
                    elif fast and p >= 2: vm.append(('St', p - 2, 3))
                if lg or vm: G.put(gi[4 * g + 2], W(lg=lg, vm=vm or None))
                if g == 9 and (hc & 1) and hc < 13: G.put(gi[4 * g + 2], 's_barrier')
        dm = []
        if hc in WOS: dm = [dma_wo(*WOS[hc], q, sT0) for q in range(4)]
        grp = ([4, 5, 7, 8] if fast else [1, 2, 3, 4])[:len(dm)]
        if fast:
            for r in pt_at(9 + hc): dm = [pt_items(r)] + dm; grp = [2] + grp
        put_dmas(G, dm, grp)
        after = gi[38] + 1
        stlo = 0
        if fast and p >= 2:
            f = flag(p - 1)
            cg = G.chain(f[:-1], 30); softplace(G, f[-1], max(after, cg + 1))
        if dopoll:
            lab = 'SP_%d' % p
            spins.append((lab, p - LAG + 1, vPL))
            cg = G.place('v_cmp_gt_u32 vcc, %d, v%d' % (p - LAG + 1, vPR), after)
            cg = G.place('s_cbranch_vccnz %s' % lab, cg + 1); G.put(cg, I('%s_RET:' % lab))
            stlo = cg + 1
            rl = red_loads(p - LAG, 0)
            softplace(G, rl[0], gi[53]); softplace(G, rl[1], gi[61])
        og = 0
        if fast and p - LAG - 2 >= 0: og = softplace(G, red_out(p - LAG - 2)[2], gi[44])
        if consume:
            ro = red_out(p - LAG - 1)
            cg = softplace(G, ro[0], max(gi[46] + 6, og + 1)); cg = softplace(G, ro[1], cg)
        if hc < 12:
            delta = (WOB[(ch + 1) % 4] - WOB[ch % 4]) * SLOT
            pair = (0, 1) if hc % 2 == 0 else (2, 3)
            for nt in pair:
                softplace(G, ('v_add_u32 v%d, %d, v%d' % (vOA + nt, delta, vOA + nt)) if delta > 0 else ('v_subrev_u32 v%d, %d, v%d' % (vOA + nt, -delta, vOA + nt)), gi[36])
        if hc == 0:
            G.cap = OPT['oc']; cz = 0
            for k, (ds, qb) in enumerate(oblk):
                for c in oblock(ds, qb, 160 + 8 * (k % 4)): cz = softplace(G, c, cz, gi[8 * ds] - 2)
        if hc > 0:
            cur = 0; last = stlo
            ep = epi_items(hc - 1, pol, R)
            if stlo:
                pre = {}
                for ins, tg in zip([x for x in ep if x.kind == 'vst'][:3], (stlo, gi[46], gi[50])): last = pre[ins.tag] = softplace(G, ins, tg)
            for ins in ep:
                if ins.kind == 'vst':
                    if stlo and ins.tag in pre: assert cur < pre[ins.tag], (hc, ins.tag, cur, pre)
                    else: last = softplace(G, ins, max(cur + 1, last))
                elif ins.kind == 'salu': softplace(G, ins, last)
                else: cur = softplace(G, ins, cur)
        o += G.flat()
    if not fast:
        o.append(I('s_nop 7'))
        o += epi_items(13, pol, R)
    return o

def fast_tail():
    o = []
    A = lambda s: o.append(I(s))
    LAG = OPT['lag']; R = OPT['ring']
    h0 = 13 - LAG
    ep = epi_items(13, OPT['stpol'].replace('+', ' '), R)
    rl = red_loads(h0, 0)
    o += rl[2:]; A(ringadv(sCO, h0, R))
    o.append(poll(('Poll', 14)))
    f = flag(13); o += f[:-1]
    A('s_nop 2')
    o += ep[:12]
    o.append(W(vm=('Poll', 14))); o.append(f[-1])
    spins.append(('SP_14', 15 - LAG, vPL))
    A('v_cmp_gt_u32 vcc, %d, v%d' % (15 - LAG, vPR)); o += ep[13:15]; A('s_cbranch_vccnz SP_14'); A('SP_14_RET:')
    o.append(ep[12]); o += ep[15:-1]
    o += red_loads(h0 + 1, 16); A(ringadv(sCO, h0 + 1, R))
    o.append(red_out(h0 - 1)[2])
    o += red_mfmas(0)
    A('v_mov_b32 v%d, 14' % vFV)
    o.append(W(vm=('St', 13, 3)))
    o.append(I('buffer_store_dword v%d, v%d, %s, 0 offen' % (vFV, vFL, sr(SWS)), tag=('Fl', 14)))
    o.append(poll(('Poll', 15), vPL2))
    o.append(W(vm=('RL', h0 + 1, 3)))
    o += red_mfmas(16, 128)
    ro0 = red_out(h0); o += ro0[:2]
    o.append(W(vm=('Poll', 15)))
    spins.append(('SP_15', 14, vPL2))
    A('v_cmp_gt_u32 vcc, 14, v%d' % vPR); A('s_nop 0'); A('s_cbranch_vccnz SP_15'); A('SP_15_RET:')
    rest = list(range(h0 + 2, 14))
    for k, hc in enumerate(rest):
        o += red_loads(hc, 16 * k + 32); A(ringadv(sCO, hc, R))
    o.append(ro0[2])
    o += red_out(h0 + 1, 128, 132)
    mm = [red_mfmas(16 * k + 32, 136 + 8 * k) for k in range(len(rest))]
    o.append(W(vm=('RL', 13, 3)))
    for j in range(4):
        for m in mm: o.append(m[j])
    A('s_nop 7')
    for k, hc in enumerate(rest): o += red_out(hc, 136 + 8 * k, 140 + 8 * k)
    return o

def dec_load(tag=None): return I('buffer_load_dword v%d, off, %s, s%d sc1' % (vCAS, sr(SDBG), sCO), tag=tag)
def decide():
    o = []
    A = lambda s: o.append(I(s))
    o.append(W(vm=('DecL',)))
    A('v_readfirstlane_b32 s%d, v%d' % (sT0, vCAS))
    A('s_bitcmp1_b32 s%d, 5' % sT0); A('s_cbranch_scc0 L_DECIDE'); A('L_FAST:'); A('s_mov_b32 s%d, 0' % sCO)
    return o

def slow_path(pro):
    o = []
    A = lambda s: o.append(I(s))
    A('L_DECIDE:')
    A('v_mbcnt_lo_u32_b32 v237, -1, 0'); A('v_lshl_add_u32 v237, v237, 8, s6')
    A('s_mov_b32 s%d, 0x40000' % sLC)
    A('L_DEC_A:')
    o.append(dec_load()); A('s_waitcnt vmcnt(0)'); A('v_readfirstlane_b32 s%d, v%d' % (sT0, vCAS))
    A('s_bitcmp1_b32 s%d, 5' % sT0); A('s_cbranch_scc1 L_FAST')
    A('s_bitcmp1_b32 s%d, 6' % sT0); A('s_cbranch_scc1 L_SLOW')
    A('s_bitcmp1_b32 s%d, 7' % sT0); A('s_cbranch_scc0 L_DEC_V')
    A('s_xor_b32 s%d, s%d, s%d' % (sT0, sT0, sREG)); A('s_and_b32 s%d, s%d, 15' % (sT0, sT0)); A('s_cbranch_scc1 L_SLOW')
    A('s_sub_u32 s%d, s%d, 1' % (sLC, sLC)); A('s_cbranch_scc0 L_DEC_A'); A('s_branch L_SLOW')
    A('L_DEC_V:')
    A('s_or_b32 s%d, s%d, 64' % (sT0, sREG)); A('v_mov_b32 v%d, s%d' % (vCAS, sT0))
    A('buffer_store_byte v%d, v237, %s, s%d offen' % (vCAS, sr(SDBG), sCO)); A('s_waitcnt vmcnt(0)')
    o.append(dec_load()); A('s_waitcnt vmcnt(0)'); A('v_readfirstlane_b32 s%d, v%d' % (sT0, vCAS))
    A('s_bitcmp1_b32 s%d, 7' % sT0); A('s_cbranch_scc1 L_DEC_A')
    A('L_SLOW:')
    o += phase3(False)
    A('s_waitcnt vmcnt(0)'); A('buffer_wbl2 sc1'); A('s_waitcnt vmcnt(0)')
    A('s_barrier'); A('s_cmp_eq_u32 s3, 0'); A('s_cbranch_scc0 L_END')
    A('s_and_b32 s%d, s6, 3' % sT0); A('s_lshl_b32 s%d, s%d, 3' % (sT0, sT0)); A('s_lshl_b32 s%d, 16, s%d' % (sT0, sT0)); A('v_mov_b32 v%d, s%d' % (vCAS, sT0))
    A('v_and_b32 v255, -4, v237')
    A('buffer_atomic_or v%d, v255, %s, s%d offen sc0 sc1' % (vCAS, sr(SDBG), sCO)); A('s_waitcnt vmcnt(0)')
    A('v_mbcnt_lo_u32_b32 v255, -1, 0'); A('v_lshrrev_b32 v%d, 2, v255' % vCAS); A('v_lshlrev_b32 v255, 2, v255'); A('v_lshl_add_u32 v255, v%d, 8, v255' % vCAS)
    A('v_mov_b32 v%d, 0' % vCAS)
    A('buffer_atomic_or v%d, v255, %s, s%d offen sc0 sc1' % (vCAS, sr(SDBG), sCO)); A('s_waitcnt vmcnt(0)')
    A('s_mov_b32 s%d, 0x10101010' % sT0); A('v_and_b32 v%d, s%d, v%d' % (vCAS, sT0, vCAS)); A('v_cmp_eq_u32 vcc, s%d, v%d' % (sT0, vCAS))
    A('s_nop 1'); A('s_and_b32 s%d, vcc_lo, 15' % sT0); A('s_cmp_eq_u32 s%d, 15' % sT0); A('s_cbranch_scc0 L_END')
    A('buffer_inv sc1'); A('s_waitcnt vmcnt(0)')
    for j in range(4): A('v_subrev_u32 v%d, s%d, v%d' % (vRL + j, sRLO, vRL + j))
    A('v_subrev_u32 v%d, s%d, v%d' % (vOUT, sOUO, vOUT))
    A('s_mov_b32 s%d, 0' % sLC)
    A('L_SLOOP:')
    A('s_lshl_b32 s%d, s%d, 8' % (sCO, sLC))
    o += red_loads(99, 0)
    A('s_bfe_u32 s%d, s%d, 0x40002' % (sT0, sLC)); A('s_mul_i32 s%d, s%d, 14336' % (sT0, sT0))
    A('s_and_b32 s%d, s%d, 3' % (sT1, sLC)); A('s_mul_i32 s%d, s%d, 3584' % (sT1, sT1)); A('s_add_u32 s%d, s%d, s%d' % (sT0, sT0, sT1))
    A('s_andn2_b32 s%d, s%d, 63' % (sT1, sLC)); A('s_add_u32 s%d, s%d, s%d' % (sT0, sT0, sT1))
    A('s_waitcnt vmcnt(0)')
    o += red_mfmas(0); A('s_nop 7')
    ro = red_out(0); o += ro[:2]
    A('buffer_store_dwordx2 %s, v%d, %s, s%d offen' % (vr(vCV, 2), vOUT, sr(SOUT), sT0))
    A('s_add_u32 s%d, s%d, 1' % (sLC, sLC)); A('s_cmp_lt_u32 s%d, 896' % sLC); A('s_cbranch_scc1 L_SLOOP')
    A('s_waitcnt vmcnt(0)'); A('s_endpgm')
    return o

def rare(par):
    o = []
    A = lambda s: o.append(I(s))
    A('RARE_%d:' % par)
    A('s_nop 7'); A('s_nop 7')
    A('v_mbcnt_lo_u32_b32 v252, -1, 0'); A('v_mbcnt_hi_u32_b32 v252, -1, v252')
    A('v_and_b32 v253, 15, v252'); A('v_lshlrev_b32 v253, 9, v253'); A('v_lshrrev_b32 v252, 4, v252'); A('v_lshl_add_u32 v252, v252, 4, v253')
    A('s_sub_u32 s%d, s%d, %d' % (sR0, sKO, LEAD * TS))
    if OPT['km'] == 1: A('v_and_b32 v253, 0x1000, v252'); A('v_mul_u32_u24 v253, 31, v253'); A('v_add_u32 v252, v253, v252')
    if OPT['xr']: A('s_xor_b32 s%d, s%d, s%d' % (sR0, sR0, sXR))
    for T in range(2):
        if T: A('s_add_u32 s%d, s%d, %d' % (sR0, sR0, 262144 if OPT['km'] else 8192))
        for ds in range(0, 8, 2):
            A('buffer_load_dwordx4 v[244:247], v252, %s, s%d offen offset:%d' % (sr(SK), sR0, ds * 64))
            A('buffer_load_dwordx4 v[248:251], v252, %s, s%d offen offset:%d' % (sr(SK), sR0, ds * 64 + 64))
            A('s_waitcnt vmcnt(0)')
            for d2 in range(2):
                for qb in range(4):
                    d = vr(S(par, qb, T))
                    A('%s %s, %s, %s, %s' % (MF, d, vr(244 + 4 * d2), vr(Q(ds + d2, qb)), d if ds + d2 else vr(NEGM(qb))))
            A('s_nop 7')
    A('s_nop 7')
    for qb in range(4):
        b = S(par, qb); y = S(par ^ 1, qb)
        A('v_max3_f32 v253, v%d, v%d, v%d' % (b, b + 1, b + 2)); A('v_max3_f32 v253, v253, v%d, v%d' % (b + 3, b + 4))
        A('v_max3_f32 v253, v253, v%d, v%d' % (b + 5, b + 6)); A('v_max_f32 v253, v253, v%d' % (b + 7))
        for sw in ('v_permlane32_swap_b32', 'v_permlane16_swap_b32'):
            A('v_mov_b32 v254, v253'); A('s_nop 1'); A('%s v253, v254' % sw); A('v_max_f32 v253, v253, v254')
        A('v_max_f32 v253, 0, v253')
        A('v_exp_f32 v255, -v253')
        for r in range(4): A('v_sub_f32 v%d, v%d, v253' % (NEGM(qb) + r, NEGM(qb) + r))
        for k in range(8): A('v_sub_f32 v%d, v%d, v253' % (y + k, y + k))
        for k in range(8): A('v_sub_f32 v%d, v%d, v253' % (b + k, b + k))
        for kind, k, ins in softmax_items(par, qb):
            o.append(ins)
            if kind == 'e': A('s_nop 0')
        A('v_mul_f32 v%d, v%d, v255' % (L0 + qb, L0 + qb))
        for db in range(0, 16, 2):
            regs = [O(db + d, qb) + r for d in range(2) for r in range(4)]
            for k, a in enumerate(regs): A('v_accvgpr_read_b32 v%d, a%d' % (244 + k, a))
            for k, a in enumerate(regs): A('v_mul_f32 v%d, v%d, v255' % (244 + k, 244 + k))
            for k, a in enumerate(regs): A('v_accvgpr_write_b32 a%d, v%d' % (a, 244 + k))
    A('s_nop 1')
    A('s_setpc_b64 %s' % sr(sRET, 2))
    return o

def dump_v(first, nfrag):
    o = []
    A = lambda s: o.append(I(s))
    A('s_nop 7'); A('s_nop 7'); A('s_waitcnt vmcnt(0) lgkmcnt(0)')
    A('s_lshl_b32 s34, s%d, 17' % sBH); A('s_add_u32 s28, s50, s34'); A('s_addc_u32 s29, s51, 0'); A('s_mov_b32 s30, 131072')
    for f in range(nfrag):
        A('s_mov_b32 s35, %d' % ((f // 4) * 16384 + (f % 4) * 1024))
        A('buffer_store_dwordx4 %s, v%d, %s, s35 offen' % (vr(first + 4 * f), vST, sr(SWS)))
    A('s_waitcnt vmcnt(0)'); A('s_endpgm')
    return o

def stamps_out():
    o = []
    if not OPT['stamps']: return o
    A = lambda s: o.append(I(s))
    A('s_waitcnt vmcnt(0)')
    A('s_memrealtime s[94:95]'); A('s_waitcnt lgkmcnt(0)')
    A('s_add_u32 s28, s50, 0x4000000'); A('s_addc_u32 s29, s51, 0'); A('s_mov_b32 s30, 0x100000')
    A('s_lshl_b32 s34, s2, 2'); A('s_add_u32 s34, s34, s3'); A('s_lshl_b32 s34, s34, 7')
    A('v_mov_b32 v1, 0')
    for k in range(32):
        A('v_mov_b32 v0, s%d' % (sST + k)); A('buffer_store_dword v0, v1, %s, s34 offen offset:%d' % (sr(SWS), 4 * k)); A('s_nop 1')
    return o

def main_kernel():
    pre = setup()
    if OPT['stamps']: pre = [I('s_memrealtime s[92:93]')] + pre
    stamp(pre)
    p1 = phase1()
    if OPT['stop'] == 'q':
        body = pre + p1 + dump_v(0, 32); loop = None; post = []; slow = []
        stream = body
    else:
        stamp(p1)
        pro = prologue()
        stamp(pro)
        iters = [sum((step(4 * it + k) for k in range(4)), []) for it in range(7)]
        if OPT['stamps'] == 2:
            for it in iters:
                it[0:0] = [I('s_waitcnt lgkmcnt(0)'), I('s_memrealtime s[96:97]'), I('s_waitcnt lgkmcnt(0)'), ] + [I('s_mov_b32 s%d, s%d' % (64 + k, 65 + k)) for k in range(6)] + [I('s_mov_b32 s70, s96')]
        tail = [I('L_TAILC:')]
        stamp(tail)
        for t in range(28, 32): tail += step(t)
        if OPT['odbl']: tail += [I('s_mov_b32 s%d, 0' % sVO), I('L_OD:')]
        stamp(tail)
        for n in (4, 5, 6): tail += rd_wo8(0, n)
        if not OPT['ovp']: tail.append(dec_load(('DecL',)))
        tail += oconv()
        if OPT['odbl']: tail += [I('s_add_u32 s%d, s%d, 1' % (sVO, sVO)), I('s_cmp_lt_u32 s%d, 2' % sVO), I('s_cbranch_scc1 L_OD')]
        slow = []
        if OPT['stop'] == 'o': tail += dump_v(0, 32)
        else:
            stamp(tail)
            tail += [W(lg=('fWo', 0, 1, 1))] + decide()
            common = pre + p1 + pro + sum(iters, []) + tail
            slow = slow_path(common)
            resolve_waits(common + slow); finalize_waits(slow)
            tail += phase3(True)
            stamp(tail)
            tail += fast_tail()
            stamp(tail)
            tail += stamps_out()
            tail += [I('s_waitcnt vmcnt(0)')]
        stream = pre + p1 + pro + sum(iters, []) + tail
    resolve_waits(stream)
    if OPT['stop'] != 'q' and PEEL < 7:
        if NA: unify_iters(iters[:NA])
        unify_iters(iters[PEEL + NA:])
    finalize_waits(stream)
    errs = check_hazards(stream, 'main')
    lastw = None
    for ins in stream:
        if ins.mn.startswith(('s_cselect', 's_cmov', 's_cbranch_scc')) and not lastw.startswith(('s_cmp', 's_bitcmp')) and 'L_OC' not in ins.text: errs.append('SCC from %s at %s' % (lastw, ins.text))
        if ins.mn == 's_addc_u32' and lastw != 's_add_u32': errs.append('SCC from %s at %s' % (lastw, ins.text))
        if ins.kind == 'branch' and ins.mn.startswith('s_cbranch_vcc'): lastw = 'call'
        if ins.kind == 'salu' and ins.mn not in NOSCC + ('s_bitset1_b32', 's_getreg_b32', 's_getpc_b64'): lastw = ins.mn
    if slow: errs += check_hazards(common + slow, 'slow')
    out = []
    if OPT['stop'] == 'q': out = stream
    else: out = pre + p1 + pro + sum(iters[:PEEL], []) + ([I('L_LOOPA:')] + iters[0] if NA else []) + ([I('L_LOOP:')] + iters[PEEL + NA] if PEEL < 7 else []) + tail
    out += [I('L_END:'), I('s_endpgm')]
    if OPT['stop'] != 'q':
        for lab, par in stubs:
            out += [I('%s:' % lab), I('s_call_b64 %s, RARE_%d' % (sr(sRET, 2), par))] + [I(c) for c in redo.get(lab, [])] + [I('s_nop 1'), I('s_branch %s_RET' % lab)]
        for lab, thr, a in spins: out += spin_stub(lab, thr, a)
        for par in (0, 1):
            r = rare(par); errs += check_hazards(r, 'rare'); out += r
        out += slow
    for e in errs[:40]: print('; ERROR', e, file=sys.stderr)
    if errs: raise SystemExit('hazard errors: %d' % len(errs))
    return out

def desc(name, vg, acc, y=False):
    return '''.amdhsa_kernel %s
  .amdhsa_next_free_vgpr %d
  .amdhsa_next_free_sgpr 102
  .amdhsa_accum_offset %d
  .amdhsa_group_segment_fixed_size 0
  .amdhsa_kernarg_size 64
  .amdhsa_user_sgpr_count 2
  .amdhsa_user_sgpr_kernarg_segment_ptr 1
  .amdhsa_system_sgpr_workgroup_id_x 1
%s.end_amdhsa_kernel''' % (name, vg, acc, '  .amdhsa_system_sgpr_workgroup_id_y 1\n' if y else '')

def fmt(ins):
    if ins.kind == 'dma' and ins.tag and OPT['nodma'] & {'X': 1, 'Wq': 2, 'K': 4, 'V': 4, 'Wo': 8, 'PF': 16}[ins.tag[0]]: return '    s_nop 0'
    if ins.kind == 'vst' and ins.tag and ins.tag[0] == 'St' and OPT['nost']: return '    s_nop 0'
    if OPT['noexp'] and ins.mn == 'v_exp_f32': return '    ' + ins.text.replace('v_exp_f32', 'v_mov_b32')
    k = OPT['kill']
    if ins.tag and ins.kind in ('vst', 'vld') and k & {'RL': 1, 'Out': 2, 'Poll': 4, 'Fl': 8, 'Reg': 32, 'Fz': 64, 'Dec': 128, 'Chk': 128}.get(ins.tag[0], 0): return '    s_nop 0'
    if k & 16 and ins.text.startswith('s_cbranch_vccnz SP_'): return '    s_nop 0'
    if k & 32 and ins.text.startswith('s_cbranch_scc0 L_DECIDE'): return '    s_nop 0'
    return ins.text if ins.kind == 'label' else '    ' + ins.text

if __name__ == '__main__':
    K1 = OPT['name'] + '_kernel'; K2 = 'mha_reduce_kernel'
    hdr = open('standalone__mha_block_cached__near_ridge.s.ref').read().split('; Override launch')[0]
    t = hdr
    t += '; @launch grid=(256,1,1) block=(256,1,1) lds=163840\n'
    t += '.amdgcn_target "amdgcn-amd-amdhsa--gfx950"\n.text\n'
    for K, body in ((K1, main_kernel()),):
        t += '.globl %s\n.p2align 8\n.type %s,@function\n%s:\n' % (K, K, K)
        t += '\n'.join((fmt(i).strip().replace(', ', ',') if OPT['tight'] else fmt(i)) for i in body) + '\n'
    t += '.section .rodata,"a"\n.p2align 6\n' + desc(K1, 512, 256) + '\n'
    sys.stdout.write(t)
```
